```python
import torch

def _softmax(x, axis=-1):
    return torch.softmax(x, dim=axis)

def _gelu(x):
    return torch.nn.functional.gelu(x, approximate='tanh')

def _silu(x):
    return torch.nn.functional.silu(x)

def _sigmoid(x):
    return torch.sigmoid(x)

def _layernorm(x, axis=-1, eps=1e-05):
    m = x.mean(dim=axis, keepdim=True)
    v = x.var(dim=axis, keepdim=True, unbiased=False)
    return (x - m) / torch.sqrt(v + eps)

def _scatter_add(tgt, idx, src, axis=0):
    return tgt.clone().index_add_(axis, idx, src)

def _segment_sum(src, seg, n):
    out = torch.zeros((n,) + src.shape[1:], dtype=src.dtype)
    return out.index_add_(0, seg, src)

def _pad(x, pw):
    flat = tuple((v for pair in reversed(pw) for v in pair))
    return torch.nn.functional.pad(x, flat)
kernel_name = 'interleave_layers__memory_aug_recurrent_mem_tr__ssm_conv_h3__prompt'

def setup_inputs():

    _w = lambda a: (lambda t: t.to(torch.bfloat16) if t.is_floating_point() else t)(torch.as_tensor(a))

    def _A_setup():
        B, S, Dm = (1, 2048, 640)
        H, Dh = (32, 128)
        M, seg = (8, 32)
        seg = min(seg, S)
        S = S // seg * seg
        return {'x': _w((lambda *s: torch.randn(*s, dtype=torch.bfloat16) * 0.05)(B, S, Dm)), 'mem0': _w((lambda *s: torch.randn(*s, dtype=torch.bfloat16) * 0.4)(B, M, Dm)), 'Wq': _w((lambda *s: torch.randn(*s, dtype=torch.bfloat16) * 1.6)(Dm, H, Dh) * Dm ** (-0.5)), 'Wk': _w((lambda *s: torch.randn(*s, dtype=torch.bfloat16) * 1.6)(Dm, H, Dh) * Dm ** (-0.5)), 'Wv': _w((lambda *s: torch.randn(*s, dtype=torch.bfloat16) * 0.4)(Dm, H, Dh) * Dm ** (-0.5)), 'Wo': _w((lambda *s: torch.randn(*s, dtype=torch.bfloat16) * 0.4)(H, Dh, Dm) * (H * Dh) ** (-0.5)), 'seg_len': seg}
    _A_in = _A_setup()

    def _B_setup():
        B, S, D = (1, 2048, 640)
        ks = 4
        return {'q': _w((lambda *s: torch.randn(*s, dtype=torch.bfloat16) * 0.05)(B, S, D)), 'k': _w((lambda *s: torch.randn(*s, dtype=torch.bfloat16) * 0.4)(B, S, D)), 'v': _w((lambda *s: torch.randn(*s, dtype=torch.bfloat16) * 0.4)(B, S, D)), 'shift_k': _w((lambda *s: torch.randn(*s, dtype=torch.bfloat16) * 0.4)(D, ks) * 0.5), 'ssm_k': _w((lambda *s: torch.randn(*s, dtype=torch.bfloat16) * 0.8)(D, S) * (1.0 / S ** 0.5)), 'ssm_D': _w((lambda *s: torch.randn(*s, dtype=torch.bfloat16) * 0.4)(D))}
    _B_in = _B_setup()
    return {'A_x': _A_in['x'], 'A_mem0': _A_in['mem0'], 'A_Wq': _A_in['Wq'], 'A_Wk': _A_in['Wk'], 'A_Wv': _A_in['Wv'], 'A_Wo': _A_in['Wo'], 'A_seg_len': _A_in['seg_len'], 'B_q': _B_in['q'], 'B_k': _B_in['k'], 'B_v': _B_in['v'], 'B_shift_k': _B_in['shift_k'], 'B_ssm_k': _B_in['ssm_k'], 'B_ssm_D': _B_in['ssm_D']}

def reference(A_x, A_mem0, A_Wq, A_Wk, A_Wv, A_Wo, A_seg_len, B_q, B_k, B_v, B_shift_k, B_ssm_k, B_ssm_D):

    def _A_ref(x, mem0, Wq, Wk, Wv, Wo, seg_len):
        B, S, Dm = x.shape
        H, Dh = (Wq.shape[1], Wq.shape[2])
        M = mem0.shape[1]
        scale = Dh ** (-0.5)
        n_seg = S // seg_len
        L = M + seg_len
        idx = torch.arange(L)
        mask = (idx[:, None] < M) | (idx[:, None] >= idx[None, :])
        mem = mem0
        outs = []
        for s in range(n_seg):
            xs = x[:, s * seg_len:(s + 1) * seg_len, :].clone()
            h = torch.concatenate([mem, xs], axis=1)
            q = torch.einsum('btd,dhe->bhte', h, Wq)
            k = torch.einsum('btd,dhe->bhte', h, Wk)
            v = torch.einsum('btd,dhe->bhte', h, Wv)
            scores = torch.einsum('bhqe,bhke->bhqk', q, k) * scale
            scores = torch.where(mask[None, None], scores, -1000000000.0)
            p = _softmax(scores, axis=-1)
            o = torch.einsum('bhqk,bhke->bhqe', p, v)
            o = torch.einsum('bhte,hed->btd', o, Wo)
            mem = o[:, :M, :].clone()
            outs.append(o[:, M:, :])
        return torch.concatenate(outs, axis=1)

    def _B_ref(q, k, v, shift_k, ssm_k, ssm_D):
        B, S, D = q.shape
        ks = shift_k.shape[-1]
        k_pad = _pad(k, ((0, 0), (ks - 1, 0), (0, 0)))
        k_shift = torch.zeros_like(k)
        for t in range(ks):
            k_shift = k_shift + k_pad[:, t:t + S, :] * shift_k[:, ks - 1 - t][None, None, :]
        kv = k_shift * v
        L = 2 * S
        kv_pad = _pad(kv, ((0, 0), (0, S), (0, 0)))
        kf_pad = _pad(ssm_k, ((0, 0), (0, S)))
        kv_f = (lambda x, axes=(-2, -1): torch.fft.rfft2(x.float(), dim=axes))(kv_pad[:, None, :, :], axes=(1, 2))
        kf_f = (lambda x, axes=(-2, -1): torch.fft.rfft2(x.float(), dim=axes))(kf_pad[:, None, :], axes=(1, 2))
        kf_f = (lambda x, *d: x.permute(*d))(kf_f, 1, 2, 0)
        y_f = kv_f * kf_f[None, :, :, :]
        y = (lambda x, s, axes=(-2, -1): torch.fft.irfft2(x, s=s, dim=axes).to(torch.bfloat16))(y_f, (1, L), axes=(1, 2))[:, 0, :S, :]
        y = y + kv * ssm_D[None, None, :]
        return q * y
    x = A_x
    x = x + _A_ref(_layernorm(x, axis=-1), A_mem0, A_Wq, A_Wk, A_Wv, A_Wo, A_seg_len)
    x = x + _B_ref(_layernorm(x, axis=-1), B_k, B_v, B_shift_k, B_ssm_k, B_ssm_D)
    x = x + _A_ref(_layernorm(x, axis=-1), A_mem0, A_Wq, A_Wk, A_Wv, A_Wo, A_seg_len)
    x = x + _B_ref(_layernorm(x, axis=-1), B_k, B_v, B_shift_k, B_ssm_k, B_ssm_D)
    return x
```

```python
class G:
    def __init__(self):
        self.lines=[]; self.n=0
    amf=False; last_mf=False
    def __call__(self, s):
        for l in s.strip("\n").split("\n"):
            mf=l.strip().startswith("v_mfma")
            if self.amf and mf and not self.last_mf: self.lines.append(".p2align 3")
            self.last_mf=mf
            self.lines.append(" "+l.strip())
    def label(self,l): self.lines.append(l+":")
    def raw(self,s): self.lines.append(s)
    def uniq(self,p):
        self.n+=1; return f"L_{p}_{self.n}"
    def text(self): return "\n".join(self.lines)+"\n"

def vr(a,n=1): return f"v{a}" if n==1 else f"v[{a}:{a+n-1}]"
def ar(a,n=1): return f"a{a}" if n==1 else f"a[{a}:{a+n-1}]"
def sr(a,n=1): return f"s{a}" if n==1 else f"s[{a}:{a+n-1}]"

def interleave(g, main, fill, per=1, start=0):
    fill=list(fill)
    for i,m in enumerate(main):
        g(m)
        if i>=start:
            for _ in range(per):
                if fill: g(fill.pop(0))
    for f in fill: g(f)

def srd(g, d, base, nbytes):
    g(f"s_mov_b32 s{d}, s{base}")
    g(f"s_and_b32 s{d+1}, s{base+1}, 0xffff")
    g(f"s_mov_b32 s{d+2}, {nbytes}")
    g(f"s_mov_b32 s{d+3}, 0x00020000")

def kdesc(name, vgpr=512, accum=256, sgpr=102):
    return f""".section .rodata,"a"
.p2align 6
.amdhsa_kernel {name}
  .amdhsa_next_free_vgpr {vgpr}
  .amdhsa_next_free_sgpr {sgpr}
  .amdhsa_accum_offset {accum}
  .amdhsa_group_segment_fixed_size 0
  .amdhsa_kernarg_size 128
  .amdhsa_user_sgpr_count 2
  .amdhsa_user_sgpr_kernarg_segment_ptr 1
  .amdhsa_system_sgpr_workgroup_id_x 1
  .amdhsa_float_denorm_mode_32 3
.end_amdhsa_kernel
.text
"""

def tl(g, on, base, sIdx, ev, vT=255):
    if not on: return
    g("s_memrealtime s[98:99]"); g(f"s_lshl_b32 s100, s{sIdx}, 5"); g(f"s_add_u32 s100, s100, {base+4*ev}"); g("s_waitcnt lgkmcnt(0)")
    g(f"v_mov_b32 v{vT}, s98"); g("s_mov_b64 exec, 1"); g(f"buffer_store_dword v{vT}, off, s[4:7], s100"); g("s_mov_b64 exec, -1")
```

```python
from asmlib import *
from layout import *
from chain import WS,WT,sX,sTK,sW,sTO,sPAR,timeout,dma_rows64,dma_voff,fl_voff,fl_dma,MF,q4,f32bits
import math
MF32="v_mfma_f32_32x32x16_bf16"
W2="s[12:15]"
TRACE=[False]
OPT={}
def trace(g, sItem, ev, vT):
    if not TRACE[0]: return
    g(f"s_memrealtime s[{84+2*ev}:{85+2*ev}]")
    g("s_waitcnt lgkmcnt(0)")
def tflush(g, sItem, v8):
    if not TRACE[0]: return
    g(f"s_lshl_b32 s96, s{sX}, 5"); g(f"s_add_u32 s96, s96, s{sTK}"); g("s_lshl_b32 s96, s96, 2"); g(f"s_add_u32 s96, s96, s{sW}")
    g("s_mul_i32 s96, s96, 80"); g(f"s_add_u32 s96, s96, s{sItem}"); g("s_lshl_b32 s96, s96, 5"); g(f"s_add_u32 s96, s96, {DBG2}")
    for i in range(6): g(f"v_mov_b32 v{v8+i}, s{84+2*i}")
    g("s_mov_b64 exec, 1")
    g(f"buffer_store_dwordx4 v[{v8}:{v8+3}], off, {WS}, s96")
    g(f"buffer_store_dwordx2 v[{v8+4}:{v8+5}], off, {WS}, s96 offset:16")
    g("s_mov_b64 exec, -1")

def tr32_addr(g, vD, vT):
    g(f"v_lshrrev_b32 v{vD}, 5, v0")
    g(f"v_lshlrev_b32 v{vD}, 8, v{vD}")
    g(f"v_and_b32 v{vT}, 12, v0")
    g(f"v_lshl_add_u32 v{vD}, v{vT}, 4, v{vD}")
    g(f"v_and_b32 v{vT}, 3, v0")
    g(f"v_lshl_add_u32 v{vD}, v{vT}, 3, v{vD}")
    g(f"v_lshrrev_b32 v{vT}, 1, v0")
    g(f"v_xor_b32 v{vT}, v{vT}, v0")
    g(f"v_and_b32 v{vT}, 16, v{vT}")
    g(f"v_lshl_add_u32 v{vD}, v{vT}, 1, v{vD}")

def load_w32(g, nst, row_stride, sA, sLB, vOff, vA, vT, sRot, phase=None):
    if phase!=1:
        fl_voff(g, vOff, vT, row_stride, 256)
        g(f"s_lshl_b32 s{sLB}, s{sW}, 13")
        g(f"s_mul_i32 s3, s{sW}, {32*row_stride}"); g(f"s_add_u32 s{sA}, s{sA}, s3")
        for B in range(nst):
            g(f"s_mul_i32 s{sTO}, s{sRot+B}, {128*row_stride}"); g(f"s_add_u32 s{sTO}, s{sTO}, s{sA}")
            fl_dma(g, vOff, sTO, 8, 4*row_stride, sLB, B*32768, two=True)
    if phase==0: return
    g(f"v_lshrrev_b32 v{vA}, 3, v0"); g(f"v_and_b32 v{vA}, 4, v{vA}"); g(f"v_bfe_u32 v{vT}, v0, 2, 2"); g(f"v_or_b32 v{vA}, v{vA}, v{vT}")
    g(f"v_bfe_u32 v{vT}, v0, 4, 1"); g(f"v_xor_b32 v{vT}, v{vT}, v{vA}"); g(f"s_lshl_b32 s3, s{sW}, 1"); g(f"v_xor_b32 v{vT}, s3, v{vT}")
    g(f"v_lshlrev_b32 v{vA}, 8, v{vA}"); g(f"v_lshl_add_u32 v{vA}, v{vT}, 5, v{vA}")
    g(f"v_and_b32 v{vT}, 3, v0"); g(f"v_lshl_add_u32 v{vA}, v{vT}, 3, v{vA}")
    for B in range(nst):
        g(f"s_waitcnt vmcnt({8*(nst-1-B)})"); g("s_barrier")
        for f in range(4):
            for gp in range(2):
                r=32*B+8*f+4*gp
                g(f"ds_read_b64_tr_b16 a[{r}:{r+1}], v{vA} offset:{f*8192+gp*2048}")
                g(f"ds_read_b64_tr_b16 a[{r+2}:{r+3}], v{vA} offset:{f*8192+gp*2048+4096}")
        g(f"v_add_u32 v{vA}, 0x8000, v{vA}")
    g("s_waitcnt lgkmcnt(0)")
    g("s_barrier")
    tl(g,TRACE[0],DBG3+16384,101,1)

def rot_table(g, sRot, sSrc, nst):
    for B in range(nst):
        g(f"s_add_u32 s{sRot+B}, s{sSrc}, {B}")
        g(f"s_sub_u32 s3, s{sRot+B}, {nst}")
        g(f"s_cmp_ge_u32 s{sRot+B}, {nst}"); g(f"s_cselect_b32 s{sRot+B}, s3, s{sRot+B}")

def gemm_stream(g, nst, Rd, Mf, staged, hooks={}, extra=(), every=3):
    K=8*nst; LA=4; extra=list(extra); n=[0]
    def Wt(B):
        if staged:
            g(f"s_waitcnt vmcnt({2*(nst-1-B)+n[0]})"); g("s_barrier")
    Wt(0)
    for k in range(LA): g(Rd(k))
    for k in range(K):
        if k in hooks: hooks[k]()
        g(f"s_waitcnt lgkmcnt({min(LA,K-k)-1})")
        if OPT.get("nomf")==2 and k>0:
            import re
            m=re.match(r"\S+ v\[(\d+):\d+\], (\S+), (\S+), .*",Mf(k)); c=int(m.group(1))+8*(k&1)
            g(f"{MF} {q4('v',c)}, {m.group(2)}, {m.group(3)}, {q4('v',c)}"); g(f"{MF} {q4('v',c+4)}, {m.group(3)}, {m.group(2)}, {q4('v',c+4)}")
        else: g("s_nop 6" if (OPT.get("nomf") and k>0) else Mf(k))
        if OPT.get("slow") and not staged: g(f"s_nop {OPT['slow']}")
        r=k+LA
        if r<K:
            if r%8==0: Wt(r//8)
            g(Rd(r))
        if extra and k%every==0:
            g(extra.pop(0)); n[0]+=1
    assert not extra

L_FLAG=163840-64

def flag_store(g, vT, sAddr, sVal, fl=" sc1"):
    g(f"v_mov_b32 v{vT}, s{sVal}")
    g("s_mov_b64 exec, 1")
    g(f"buffer_store_dword v{vT}, off, {WS}, s{sAddr}{fl}")
    g("s_mov_b64 exec, -1")

sSlow=80
def lflag_store(g, vT, sAddr, sVal):
    l1=g.uniq("lf"); l2=g.uniq("lf")
    g(f"s_cmp_lg_u32 s{sSlow}, 0"); g(f"s_cbranch_scc1 {l1}")
    flag_store(g,vT,sAddr,sVal,""); g(f"s_branch {l2}")
    g.label(l1); flag_store(g,vT,sAddr,sVal," sc1"); g.label(l2)

def group_local(g, v):
    import pre
    pre.dbsrd(g)
    lp=g.uniq("gl"); ld=g.uniq("gld")
    g(f"v_lshlrev_b32 v{v}, 5, v0"); g(f"s_mov_b32 s{sTO}, 0")
    g.label(lp)
    g(f"buffer_load_dword v{v+1}, v{v}, {pre.DB}, 0 offen sc1")
    g("s_waitcnt vmcnt(0)")
    g(f"v_readlane_b32 s3, v{v+1}, s{sX}"); g(f"s_mov_b32 s{sSlow}, {1 if OPT.get('force_slow') else 0}"); g("s_nop 2")
    g("s_cmp_ge_u32 s3, 32"); g(f"s_cbranch_scc1 {ld}")
    g(f"s_mov_b32 s{sSlow}, 0")
    for i in range(8):
        g(f"v_readlane_b32 s3, v{v+1}, {i}"); g("s_nop 3"); g(f"s_add_u32 s{sSlow}, s{sSlow}, s3")
    g(f"s_cmp_ge_u32 s{sSlow}, 256"); g(f"s_cbranch_scc1 {ld}")
    g("s_sleep 4")
    timeout(g, lp)
    g.label(ld)

sN0,sN1=78,79
def near_setup(g, v, have=False):
    import pre
    if not have: pre.wait_bar(g,*pre.BA,v,par=True)
    g(f"s_xor_b32 s{sN0}, s{sPAR}, {((PROBE>>21)^OPT.get('cfar',0))&1}"); g(f"s_lshl_b32 s{sN0}, s{sN0}, 13"); g(f"s_xor_b32 s{sN1}, s{sN0}, 8192")
def blk(g, sD, sSeg, sBase, far, sN=None):
    g(f"s_lshl_b32 s{sD}, s{sSeg}, 19"); g(f"s_add_u32 s{sD}, s{sD}, s{sBase}")
    if sN is not None: g(f"s_xor_b32 s{sD}, s{sD}, s{sN}")
    elif far: g(f"s_xor_b32 s{sD}, s{sD}, 8192")
def hblk(g, sD, sH):
    g(f"s_and_b32 s100, s{sH}, 1"); g("s_lshl_b32 s100, s100, 13"); g(f"s_lshl_b32 s{sD}, s{sH}, 14"); g(f"s_add_u32 s{sD}, s{sD}, s100")
def spread_s(g, s):
    g(f"s_lshr_b32 s100, s{s}, 13"); g("s_lshl_b32 s100, s100, 13"); g(f"s_add_u32 s{s}, s{s}, s100")
def spread_v(g, v, t):
    g(f"v_and_b32 v{t}, 0xffffe000, v{v}"); g(f"v_add_u32 v{v}, v{v}, v{t}")

def poll_ge(g, vD, vAddr, sOff, need, mask=None, sleep=2):
    lp=g.uniq("pl"); ld=g.uniq("pld")
    g(f"s_mov_b32 s{sTO}, 0")
    if mask: g(f"s_mov_b64 exec, {mask}")
    g.label(lp)
    g(f"buffer_load_dword v{vD}, v{vAddr}, {WS}, {sOff} offen sc1")
    g("s_waitcnt vmcnt(0)")
    g(f"v_cmp_gt_u32 vcc, {need}, v{vD}")
    g(f"s_cbranch_vccz {ld}")
    if sleep: g(f"s_sleep {sleep}")
    timeout(g, lp)
    g.label(ld)
    if mask: g("s_mov_b64 exec, -1")

def signal(g, vOne, vAddr, sOff, mask, off=0):
    g(f"v_mov_b32 v{vOne}, 1")
    g("s_mov_b32 exec_hi, 0" if mask=="lo32" else f"s_mov_b64 exec, {mask}")
    g(f"buffer_atomic_add v{vOne}, v{vAddr}, {WS}, s{sOff} offen" + (f" offset:{off}" if off else ""))
    g("s_mov_b64 exec, -1")

def wait_cnt(g, vD, vAddr, sOff, need, mask="1", sleep=1, v2=None):
    lp=g.uniq("wc"); ld=g.uniq("wcd")
    g(f"s_mov_b32 s{sTO}, 0")
    g(f"s_mov_b64 exec, {mask}")
    poll=lambda v: (g(f"v_mov_b32 v{v}, 0"), g(f"buffer_atomic_add v{v}, v{vAddr}, {WS}, {sOff} offen sc0"))
    if v2 is not None and OPT.get("pipe",1):
        poll(vD); g(f"s_sleep {OPT.get('pipe_gap',5)}")
        g.label(lp)
        for a,c in ((v2,vD),(vD,v2)):
            poll(a)
            g("s_waitcnt vmcnt(1)")
            g(f"v_cmp_gt_u32 vcc, {need}, v{c}")
            g(f"s_cbranch_vccz {ld}")
    else:
        g.label(lp)
        poll(vD)
        g("s_waitcnt vmcnt(0)")
        g(f"v_cmp_gt_u32 vcc, {need}, v{vD}")
        g(f"s_cbranch_vccz {ld}")
        if sleep: g(f"s_sleep {sleep}")
    timeout(g, lp)
    g.label(ld)
    g("s_mov_b64 exec, -1")

def qkv(g, isv):
    N="qkv"+("v" if isv else "q")
    sH,sTy,sI,sA,sB,sLB,sOut,sFl,sSeg,sP1,sFx,sRot=52,53,54,55,56,57,58,59,60,61,62,64
    sFl1,sHf=63,82
    vOff,vA,vT,vSt,vFa,vPl,vLf=1,2,3,4,5,6,7
    vAd=8
    vF=32
    vC=64
    vPk=80
    g.label(f"L_{N}")
    g(f"s_mul_i32 s{sLB}, s{sW}, 40960")
    g(f"s_mul_i32 s{sFx}, s{sH}, 3"); g(f"s_add_u32 s{sFx}, s{sFx}, s{sTy}")
    g(f"s_mul_i32 s3, s{sFx}, 13108"); g("s_lshr_b32 s3, s3, 16"); g("s_mul_i32 s3, s3, 5"); g(f"s_sub_u32 s{sA}, s{sFx}, s3")
    rot_table(g, sRot, sA, 5)
    g(f"s_lshl_b32 s{sA}, s{sH}, 8")
    import pre
    load_w32(g, 5, 8192, sA, sLB, 4, vA, vT, sRot, 0)
    pre.dbsrd(g)
    g(f"buffer_load_dword v30, off, {pre.DB}, 0 offset:{pre.BA[0]+128} sc1")
    load_w32(g, 5, 8192, sA, sLB, 4, vA, vT, sRot, 1)
    lA=g.uniq("qa")
    g("v_cmp_eq_u32 vcc, 0, v30"); g(f"s_cbranch_vccz {lA}")
    pre.wait_bar(g,*pre.BA,1)
    g.label(lA)
    for B in range(5): g(f"s_lshl_b32 s{sRot+B}, s{sRot+B}, 8")
    vOff2=24
    def vsetup():
        g(f"v_lshrrev_b32 v{vOff}, 4, v0"); g("s_mov_b32 s3, 1280"); g(f"v_mul_lo_u32 v{vOff}, v{vOff}, s3")
        g(f"v_and_b32 v{vT}, 15, v0"); g(f"v_lshl_add_u32 v{vOff}, v{vT}, 4, v{vOff}")
        g(f"v_add_u32 v{vPl}, {4*1280}, v{vOff}")
        g(f"v_mov_b32 v{vOff2}, v{vPl}")
        g(f"v_and_b32 v{vA}, 31, v0"); g(f"v_lshlrev_b32 v{vA}, 8, v{vA}")
        g(f"v_lshrrev_b32 v{vSt}, 5, v0"); g(f"v_xor_b32 v{vSt}, v{vSt}, v{vT}")
        for j in range(8):
            g(f"v_xor_b32 v{vAd+j}, {2*j}, v{vSt}")
            g(f"v_lshl_add_u32 v{vAd+j}, v{vAd+j}, 4, v{vA}")
            g(f"v_add_u32 v{vAd+8+j}, 40960, v{vAd+j}")
        g(f"v_lshrrev_b32 v{vSt}, 5, v0"); g(f"v_lshlrev_b32 v{vSt}, 8, v{vSt}")
        g(f"v_lshl_add_u32 v{vSt}, v{vT}, 4, v{vSt}")
        g(f"v_and_b32 v{vA}, 16, v0"); g(f"v_lshl_add_u32 v{vSt}, v{vA}, {6 if isv else 8}, v{vSt}")
        g(f"s_lshl_b32 s3, s{sW}, {11 if isv else 10}"); g(f"v_add_u32 v{vSt}, s3, v{vSt}")
        g(f"v_mul_u32_u24 v{vFa}, {CXNS}, v0"); g(f"v_mov_b32 v{vLf}, {L_FLAG}")
    vsetup()
    g(f"s_lshl_b32 s75, s{sFx}, 2"); g(f"s_add_u32 s75, s75, s{sW}")
    hblk(g,sOut,sH); g(f"s_add_u32 s{sOut}, s{sOut}, {VO if isv else KQ}")
    g(f"s_cmp_eq_u32 s{sTy}, 0"); g(f"s_cselect_b32 s{sHf}, 8192, 0")
    g(f"s_lshl_b32 s{sFl}, s{sH}, 8"); g(f"s_add_u32 s{sFl}, s{sFl}, {CQKV}")
    g(f"s_lshl_b32 s{sB}, s{sW}, 11")
    g(f"s_mov_b32 s{sI}, 0")
    g(f"s_mov_b32 s{sP1}, 0")
    def dma(layer, sS, defer=False, buf=None):
        buf=layer if buf is None else buf
        g(f"s_mul_i32 s{sA}, s{sS}, 40960"); g(f"s_mul_i32 s3, s{sW}, {8*1280}"); g(f"s_add_u32 s{sA}, s{sA}, s3"); g(f"s_add_u32 s{sA}, s{sA}, {XN+layer*64*40960}")
        L=[f"s_add_u32 m0, s{sB}, {buf*40960+B*8192+1024*e}\ns_add_u32 s3, s{sA}, s{sRot+B}\nbuffer_load_dwordx4 v{vOff2 if e else vOff}, {WS}, s3 offen sc1 lds" for B in range(5) for e in range(2)]
        if defer: return L
        for x in L: g(x)
    def compute(layer, staged, hooks={}, extra=(), buf=None):
        buf=layer if buf is None else buf
        Rd=lambda k: f"ds_read_b128 {q4('v',vF+4*(k%8))}, v{vAd+8*buf+k%8} offset:{(k//8)*8192}"
        def Mf(k):
            x=q4('v',vF+4*(k%8)); w=q4('a',4*k)
            return f"{MF32} v[{vC}:{vC+15}], {x if isv else w}, {w if isv else x}, {'0' if k==0 else f'v[{vC}:{vC+15}]'}"
        gemm_stream(g,5,Rd,Mf,staged,hooks,extra,3)
        blk(g,3,sSeg,sOut,0,sHf)
        if layer: g(f"s_add_u32 s3, s3, {LST}")
        g("s_nop 8")
        P=vPk+8*buf
        for c in range(2):
            for h in range(2):
                a=c+2*h
                g(f"v_cvt_pk_bf16_f32 v{P+4*c+2*h}, v{vC+4*a}, v{vC+4*a+1}")
                g(f"v_cvt_pk_bf16_f32 v{P+4*c+2*h+1}, v{vC+4*a+2}, v{vC+4*a+3}")
            g(f"buffer_store_dwordx4 {q4('v',P+4*c)}, v{vSt}, {WS}, s3 offen offset:{512*c} sc1")
    def pend_flag():
        l=g.uniq("pf")
        g(f"s_cmp_eq_u32 s{sP1}, 0"); g(f"s_cbranch_scc1 {l}")
        g(f"s_lshl_b32 s3, s{sP1}, 2"); g(f"s_add_u32 s3, s3, s{sFl}"); g("s_sub_u32 s3, s3, 4")
        signal(g, vT, vFa, 3, "1")
        g(f"s_mov_b32 s{sP1}, 0")
        g.label(l)
    def sig2():
        g(f"s_lshl_b32 s3, s{sI}, 2"); g(f"s_add_u32 s3, s3, s{sFl1}")
        signal(g, vT, vFa, 3, "1")
    assert AHEAD%2==0
    g(f"s_mov_b32 s{pre.sCh}, s75")
    dma(0, sI)
    g("s_waitcnt vmcnt(0)")
    g.label(f"L_{N}_pre")
    for bf in range(2):
        g("s_barrier")
        g(f"s_mov_b32 s{sSeg}, s{sI}"); g(f"s_add_u32 s{sI}, s{sI}, 1")
        def h_p():
            g(f"s_waitcnt vmcnt(7)"); pend_flag()
        compute(0, False, {20:h_p}, extra=dma(0, sI, True, 1-bf), buf=bf)
        g(f"s_mov_b32 s{sP1}, s{sI}")
        if bf==0:
            l1=g.uniq("f1")
            g(f"s_cmp_lg_u32 s{sI}, 1"); g(f"s_cbranch_scc1 {l1}")
            g("s_waitcnt vmcnt(0)"); pend_flag()
            tl(g,TRACE[0],DBG3+16384,101,2)
            pre.conv_pref(g,0)
            l2=g.uniq("f2"); g(f"s_branch {l2}")
            g.label(l1)
        g("s_waitcnt vmcnt(2)")
        if bf==0: g.label(l2)
    lcv=g.uniq("cv")
    g(f"s_cmp_lg_u32 s{sI}, {OPT.get('conv_at',4)}"); g(f"s_cbranch_scc1 {lcv}")
    g("s_waitcnt vmcnt(0)"); pend_flag()
    pre.qkv_conv(g,0); vsetup()
    g.label(lcv)
    g(f"s_cmp_lt_u32 s{sI}, {AHEAD}"); g(f"s_cbranch_scc1 L_{N}_pre")
    g("s_waitcnt vmcnt(0)"); pend_flag()
    pre.qkv_conv(g,1); vsetup()
    pre.wait_wg(g,*pre.BC1,25)
    near_setup(g,25)
    g(f"s_cmp_lt_u32 s{sFx}, {56 if OPT.get('place',1)==1 else 96}"); g(f"s_cselect_b32 s3, s{sN1}, s{sN0}")
    g(f"s_lshl_b32 s{sFx}, s{sFx}, 8"); spread_s(g,sFx); g(f"s_add_u32 s{sFx}, s{sFx}, s3"); g(f"s_add_u32 s{sFx}, s{sFx}, {CXN}")
    g(f"s_add_u32 s{sFl1}, s{sFl}, s{sN0}"); g(f"s_add_u32 s{sFl1}, s{sFl1}, {CQKV1-CQKV-4*AHEAD}")
    g.label(f"L_{N}_block")
    lw=g.uniq("w"); lw2=g.uniq("w")
    g(f"s_lshl_b32 s{sA}, s{sI}, 2"); g(f"s_add_u32 s{sA}, s{sA}, s{sFx}"); g(f"s_sub_u32 s{sA}, s{sA}, {4*AHEAD}")
    g(f"s_cmp_lg_u32 s{sW}, 0"); g(f"s_cselect_b32 s3, {OOB}, s{sA}")
    g(f"v_mov_b32 v{vPl}, 8"); g("s_mov_b64 exec, 15"); g(f"v_mov_b32 v{vPl}, 0")
    g(f"buffer_atomic_add v{vPl}, v{vFa}, {WS}, s3 offen sc0")
    g("s_mov_b64 exec, -1")
    g("s_waitcnt vmcnt(0)")
    pend_flag()
    g(f"s_cmp_lg_u32 s{sW}, 0"); g(f"s_cbranch_scc1 {lw}")
    g(f"v_cmp_gt_u32 vcc, 8, v{vPl}"); g(f"s_cbranch_vccz {lw}")
    wait_cnt(g, 28, vFa, f"s{sA}", "8", mask="15", v2=29)
    g.label(lw)
    g("s_barrier")
    g.label(f"L_{N}_loop")
    lc=g.uniq("c2")
    g(f"s_cmp_lg_u32 s{sI}, {pre.ROW2//32}"); g(f"s_cbranch_scc1 {lc}")
    pre.wait_wg(g,*pre.BC2,25)
    g.label(lc)
    trace(g,sI,0,vT)
    g(f"s_sub_u32 s{sSeg}, s{sI}, {AHEAD}")
    dma(1, sSeg)
    g(f"s_min_u32 s{sTO}, s{sI}, 63")
    compute(1, True, {0:lambda: trace(g,sI,4,vT)}, extra=dma(0, sTO, True))
    trace(g,sI,1,vT)
    l_no0=g.uniq("n0")
    g(f"s_cmp_ge_u32 s{sI}, 64"); g(f"s_cbranch_scc1 {l_no0}")
    g("s_waitcnt vmcnt(2)")
    g("s_barrier")
    g(f"s_lshl_b32 s{sA}, s{sI}, 2"); g(f"s_add_u32 s{sA}, s{sA}, s{sFx}"); g(f"s_sub_u32 s{sA}, s{sA}, {4*AHEAD-4}")
    g(f"s_cmp_lg_u32 s{sW}, 0"); g(f"s_cselect_b32 s{sA}, {OOB}, s{sA}")
    g(f"v_mov_b32 v{vPl}, 8")
    g(f"s_mov_b32 s{sSeg}, s{sI}")
    def h_poll():
        g("s_mov_b64 exec, 15"); g(f"v_mov_b32 v{vPl}, 0")
        g(f"buffer_atomic_add v{vPl}, v{vFa}, {WS}, s{sA} offen sc0")
        g("s_mov_b64 exec, -1")
    def h_sig():
        g("s_waitcnt vmcnt(0)")
        sig2(); pend_flag()
        trace(g,sI,2,vT)
    compute(0, False, {OPT.get('qkv_sig',18):h_sig, OPT.get('qkv_poll',26):h_poll})
    trace(g,sI,3,vT)
    tflush(g,sI,100)
    g(f"s_add_u32 s{sI}, s{sI}, 1"); g(f"s_mov_b32 s{sP1}, s{sI}")
    lw=g.uniq("w")
    g(f"s_cmp_lg_u32 s{sW}, 0"); g(f"s_cbranch_scc1 {lw}")
    g(f"s_waitcnt vmcnt({2+(2 if TRACE[0] else 0)})")
    g(f"v_cmp_gt_u32 vcc, 8, v{vPl}"); g("s_nop 1"); g(f"v_mov_b32 v{vT}, vcc_lo")
    g(f"ds_write_b32 v{vLf}, v{vT}")
    g("s_waitcnt lgkmcnt(0)")
    g.label(lw)
    g("s_barrier")
    g(f"ds_read_b32 v{vT}, v{vLf}")
    g("s_waitcnt lgkmcnt(0)")
    g(f"v_readfirstlane_b32 s3, v{vT}")
    g("s_cmp_eq_u32 s3, 0"); g(f"s_cbranch_scc1 L_{N}_loop")
    g(f"s_branch L_{N}_block")
    g.label(l_no0)
    g("s_waitcnt vmcnt(0)")
    sig2()
    tflush(g,sI,100)
    g(f"s_add_u32 s{sI}, s{sI}, 1")
    g(f"s_cmp_lt_u32 s{sI}, {64+AHEAD}"); g(f"s_cbranch_scc1 L_{N}_block")
    g("s_endpgm")

def xsum4(g, v, t, op):
    g(f"v_mov_b32 v{t}, v{v}"); g("s_nop 1")
    g(f"v_permlane16_swap_b32 v{v}, v{t}")
    g(f"{op} v{v}, v{v}, v{t}")
    g(f"v_mov_b32 v{t}, v{v}"); g("s_nop 1")
    g(f"v_permlane32_swap_b32 v{v}, v{t}")
    g(f"{op} v{v}, v{v}, v{t}")

def rnd_pairs(g, regs, tmp):
    for i in range(0,len(regs),2):
        a,b=regs[i],regs[i+1]
        g(f"v_cvt_pk_bf16_f32 v{tmp}, v{a}, v{b}")
        g(f"v_lshlrev_b32 v{a}, 16, v{tmp}")
        g(f"v_and_b32 v{b}, 0xffff0000, v{tmp}")

def warm(g):
    N="wm"
    sH,sT,sA,sNeed,sFW,sSeg,sB=52,53,54,55,56,57,58
    vO,vT,vFq,vZ,vC,vN,vK=1,2,3,4,5,6,7
    g.label(f"L_{N}")
    group_local(g,1)
    g(f"s_lshl_b32 s{sH}, s{sX}, 3"); g(f"s_sub_u32 s3, s{sTK}, 30"); g("s_lshl_b32 s3, s3, 2"); g(f"s_add_u32 s{sH}, s{sH}, s3"); g(f"s_add_u32 s{sH}, s{sH}, s{sW}")
    g(f"v_lshlrev_b32 v{vO}, 7, v0")
    g(f"s_lshl_b32 s3, s{sH}, 8"); g(f"s_add_u32 s3, s3, {CQKV}")
    g(f"v_mov_b32 v{vFq}, s3")
    g(f"s_lshl_b32 s{sFW}, s{sH}, 7"); g(f"s_add_u32 s{sFW}, s{sFW}, {FLW}")
    g(f"s_mov_b32 s{sT}, 0"); g(f"v_mov_b32 v{vZ}, 0"); g(f"v_mov_b32 v{vN}, 0")
    WQ=OPT.get("warmq",0)
    NT=3 if WQ else 2
    def touch(lam, tys=((1,2,0) if WQ else (1,2)), back=0):
        g(f"s_sub_u32 s{sSeg}, s{sT}, {LAG*lam+back}")
        hblk(g,3,sH); g(f"s_add_u32 s3, s3, {KQ+lam*LST}"); blk(g,sB,sSeg,3,0)
        g(f"s_cmp_lt_u32 s{sSeg}, 64"); g(f"s_cselect_b32 s{sB}, s{sB}, {OOB}")
        for ty in tys:
            g([f"s_xor_b32 s3, s{sB}, 8192", f"s_mov_b32 s3, s{sB}", f"s_add_u32 s3, s{sB}, {VO-KQ}"][ty])
            g(f"buffer_load_dword v{8+3*lam+ty}, v{vO}, {WS}, s3 offen sc1")
    def touchq():
        pass
    def flag(lam):
        g(f"s_sub_i32 s{sNeed}, s{sT}, {LAG*lam-1}"); g(f"s_max_i32 s{sNeed}, s{sNeed}, 0")
        g(f"s_add_u32 s3, s{sFW}, {4*lam}")
        lflag_store(g, vT, 3, sNeed)
    g.label(f"L_{N}_loop")
    ln=g.uniq("wn")
    g(f"s_cmp_lg_u32 s{sT}, {LAG}"); g(f"s_cbranch_scc1 {ln}")
    near_setup(g,20)
    g(f"s_lshl_b32 s3, s{sH}, 8"); g(f"s_add_u32 s3, s3, s{sN0}"); g(f"s_add_u32 s3, s3, {CQKV1-4*LAG}"); g(f"v_writelane_b32 v{vFq}, s3, 1")
    g.label(ln)
    g(f"s_sub_i32 s{sNeed}, s{sT}, {OPT.get('warm_ahead',2)}"); g(f"s_max_i32 s{sNeed}, s{sNeed}, 0"); g(f"s_min_u32 s{sNeed}, s{sNeed}, 64")
    g(f"s_add_u32 s{sA}, s{sFW}, 8")
    poll_ge(g, vT, vZ, f"s{sA}", f"s{sNeed}", mask="1", sleep=2)
    if OPT.get("warm_dly"): g(f"s_sleep {OPT['warm_dly']}")
    g(f"s_cmp_lt_u32 s{sT}, 64"); g("s_cselect_b32 s3, 12, 0"); g(f"v_writelane_b32 v{vN}, s3, 0")
    g(f"s_cmp_ge_u32 s{sT}, {LAG}"); g("s_cselect_b32 s3, 12, 0"); g(f"v_writelane_b32 v{vN}, s3, 1")
    g(f"s_lshl_b32 s{sA}, s{sT}, 2")
    lp=g.uniq("w0"); ld=g.uniq("w0d"); ll=g.uniq("wl"); le=g.uniq("we")
    g(f"s_mov_b32 s{sTO}, 0")
    g.label(lp)
    g(f"v_mov_b32 v{vC}, 0"); g("s_mov_b64 exec, 3")
    g(f"buffer_atomic_add v{vC}, v{vFq}, {WS}, s{sA} offen sc0")
    g("s_mov_b64 exec, -1"); g("s_waitcnt vmcnt(0)")
    g(f"v_cmp_gt_u32 vcc, v{vN}, v{vC}")
    g("s_bitcmp0_b32 vcc_lo, 0"); g(f"s_cbranch_scc1 {ld}")
    g("s_sleep 2")
    timeout(g, lp)
    g.label(ld)
    trace(g,sT,0,vT)
    g(f"s_cbranch_vccnz {ll}")
    trace(g,sT,2,vT)
    touch(1); touch(0)
    g(f"s_waitcnt vmcnt({NT})"); flag(1)
    g("s_waitcnt vmcnt(1)"); flag(0)
    touchq()
    g(f"s_branch {le}")
    g.label(ll)
    touch(0); touchq()
    g(f"v_mov_b32 v{vC}, 0"); g("s_mov_b64 exec, 3")
    g(f"buffer_atomic_add v{vC}, v{vFq}, {WS}, s{sA} offen sc0")
    g("s_mov_b64 exec, -1")
    g("s_waitcnt vmcnt(1)"); flag(0)
    g("s_waitcnt vmcnt(0)")
    g(f"v_cmp_gt_u32 vcc, v{vN}, v{vC}")
    l2=g.uniq("w2")
    g(f"s_cbranch_vccz {l2}")
    wait_cnt(g, vC, vFq, f"s{sA}", f"v{vN}", mask="3", sleep=OPT.get("warm_sleep",1))
    g.label(l2)
    trace(g,sT,2,vT)
    touch(1)
    g("s_waitcnt vmcnt(0)"); flag(1)
    g.label(le)
    trace(g,sT,1,vT); trace(g,sT,3,vT)
    tflush(g,sT,20)
    g(f"s_add_u32 s{sT}, s{sT}, 1")
    g(f"s_cmp_lt_u32 s{sT}, {NSTEP}"); g(f"s_cbranch_scc1 L_{N}_loop")
    g("s_endpgm")

def attn(g):
    N="att"
    sH,sLam,sS,sA,sB,sIn,sEXb,sOut,sFO,sFW,sSc,sL2e,sNeed,sEX=52,53,54,55,56,57,58,59,60,61,62,63,64,65
    vL16,vL16b,vT,vT2,vZ,vL16c,vSt=1,2,3,4,5,6,7
    vBm,vBd=8,12
    vKM,vVM,vS,vO=32,48,64,88
    vCan,vSig,vWf=30,31,29
    vPm,vP=[152,160],[168,172]
    vM1,vL1,vMx,vTx,vF=[16,17],[18,19],[20,21],[22,23],[24,26]
    vOp=176
    aQ,aK,aV=0,32,64
    g.label(f"L_{N}")
    group_local(g,1)
    g(f"s_lshl_b32 s{sH}, s{sX}, 3"); g(f"s_sub_u32 s3, s{sTK}, 16"); g("s_lshl_b32 s3, s3, 1"); g(f"s_add_u32 s{sH}, s{sH}, s3")
    g(f"s_lshr_b32 s3, s{sW}, 1"); g(f"s_add_u32 s{sH}, s{sH}, s3")
    g(f"s_and_b32 s{sLam}, s{sW}, 1")
    g(f"v_lshlrev_b32 v{vL16}, 4, v0"); g(f"v_add_u32 v{vL16b}, 4096, v{vL16}"); g(f"v_add_u32 v{vL16c}, 8192, v{vL16}"); g(f"v_mov_b32 v{vZ}, 0")
    g(f"s_lshl_b32 s{sFW}, s{sH}, 7"); g(f"s_lshl_b32 s3, s{sLam}, 2"); g(f"s_add_u32 s{sFW}, s{sFW}, s3"); g(f"s_add_u32 s{sFW}, s{sFW}, {FLW}")
    g(f"s_lshl_b32 s{sIn}, s{sLam}, 11"); g(f"s_add_u32 s{sIn}, s{sIn}, s{sH}"); hblk(g,sIn,sIn); g(f"s_add_u32 s{sIn}, s{sIn}, {KQ}")
    g(f"s_mul_i32 s{sEXb}, s{sH}, 12288"); g(f"s_add_u32 s{sEXb}, s{sEXb}, {EX}")
    g(f"s_add_u32 s{sOut}, s{sIn}, {VO-KQ}")
    near_setup(g,vBm)
    g(f"s_lshl_b32 s{sFO}, s{sLam}, 8"); g(f"s_add_u32 s{sFO}, s{sFO}, s{sN0 if OPT.get('place',1)==2 else sN1}"); g(f"s_add_u32 s{sFO}, s{sFO}, {CO}")
    g(f"s_lshr_b32 s3, s{sH}, 2"); g(f"s_mul_i32 s3, s3, {5*512}"); g(f"v_lshl_add_u32 v{vSig}, v0, 9, s3"); spread_v(g,vSig,vT)
    g(f"v_lshrrev_b32 v{vT}, 4, v0"); g(f"v_lshlrev_b32 v{vSt}, 9, v{vT}"); g(f"v_and_b32 v{vT2}, 15, v0"); g(f"v_lshl_add_u32 v{vSt}, v{vT2}, 4, v{vSt}")
    g(f"v_mov_b32 v{vO}, 0xff61b1e6")
    g(f"v_lshlrev_b32 v{vT}, 2, v{vT}")
    for b in range(4):
        g(f"v_add_u32 v{vO+1}, {b}, v{vT}")
        g(f"v_cmp_gt_u32 vcc, v{vO+1}, v{vT2}"); g("s_nop 1")
        g(f"v_cndmask_b32 v{vBd+b}, 0, v{vO}, vcc")
    g(f"v_lshrrev_b32 v{vT}, 5, v0"); g(f"v_cmp_ne_u32 vcc, s{sLam}, v{vT}"); g("s_nop 1")
    for b in range(4): g(f"v_cndmask_b32 v{vBm+b}, 0, v{vO}, vcc")
    for i in range(24): g(f"v_mov_b32 v{152+i}, 0")
    g(f"s_mov_b32 s{sSc}, {hex(f32bits(128**-0.5))}"); g(f"s_mov_b32 s{sL2e}, {hex(f32bits(math.log2(math.e)))}")
    g(f"s_mov_b32 s{sS}, 0")
    g(f"v_lshlrev_b32 v{vCan}, 10, v0"); g(f"v_add_u32 v{vCan}, 4096, v{vCan}")
    g(f"s_mul_i32 s{sNeed}, s{sLam}, {LAG}"); g(f"s_add_u32 s{sA}, s{sFW}, 4")
    poll_ge(g, vT, vZ, f"s{sA}", f"s{sNeed}", mask="1", sleep=8)
    def fetch():
        blk(g,sB,sS,sIn,0)
        g(f"s_cmp_lt_u32 s{sS}, 64"); g(f"s_cselect_b32 s{sB}, s{sB}, {OOB}")
        for ty in (0,1,2):
            g([f"s_xor_b32 s3, s{sB}, 8192", f"s_mov_b32 s3, s{sB}", f"s_add_u32 s3, s{sB}, {VO-KQ}"][ty])
            for i in range(8):
                g(f"buffer_load_dwordx4 {q4('a',32*ty+4*i)}, v{vL16 if i<4 else vL16b}, {WS}, s3 offen offset:{1024*(i%4)} sc1{' nt' if ty<OPT.get('att_nt',0) else ''}")
    poll_ge(g, vT, vZ, f"s{sFW}", "1", mask="1", sleep=4)
    fetch()
    g.label(f"L_{N}_loop")
    trace(g,sS,0,vT2)
    g(f"s_mul_i32 s{sNeed}, s{sLam}, {LAG}"); g(f"s_add_u32 s{sNeed}, s{sNeed}, s{sS}")
    g(f"s_and_b32 s3, s{sNeed}, 3"); g(f"s_mul_i32 s{sEX}, s3, {32*12288}"); g(f"s_add_u32 s{sEX}, s{sEX}, s{sEXb}")
    g(f"s_add_u32 s{sNeed}, s{sNeed}, 1")
    blk(g,sA,sS,sOut,1)
    g("s_waitcnt vmcnt(8)")
    S0,S1=vS,vS+12
    for j in range(4): g(f"{MF} {q4('v',S0+4)}, {q4('a',aK+4*j)}, {q4('a',aQ+4*j)}, {q4('v',vBd) if j==0 else q4('v',S0+4)}")
    for j in range(4): g(f"{MF} {q4('v',S1+4)}, {q4('a',aK+4*j)}, {q4('a',aQ+16+4*j)}, {'0' if j==0 else q4('v',S1+4)}")
    for j in range(4): g(f"{MF} {q4('v',S1+8)}, {q4('a',aK+16+4*j)}, {q4('a',aQ+16+4*j)}, {q4('v',vBd) if j==0 else q4('v',S1+8)}")
    g("s_nop 7")
    def scale(R):
        rnd_pairs(g,R,vT)
        for r in R: g(f"v_mul_f32 v{r}, s{sSc}, v{r}")
        rnd_pairs(g,R,vT)
    scale([S0+4+i for i in range(4)]+[S1+4+i for i in range(8)])
    def x2(a,t,op):
        L=[]
        for sw in ("v_permlane16_swap_b32","v_permlane32_swap_b32"):
            L+=[f"v_mov_b32 v{t[0]}, v{a[0]}",f"v_mov_b32 v{t[1]}, v{a[1]}","s_nop 0",f"{sw} v{a[0]}, v{t[0]}",f"{sw} v{a[1]}, v{t[1]}",
                f"{op} v{a[0]}, v{a[0]}, v{t[0]}",f"{op} v{a[1]}, v{a[1]}, v{t[1]}"]
        return L
    g(f"v_max3_f32 v{vM1[0]}, v{S0+4}, v{S0+5}, v{S0+6}"); g(f"v_max_f32 v{vM1[0]}, v{vM1[0]}, v{S0+7}")
    g(f"v_max3_f32 v{vM1[1]}, v{S1+4}, v{S1+5}, v{S1+6}"); g(f"v_max3_f32 v{vM1[1]}, v{vM1[1]}, v{S1+7}, v{S1+8}")
    g(f"v_max3_f32 v{vM1[1]}, v{vM1[1]}, v{S1+9}, v{S1+10}"); g(f"v_max_f32 v{vM1[1]}, v{vM1[1]}, v{S1+11}")
    for x in x2(vM1,vTx,"v_max_f32"): g(x)
    SG=[[S0+4+i for i in range(4)],[S1+4+i for i in range(8)]]
    for u in range(2):
        g(f"v_mul_f32 v{vTx[u]}, s{sL2e}, v{vM1[u]}")
        for r in SG[u]: g(f"v_fma_f32 v{r}, v{r}, s{sL2e}, -v{vTx[u]}")
    for u in range(2):
        for r in SG[u]: g(f"v_exp_f32 v{r}, v{r}")
    for u in range(2):
        g(f"v_add_f32 v{vL1[u]}, v{SG[u][0]}, v{SG[u][1]}")
        for r in SG[u][2:]: g(f"v_add_f32 v{vL1[u]}, v{vL1[u]}, v{r}")
    trace(g,sS,1,vT2)
    def ld4(base,va): return [f"buffer_load_dwordx4 {q4('v',base+4*i)}, v{va}, {WS}, s{sEX} offen offset:{1024*i} sc1" for i in range(4)]
    def chk(base):
        R=[base+i for i in range(0,16,2)]
        g(f"v_max_u32 v{vT}, v{R[0]}, v{R[1]}")
        for i in range(2,8,2): g(f"v_max3_u32 v{vT}, v{vT}, v{R[i]}, v{R[i+1]}")
        g(f"v_cmp_eq_u32 vcc, -1, v{vT}")
    lp=g.uniq("pc"); ld=g.uniq("pcd")
    g(f"s_mov_b32 s{sTO}, 0")
    g("s_mov_b64 exec, 15")
    g.label(lp)
    g(f"buffer_load_dword v{vT}, v{vCan}, {WS}, s{sEX} offen sc1")
    g("s_waitcnt vmcnt(0)")
    g(f"v_cmp_eq_u32 vcc, -1, v{vT}")
    g(f"s_cbranch_vccz {ld}")
    g(f"s_sleep {OPT.get('att_sleep',2)}")
    timeout(g, lp)
    g.label(ld)
    g("s_mov_b64 exec, -1")
    lp=g.uniq("pk"); ld=g.uniq("pkd")
    g.label(lp)
    for x in ld4(vKM,vL16b): g(x)
    g("s_waitcnt vmcnt(0)")
    chk(vKM)
    g(f"s_cbranch_vccz {ld}")
    timeout(g, lp)
    g.label(ld)
    trace(g,sS,2,vT2)
    for u in range(2):
        for j in range(4): g(f"{MF} {q4('v',vS+12*u)}, {q4('v',vKM+4*j)}, {q4('a',aQ+16*u+4*j)}, {q4('v',vBm) if j==0 else q4('v',vS+12*u)}")
    g("s_nop 3")
    if OPT.get("mim",1): scale([S0+i for i in range(4)]+[S1+i for i in range(4)])
    else:
        for r in [S0+i for i in range(4)]+[S1+i for i in range(4)]: g(f"v_mul_f32 v{r}, s{sSc}, v{r}")
    for x in ld4(vVM,vL16c): g(x)
    g(f"buffer_load_dword v{vWf}, v{vZ}, {WS}, s{sFW} offen sc1")
    for u in range(2):
        Sx=vS+12*u
        g(f"v_max3_f32 v{vMx[u]}, v{Sx}, v{Sx+1}, v{Sx+2}"); g(f"v_max3_f32 v{vMx[u]}, v{vMx[u]}, v{Sx+3}, v{vM1[u]}")
    for x in x2(vMx,vTx,"v_max_f32"): g(x)
    for u in range(2):
        Sx=vS+12*u
        g(f"v_mul_f32 v{vMx[u]}, s{sL2e}, v{vMx[u]}")
        g(f"v_fma_f32 v{vF[u]}, v{vM1[u]}, s{sL2e}, -v{vMx[u]}")
        for i in range(4): g(f"v_fma_f32 v{Sx+i}, v{Sx+i}, s{sL2e}, -v{vMx[u]}")
    for u in range(2):
        g(f"v_exp_f32 v{vF[u]}, v{vF[u]}")
        for i in range(4): g(f"v_exp_f32 v{vS+12*u+i}, v{vS+12*u+i}")
    for u in range(2):
        Sx=vS+12*u
        g(f"v_fma_f32 v{vL1[u]}, v{vL1[u]}, v{vF[u]}, v{Sx}")
        for i in range(1,4): g(f"v_add_f32 v{vL1[u]}, v{vL1[u]}, v{Sx+i}")
    for x in x2(vL1,vTx,"v_add_f32"): g(x)
    for u in range(2): g(f"v_rcp_f32 v{vL1[u]}, v{vL1[u]}")
    for u in range(2): g(f"v_mul_f32 v{vF[u]}, v{vF[u]}, v{vL1[u]}")
    def norm(u):
        Sx=vS+12*u; L=[]
        for i in range(0,len(SG[u]),2):
            r=SG[u][i]
            L+=[f"v_pk_mul_f32 v[{r}:{r+1}], v[{r}:{r+1}], v[{vF[u]}:{vF[u]+1}] op_sel_hi:[1,0]", f"v_cvt_pk_bf16_f32 v{vP[u]+i//2}, v{r}, v{r+1}"]
        for i in range(4): L.append(f"v_mul_f32 v{Sx+i}, v{Sx+i}, v{vL1[u]}")
        L+=[f"v_cvt_pk_bf16_f32 v{vPm[u]+2}, v{Sx}, v{Sx+1}", f"v_cvt_pk_bf16_f32 v{vPm[u]+3}, v{Sx+2}, v{Sx+3}"]
        return L
    pvs=lambda u: [f"{MF} {q4('v',vO+32*u+4*i)}, {q4('a',aV+4*i)}, {q4('v',vP[u])}, 0" for i in range(8)]
    pvm=lambda u: [f"{MF} {q4('v',vO+32*u+4*i)}, {q4('v',vVM+4*(i//2))}, {q4('v',vPm[u]+2) if i%2==0 else q4('v',vPm[u])}, {q4('v',vO+32*u+4*i)}" for i in range(8)]
    def outs(u):
        L=[]
        for j in range(4):
            L+=[f"v_cvt_pk_bf16_f32 v{vOp+16*u+i}, v{vO+32*u+2*i}, v{vO+32*u+2*i+1}" for i in range(4*j,4*j+4)]
            L+=[f"s_add_u32 s3, s{sA}, {2048*j}\nbuffer_store_dwordx4 {q4('v',vOp+16*u+4*j)}, v{vSt}, {WS}, s3 offen offset:{256*u} sc1"]
        return L
    for x in norm(0): g(x)
    interleave(g, pvs(0), norm(1), per=2)
    for x in pvs(1): g(x)
    lp=g.uniq("pv"); ld=g.uniq("pvd")
    g("s_waitcnt vmcnt(0)")
    g.label(lp)
    chk(vVM)
    g(f"s_cbranch_vccz {ld}")
    for x in ld4(vVM,vL16c): g(x)
    g("s_waitcnt vmcnt(0)")
    timeout(g, lp)
    g.label(ld)
    for x in pvm(0): g(x)
    interleave(g, pvm(1), outs(0), per=2, start=1)
    for x in outs(1): g(x)
    g(f"s_add_u32 s3, s{sFW}, 8")
    lflag_store(g, vT, 3, sNeed)
    trace(g,sS,3,vT2)
    g(f"s_add_u32 s{sS}, s{sS}, 1")
    g(f"s_add_u32 s{sNeed}, s{sS}, 1"); g(f"s_cmp_lt_u32 s{sS}, 64"); g(f"s_cselect_b32 s{sNeed}, s{sNeed}, 0")
    g("s_waitcnt vmcnt(0)")
    signal(g, vT, vSig, sFO, "31")
    trace(g,sS,4,vT2)
    g(f"v_cmp_gt_u32 vcc, s{sNeed}, v{vWf}")
    lj=g.uniq("aj")
    g(f"s_cbranch_vccz {lj}")
    poll_ge(g, vT, vZ, f"s{sFW}", f"s{sNeed}", mask="1", sleep=4)
    g.label(lj)
    fetch()
    if TRACE[0]:
        g(f"s_sub_u32 s97, s{sS}, 1"); tflush(g,97,216)
    g(f"s_add_u32 s{sFO}, s{sFO}, 4")
    g(f"s_cmp_lt_u32 s{sS}, 64"); g(f"s_cbranch_scc1 L_{N}_loop")
    g("s_endpgm")

def wo_weights(g, phase):
    sG,sCC,sA,sLB,sRot=52,53,55,57,64
    if phase==0:
        srd(g, 8, 26, 4096*1280)
        g(f"s_mul_i32 s{sLB}, s{sW}, 40960")
        g(f"s_and_b32 s{sA}, s{sCC}, 3")
        rot_table(g, sRot, sA, 4)
        g(f"s_mul_i32 s{sA}, s{sG}, {512*1280}"); g(f"s_lshl_b32 s3, s{sCC}, 8"); g(f"s_add_u32 s{sA}, s{sA}, s3")
    load_w32(g, 4, 1280, sA, sLB, 4, 2, 3, sRot, phase)

def wo(g):
    N="wo"
    WL=LAG+1
    sG,sCC,sT,sA,sB,sLB,sOut,sSeg,sP1,sRot=52,53,54,55,56,57,58,60,61,64
    vOff,vA,vT,vSt,vFa,vNeed,vL16,vSig,vPl,vLf=1,2,3,4,5,6,7,8,9,10
    vF=32; vC=64
    g.label(f"L_{N}")
    for B in range(4): hblk(g,sRot+B,sRot+B); g(f"s_xor_b32 s{sRot+B}, s{sRot+B}, 8192")
    g(f"v_lshlrev_b32 v{vL16}, 4, v0")
    g(f"v_lshrrev_b32 v{vSt}, 5, v0"); g(f"s_mov_b32 s3, {4*2560}"); g(f"v_mul_lo_u32 v{vSt}, v{vSt}, s3")
    g(f"v_and_b32 v{vT}, 31, v0"); g(f"v_lshl_add_u32 v{vSt}, v{vT}, 2, v{vSt}")
    g(f"s_lshl_b32 s3, s{sCC}, 9"); g(f"s_lshl_b32 s{sA}, s{sW}, 7"); g(f"s_add_u32 s3, s3, s{sA}"); g(f"v_add_u32 v{vSt}, s3, v{vSt}")
    g(f"s_mul_i32 s{sOut}, s{sG}, 81920"); g(f"s_add_u32 s{sOut}, s{sOut}, {PB}")
    near_setup(g,12)
    g(f"v_lshlrev_b32 v{vSig}, 9, v0"); spread_v(g,vSig,vT); g(f"v_add_u32 v{vSig}, s{sN0 if OPT.get('place',1)==0 else sN1}, v{vSig}")
    g(f"s_mul_i32 s3, s{sG}, 5"); g(f"s_add_u32 s3, s3, s{sCC}"); g(f"s_and_b32 s{sA}, s3, 3"); g(f"s_mul_i32 s{sA}, s{sA}, {CPBS}"); g(f"v_add_u32 v{vSig}, s{sA}, v{vSig}")
    g("s_lshl_b32 s3, s3, 9"); spread_s(g,3); g(f"s_add_u32 s3, s3, s{sN0 if OPT.get('place',1)==2 else sN1}"); g(f"s_add_u32 s3, s3, {CO}")
    g(f"v_mul_u32_u24 v{vFa}, {256-4*WL}, v0"); g(f"v_add_u32 v{vFa}, s3, v{vFa}")
    g(f"v_mov_b32 v{vNeed}, 0"); g(f"v_mov_b32 v{vLf}, {L_FLAG}")
    g(f"s_lshl_b32 s{sB}, s{sW}, 11")
    g(f"s_mov_b32 s{sT}, 0"); g(f"s_mov_b32 s{sP1}, -1")
    def dma(layer, sS, defer=False):
        g(f"s_lshl_b32 s3, s{sG}, 16"); g(f"s_add_u32 s3, s3, s{sB}"); g(f"s_add_u32 s3, s3, {VO+layer*LST}"); blk(g,sA,sS,3,0)
        g(f"s_cmp_lt_u32 s{sS}, 64"); g(f"s_cselect_b32 s{sA}, s{sA}, {OOB}")
        L=[f"s_add_u32 m0, s{sB}, {layer*32768+B*8192}\ns_add_u32 s3, s{sA}, s{sRot+B}\nbuffer_load_dwordx4 v{vL16}, {WS}, s3 offen offset:{1024*e} sc1 lds" for B in range(4) for e in range(2)]
        if defer: return L
        for x in L: g(x)
    def compute(layer, staged, hooks={}, extra=()):
        C=vC+16*layer
        Rd=lambda k: f"ds_read_b128 {q4('v',vF+4*(k%8))}, v{vL16} offset:{layer*32768+k*1024}"
        Mf=lambda k: f"{MF32} v[{C}:{C+15}], {q4('v',vF+4*(k%8))}, {q4('a',4*k)}, {'0' if k==0 else f'v[{C}:{C+15}]'}"
        gemm_stream(g,4,Rd,Mf,staged,hooks,extra,3)
        g(f"s_mul_i32 s{sA}, s{sSeg}, {8*81920}"); g(f"s_add_u32 s{sA}, s{sA}, s{sOut}")
        if layer: g(f"s_add_u32 s{sA}, s{sA}, {64*8*81920}")
        g(f"s_cmp_lt_u32 s{sSeg}, 64"); g(f"s_cselect_b32 s{sA}, s{sA}, {OOB}")
        g("s_nop 7")
        for a in range(4):
            for b in range(4):
                g(f"s_add_u32 s3, s{sA}, {(8*a+b)*2560}")
                g(f"buffer_store_dword v{C+4*a+b}, v{vSt}, {WS}, s3 offen sc1")
    def sig(layer, sS):
        l=g.uniq("sg")
        g(f"s_cmp_lg_u32 s{sW}, 1"); g(f"s_cbranch_scc1 {l}")
        g(f"s_cmp_ge_u32 s{sS}, 64"); g(f"s_cbranch_scc1 {l}")
        g(f"s_lshl_b32 s3, s{sS}, 2"); g(f"s_add_u32 s3, s3, {CPB+256*layer}")
        signal(g, vT, vSig, 3, "lo32")
        g.label(l)
    def need():
        g(f"s_cmp_lt_u32 s{sT}, 64"); g("s_cselect_b32 s3, 4, 0"); g(f"v_writelane_b32 v{vNeed}, s3, 0")
        g(f"s_cmp_ge_u32 s{sT}, {WL}"); g("s_cselect_b32 s3, 4, 0"); g(f"v_writelane_b32 v{vNeed}, s3, 1")
    g.label(f"L_{N}_loop")
    need()
    g(f"s_lshl_b32 s{sA}, s{sT}, 2")
    g(f"s_cmp_lg_u32 s{sW}, 0"); g(f"s_cselect_b32 s3, {OOB}, s{sA}")
    g(f"v_mov_b32 v{vPl}, 0")
    g("s_mov_b64 exec, 3")
    g(f"buffer_atomic_add v{vPl}, v{vFa}, {WS}, s3 offen sc0")
    g("s_mov_b64 exec, -1")
    g("s_waitcnt vmcnt(1)"); g("s_barrier")
    sig(1,sP1)
    g(f"s_cmp_ge_u32 s{sT}, {64+WL}"); g("s_cbranch_scc1 L_bail")
    lw=g.uniq("w")
    g(f"s_cmp_lg_u32 s{sW}, 0"); g(f"s_cbranch_scc1 {lw}")
    g("s_waitcnt vmcnt(0)")
    g(f"v_cmp_gt_u32 vcc, v{vNeed}, v{vPl}"); g(f"s_cbranch_vccz {lw}")
    wait_cnt(g, 12, vFa, f"s{sA}", f"v{vNeed}", mask="3", sleep=0, v2=13)
    g.label(lw)
    g("s_barrier")
    trace(g,sT,0,vT)
    g(f"s_sub_u32 s{sP1}, s{sT}, {WL}")
    lt=g.uniq("tail"); le=g.uniq("e")
    g(f"s_cmp_ge_u32 s{sT}, 64"); g(f"s_cbranch_scc1 {lt}")
    dma(0,sT)
    g(f"s_mov_b32 s{sSeg}, s{sT}")
    compute(0,True,{0:lambda: trace(g,sT,4,vT),31:lambda: trace(g,sT,5,vT)},extra=dma(1,sP1,True))
    trace(g,sT,3,vT)
    g("s_waitcnt vmcnt(16)"); g("s_barrier")
    g(f"s_mov_b32 s{sSeg}, s{sP1}")
    def h_sig():
        g("s_waitcnt vmcnt(0)"); g("s_barrier")
        sig(0,sT)
        trace(g,sT,1,vT)
    compute(1,False,{OPT.get("wo_sig",16):h_sig})
    g(f"s_branch {le}")
    g.label(lt)
    dma(1,sP1)
    g(f"s_mov_b32 s{sSeg}, s{sP1}")
    compute(1,True)
    g.label(le)
    trace(g,sT,2,vT)
    tflush(g,sT,100)
    g(f"s_add_u32 s{sT}, s{sT}, 1")
    g(f"s_branch L_{N}_loop")

def wsum(g, v, t):
    for d in ("quad_perm:[1,0,3,2]","quad_perm:[2,3,0,1]","row_half_mirror","row_mirror"):
        g("s_nop 1")
        g(f"v_add_f32_dpp v{v}, v{v}, v{v} {d} row_mask:0xf bank_mask:0xf")
    xsum4(g,v,t,"v_add_f32")

def rnd1(g, v):
    g(f"v_cvt_pk_bf16_f32 v{v}, v{v}, v{v}")
    g(f"v_and_b32 v{v}, 0xffff0000, v{v}")

def layernorm(g, X, Y, t0,t1,t2, sInv, sEps, packed=None, mim=True):
    assert t1==t0+1 and t0%2==0
    PP=lambda r: f"v[{r}:{r+1}]"
    g(f"v_readfirstlane_b32 s3, v{X}")
    g("s_nop 1")
    for i in range(8): g(f"v_subrev_f32 v{Y+i}, s3, v{X+i}")
    for i in range(8,12): g(f"v_mov_b32 v{Y+i}, 0")
    g("s_mov_b32 exec_hi, 0")
    for i in range(8,12): g(f"v_subrev_f32 v{Y+i}, s3, v{X+i}")
    g("s_mov_b32 exec_hi, -1")
    g(f"v_pk_mul_f32 {PP(t0)}, {PP(Y)}, {PP(Y)}")
    for i in range(2,12,2): g(f"v_pk_fma_f32 {PP(t0)}, {PP(Y+i)}, {PP(Y+i)}, {PP(t0)}")
    for i in range(2,12,2): g(f"v_pk_add_f32 {PP(Y)}, {PP(Y)}, {PP(Y+i)}")
    g(f"v_add_f32 v{t1}, v{t0}, v{t1}"); g(f"v_add_f32 v{t0}, v{Y}, v{Y+1}")
    for d in ("quad_perm:[1,0,3,2]","quad_perm:[2,3,0,1]","row_half_mirror","row_mirror"):
        g("s_nop 0")
        g(f"v_add_f32_dpp v{t1}, v{t1}, v{t1} {d} row_mask:0xf bank_mask:0xf")
        g(f"v_add_f32_dpp v{t0}, v{t0}, v{t0} {d} row_mask:0xf bank_mask:0xf")
    for sw in ("v_permlane16_swap_b32","v_permlane32_swap_b32"):
        g(f"v_mov_b32 v{Y+1}, v{t1}"); g(f"v_mov_b32 v{Y}, v{t0}"); g("s_nop 0")
        g(f"{sw} v{t1}, v{Y+1}"); g(f"{sw} v{t0}, v{Y}")
        g(f"v_pk_add_f32 {PP(t0)}, {PP(t0)}, {PP(Y)}")
    g(f"v_mul_f32 v{t0}, s{sInv}, v{t0}"); g(f"v_mul_f32 v{t1}, s{sInv}, v{t1}")
    g(f"v_fma_f32 v{t1}, -v{t0}, v{t0}, v{t1}"); g(f"v_max_f32 v{t1}, 0, v{t1}")
    g(f"v_add_f32 v{t0}, s3, v{t0}")
    g(f"v_cvt_pk_bf16_f32 v{t2}, v{t0}, v{t1}"); g(f"v_lshlrev_b32 v{t0}, 16, v{t2}"); g(f"v_and_b32 v{t1}, 0xffff0000, v{t2}")
    g(f"v_add_f32 v{t1}, s{sEps}, v{t1}"); rnd1(g,t1)
    g(f"v_sqrt_f32 v{t1}, v{t1}")
    for i in range(0,12,2): g(f"v_pk_add_f32 {PP(Y+i)}, {PP(X+i)}, {PP(t0)} op_sel_hi:[1,0] neg_lo:[0,1] neg_hi:[0,1]")
    rnd1(g,t1)
    g(f"v_rcp_f32 v{t1}, v{t1}")
    if mim: rnd_pairs(g,[Y+i for i in range(12)],t2)
    else: g("s_nop 0")
    for i in range(0,12,2): g(f"v_pk_mul_f32 {PP(Y+i)}, {PP(Y+i)}, {PP(t0)} op_sel:[0,1] op_sel_hi:[1,1]")
    if packed is not None: pack6(g,packed,Y)
    elif mim: rnd_pairs(g,[Y+i for i in range(12)],t2)

def unpack6(g, D, Sx):
    for i in range(6):
        g(f"v_lshlrev_b32 v{D+2*i}, 16, v{Sx+i}")
        g(f"v_and_b32 v{D+2*i+1}, 0xffff0000, v{Sx+i}")
def pack6(g, D, Sx):
    for i in range(6): g(f"v_cvt_pk_bf16_f32 v{D+i}, v{Sx+2*i}, v{Sx+2*i+1}")

def xn_addr(g, vX, vT, rowexpr_s):
    g(f"v_lshrrev_b32 v{vX}, 3, v0"); g(f"v_lshlrev_b32 v{vX}, 2, v{vX}")
    g(f"v_and_b32 v{vT}, 3, v0"); g(f"v_add_u32 v{vX}, v{vX}, v{vT}")
    g(f"v_xor_b32 v{vX}, s{rowexpr_s}, v{vX}")
    g(f"v_lshlrev_b32 v{vX}, 4, v{vX}")
    g(f"v_and_b32 v{vT}, 4, v0"); g(f"v_lshl_add_u32 v{vX}, v{vT}, 1, v{vX}")

def t4(g):
    N="t4"
    sR,sLam,sS,sA,sB,sInv,sEps,sNeed,sRow=52,53,54,55,56,57,58,59,60
    vL16,vL8,vT,vXa,vFa,vL16c,vL8c,vXc=1,2,3,4,5,6,7,8
    t0,t1,t2=10,11,9
    vX,vY,vN,vA,vPk,vFl=12,24,36,48,60,68
    vP=80
    vYa,vPg=72,73
    import pre
    g.label(f"L_{N}")
    g(f"s_lshr_b32 s{sLam}, s{sW}, 1")
    g(f"s_and_b32 s{sS}, s{sW}, 1")
    g(f"v_lshlrev_b32 v{vL16}, 4, v0")
    g(f"v_mov_b32 v{vYa}, 0"); g(f"s_lshl_b32 s3, s{sW}, 2"); g(f"s_add_u32 s3, s3, {L_FLAG}"); g(f"v_mov_b32 v{vPg}, s3")
    g(f"ds_write_b32 v{vPg}, v{vYa}")
    def yload(hi, sPart, n):
        g(f"s_mul_i32 s{sA}, s{sR}, 40960"); g(f"s_mul_i32 s{sB}, s{sPart}, {n*1024}"); g(f"s_add_u32 s{sA}, s{sA}, s{sB}"); g(f"s_add_u32 s{sA}, s{sA}, {YT+hi*32*40960}")
        for i in range(n//2):
            g(f"s_add_u32 m0, s{sB}, {hi*40960+2048*i}"); g(f"s_add_u32 s3, s{sA}, {2048*i}")
            for e in range(2): g(f"buffer_load_dwordx4 v{vL16}, {WS}, s3 offen offset:{1024*e} sc1 lds")
        g("s_waitcnt vmcnt(0) lgkmcnt(0)")
    pre.wait_wg(g,*pre.BY1,vX)
    yload(0,sW,10)
    g("s_barrier")
    tl(g,TRACE[0],DBG3+16384,101,1)
    le0=g.uniq("e0")
    g(f"s_cmp_eq_u32 s{sLam}, 0"); g(f"s_cbranch_scc1 {le0}")
    pre.t4_late(g,sR)
    g(f"v_lshlrev_b32 v{vL16}, 4, v0")
    yload(1,sS,20)
    g(f"s_lshl_b32 s3, s{sW}, 2"); g(f"s_add_u32 s3, s3, {L_FLAG}"); g(f"v_mov_b32 v{vPg}, s3"); g(f"v_mov_b32 v{vYa}, 1")
    g(f"ds_write_b32 v{vPg}, v{vYa}")
    tl(g,TRACE[0],DBG3+16384,101,2)
    g.label(le0)
    g(f"s_lshl_b32 s3, s{sS}, 2"); g(f"s_add_u32 s3, s3, {L_FLAG}"); g(f"v_mov_b32 v{vPg}, s3")
    srd(g, 8, 16, 2048*1280)
    srd(g, 12, 42, 2048*1280)
    g(f"v_lshlrev_b32 v{vL16}, 4, v0"); g(f"v_lshlrev_b32 v{vL8}, 3, v0")
    g(f"v_cmp_lt_u32 vcc, 31, v0"); g(f"v_mov_b32 v{vT}, {OOB}"); g("s_nop 1")
    g(f"v_cndmask_b32 v{vL16c}, v{vL16}, v{vT}, vcc"); g(f"v_cndmask_b32 v{vL8c}, v{vL8}, v{vT}, vcc")
    g(f"s_and_b32 s3, s{sR}, 15")
    xn_addr(g, vXa, t0, 3)
    g(f"v_cndmask_b32 v{vXc}, v{vXa}, v{vT}, vcc")
    near_setup(g,vX)
    g(f"s_lshl_b32 s3, s{sR}, 9"); spread_s(g,3); g(f"s_lshl_b32 s{sA}, s{sLam}, 8"); g(f"s_add_u32 s3, s3, s{sA}"); g(f"s_add_u32 s3, s3, s{sN0 if OPT.get('place',1)==0 else sN1}"); g(f"s_add_u32 s3, s3, {CPB}"); g(f"v_mul_u32_u24 v{vFa}, {CPBS}, v0"); g(f"v_add_u32 v{vFa}, s3, v{vFa}"); g("s_sub_u32 s3, s3, 4"); g(f"v_writelane_b32 v{vFa}, s3, 4")
    g(f"v_lshlrev_b32 v{vFl}, 8, v0"); spread_v(g,vFl,t0); g(f"v_add_u32 v{vFl+1}, s{sN0 if OPT.get('place',1)==1 else sN1}, v{vFl}"); g(f"v_add_u32 v{vFl}, s{sN1}, v{vFl}")
    g(f"v_cmp_lt_u32 vcc, 55, v0"); g("s_nop 1"); g(f"v_cndmask_b32 v{vFl}, v{vFl}, v{vFl+1}, vcc")
    g(f"s_mov_b32 s{sInv}, {hex(f32bits(1/640))}"); g(f"s_mov_b32 s{sEps}, {hex(f32bits(1e-5))}")
    g.label(f"L_{N}_loop")
    g(f"s_lshl_b32 s{sRow}, s{sS}, 5"); g(f"s_add_u32 s{sRow}, s{sRow}, s{sR}"); g(f"s_mul_i32 s{sRow}, s{sRow}, 1280")
    g(f"s_cmp_eq_u32 s{sLam}, 0"); g(f"s_cselect_b32 s3, s{sRow}, {OOB}")
    for i in range(3): g(f"buffer_load_dwordx2 v[{vA+2*i}:{vA+2*i+1}], v{vL8 if i<2 else vL8c}, {WT}, s3 offen offset:{512*i}{OPT.get('xnt','')}")
    ly=g.uniq("yh"); lyd=g.uniq("yhd")
    g(f"s_and_b32 s3, s{sS}, 62"); g(f"s_cmp_lg_u32 s3, 32"); g(f"s_cbranch_scc1 {lyd}")
    g(f"v_mov_b32 v{vT}, {L_FLAG+8}"); g(f"s_mov_b32 s{sTO}, 0")
    g.label(ly)
    g(f"ds_read_b64 v[{vY}:{vY+1}], v{vT}"); g("s_waitcnt lgkmcnt(0)")
    g(f"v_and_b32 v{vY}, v{vY}, v{vY+1}"); g(f"v_cmp_eq_u32 vcc, 0, v{vY}"); g(f"s_cbranch_vccz {lyd}")
    g("s_sleep 8")
    timeout(g, ly)
    g.label(lyd)
    g(f"s_and_b32 s3, s{sS}, 7"); g("s_lshl_b32 s3, s3, 3"); g(f"s_bfe_u32 s{sA}, s{sS}, 0x20003"); g(f"s_lshl_b32 s{sA}, s{sA}, 1"); g(f"s_add_u32 s3, s3, s{sA}")
    g(f"s_lshr_b32 s{sA}, s{sS}, 5"); g(f"s_mul_i32 s{sA}, s{sA}, 40960"); g(f"s_add_u32 s3, s3, s{sA}")
    g(f"v_lshlrev_b32 v{vYa}, 8, v0"); g(f"v_add_u32 v{vYa}, s3, v{vYa}")
    for i in range(8): g(f"ds_read_u16 v{vY+i}, v{vYa} offset:{(i//4)*16384+(i%4)*64}")
    for i in range(4): g(f"v_mov_b32 v{vY+8+i}, 0")
    g("s_mov_b32 exec_hi, 0")
    for i in range(4): g(f"ds_read_u16 v{vY+8+i}, v{vYa} offset:{32768+i*64}")
    g("s_mov_b32 exec_hi, -1")
    g("s_waitcnt vmcnt(0) lgkmcnt(0)")
    for i in range(12): g(f"v_lshlrev_b32 v{vY+i}, 16, v{vY+i}")
    unpack6(g,vX,vA)
    g(f"s_lshl_b32 s{sA}, s{sS}, 2")
    lp=g.uniq("tw"); ld=g.uniq("twd"); lf=g.uniq("twf")
    g(f"s_mov_b32 s{sTO}, 0"); g("s_mov_b64 exec, 31")
    g.label(lp)
    g(f"v_mov_b32 v{vT}, 0")
    g(f"buffer_atomic_add v{vT}, v{vFa}, {WS}, s{sA} offen sc0")
    g("s_waitcnt vmcnt(0)")
    g(f"v_cmp_gt_u32 vcc, 10, v{vT}")
    g("s_and_b32 s3, vcc_lo, 15"); g(f"s_cbranch_scc0 {ld}")
    g("s_bitcmp0_b32 vcc_lo, 4"); g(f"s_cbranch_scc1 {lf}")
    g(f"s_cmp_eq_u32 s{sS}, 0"); g(f"s_cbranch_scc1 {lf}")
    g(f"s_sleep {OPT.get('t4_sleep',24)}")
    g.label(lf)
    g(f"s_sleep {OPT.get('t4_sleep2',1)}")
    timeout(g, lp)
    g.label(ld)
    g("s_mov_b64 exec, -1")
    if OPT.get("t4_dly"): g(f"s_sleep {OPT['t4_dly']}")
    trace(g,sS,0,t0)
    g(f"s_lshl_b32 s{sA}, s{sLam}, 6"); g(f"s_add_u32 s{sA}, s{sA}, s{sS}"); g(f"s_mul_i32 s{sA}, s{sA}, {8*81920}")
    g(f"s_mul_i32 s3, s{sR}, 2560"); g(f"s_add_u32 s{sA}, s{sA}, s3"); g(f"s_add_u32 s{sA}, s{sA}, {PB}")
    for p in range(8):
        for i in range(3): g(f"buffer_load_dwordx4 {q4('v',vP+12*p+4*i)}, v{vL16 if i<2 else vL16c}, {WS}, s{sA} offen offset:{1024*i} sc1{OPT.get('nt','')}")
        g(f"s_add_u32 s{sA}, s{sA}, 81920")
    l0=g.uniq("l0")
    g(f"s_and_b32 s{sB}, s{sS}, 31"); g(f"s_mul_i32 s{sB}, s{sB}, 1536"); g(f"s_add_u32 s{sB}, s{sB}, 81920")
    g(f"v_add_u32 v{vT}, s{sB}, v{vL8}")
    g(f"s_cmp_eq_u32 s{sLam}, 0"); g(f"s_cbranch_scc1 {l0}")
    for i in range(3): g(f"ds_read_b64 v[{vA+2*i}:{vA+2*i+1}], v{vT} offset:{512*i}")
    g("s_waitcnt lgkmcnt(0)")
    unpack6(g,vX,vA)
    g(f"s_add_u32 s3, s{sS}, 1"); g(f"v_mov_b32 v{t0}, s3"); g(f"ds_write_b32 v{vPg}, v{t0}")
    g.label(l0)
    for p in range(1,8):
        g(f"s_waitcnt vmcnt({21-3*p})")
        for i in range(0,12,2): g(f"v_pk_add_f32 v[{vP+i}:{vP+i+1}], v[{vP+i}:{vP+i+1}], v[{vP+12*p+i}:{vP+12*p+i+1}]")
    trace(g,sS,1,t0)
    MIM=OPT.get("mim",1)
    if MIM: rnd_pairs(g,[vP+i for i in range(12)],t2)
    for i in range(0,12,2): g(f"v_pk_add_f32 v[{vX+i}:{vX+i+1}], v[{vX+i}:{vX+i+1}], v[{vP+i}:{vP+i+1}]")
    rnd_pairs(g,[vX+i for i in range(12)],t2)
    layernorm(g,vX,vN,t0,t1,t2,sInv,sEps,mim=MIM)
    for i in range(0,12,2): g(f"v_pk_mul_f32 v[{vN+i}:{vN+i+1}], v[{vN+i}:{vN+i+1}], v[{vY+i}:{vY+i+1}]")
    if MIM: rnd_pairs(g,[vN+i for i in range(12)],t2)
    for i in range(0,12,2): g(f"v_pk_add_f32 v[{vX+i}:{vX+i+1}], v[{vX+i}:{vX+i+1}], v[{vN+i}:{vN+i+1}]")
    pack6(g,vPk,vX)
    l1=g.uniq("l1"); le=g.uniq("le")
    g(f"s_cmp_lg_u32 s{sLam}, 0"); g(f"s_cbranch_scc1 {l1}")
    lg=g.uniq("rg"); lgd=g.uniq("rgd")
    g(f"s_cmp_lt_u32 s{sS}, 32"); g(f"s_cbranch_scc1 {lgd}")
    g(f"s_sub_u32 s{sA}, s{sS}, 31"); g(f"s_mov_b32 s{sTO}, 0")
    g.label(lg)
    g(f"ds_read_b32 v{t0}, v{vPg}"); g("s_waitcnt lgkmcnt(0)")
    g(f"v_cmp_gt_u32 vcc, s{sA}, v{t0}"); g(f"s_cbranch_vccz {lgd}")
    g("s_sleep 8")
    timeout(g, lg)
    g.label(lgd)
    for i in range(3): g(f"ds_write_b64 v{vT}, v[{vPk+2*i}:{vPk+2*i+1}] offset:{512*i}")
    unpack6(g,vX,vPk)
    g("s_nop 0")
    layernorm(g,vX,vN,t0,t1,t2,sInv,sEps,packed=vA,mim=MIM)
    g(f"s_add_u32 s3, s{sRow}, {XN+64*40960}")
    for i in range(3): g(f"buffer_store_dwordx2 v[{vA+2*i}:{vA+2*i+1}], v{vXa if i<2 else vXc}, {WS}, s3 offen offset:{512*i} sc1")
    trace(g,sS,2,t0)
    g("s_waitcnt vmcnt(0) lgkmcnt(0)")
    trace(g,sS,3,t0)
    g(f"s_and_b32 s{sA}, s{sR}, 3"); g(f"s_mul_i32 s{sA}, s{sA}, {CXNS}")
    g(f"s_lshl_b32 s3, s{sS}, 2"); g(f"s_add_u32 s3, s3, s{sA}"); g(f"s_add_u32 s3, s3, {CXN}")
    signal(g, vT, vFl, 3, "-1")
    g(f"s_add_u32 s3, s3, {2*64*256}")
    signal(g, vT, vFl+1, 3, "lo32")
    g(f"s_branch {le}")
    g.label(l1)
    for i in range(3): g(f"buffer_store_dwordx2 v[{vPk+2*i}:{vPk+2*i+1}], v{vL8 if i<2 else vL8c}, {W2}, s{sRow} offen offset:{512*i}{OPT.get('nt','')}")
    g("s_waitcnt vmcnt(0)")
    g.label(le)
    tflush(g,sS,180)
    g(f"s_add_u32 s{sS}, s{sS}, 2")
    g(f"s_cmp_lt_u32 s{sS}, 64"); g(f"s_cbranch_scc1 L_{N}_loop")
    g(f"s_cmp_lg_u32 s{sW}, 3"); g("s_cbranch_scc1 L_bail")
    tl(g,TRACE[0],DBG3+16384,101,3)
    g("s_endpgm")
```

```python
from asmlib import *
from layout import *
import math, struct

WS="s[4:7]"; WT="s[8:11]"
sX,sTK,sW,sTO=48,49,50,51
sPAR=81
TIMEOUT=1<<17
def f32bits(x): return struct.unpack("<I", struct.pack("<f", x))[0]

def timeout(g, back):
    g(f"s_add_u32 s{sTO}, s{sTO}, 1")
    g(f"s_cmp_lt_u32 s{sTO}, {TIMEOUT}")
    g(f"s_cbranch_scc1 {back}")
    g("s_branch L_bail")

def dma_rows64(g, vOff, sOff, n, stride16, sLB, lds_off=0, srdname=WT):
    for i in range(n):
        g(f"s_add_u32 m0, s{sLB}, {lds_off+i*1024}")
        g("s_nop 0")
        g(f"buffer_load_dwordx4 v{vOff}, {srdname}, s{sOff} offen lds")
        g(f"s_add_u32 s{sOff}, s{sOff}, {stride16}")

def dma_voff(g, vD, vT, row_stride):
    g(f"v_lshrrev_b32 v{vD}, 2, v0")
    g(f"s_mov_b32 s3, {row_stride}")
    g(f"v_mul_lo_u32 v{vD}, v{vD}, s3")
    g(f"v_lshrrev_b32 v{vT}, 3, v0")
    g(f"v_and_b32 v{vT}, 2, v{vT}")
    g(f"v_xor_b32 v{vT}, v{vT}, v0")
    g(f"v_and_b32 v{vT}, 3, v{vT}")
    g(f"v_lshl_add_u32 v{vD}, v{vT}, 4, v{vD}")

def tr16_addr(g, vD, vT):
    g(f"v_lshrrev_b32 v{vD}, 2, v0")
    g(f"v_lshlrev_b32 v{vD}, 6, v{vD}")
    g(f"v_and_b32 v{vT}, 3, v0")
    g(f"v_lshl_add_u32 v{vD}, v{vT}, 3, v{vD}")
    g(f"v_and_b32 v{vT}, 16, v0")
    g(f"v_lshl_add_u32 v{vD}, v{vT}, 1, v{vD}")

def fl_voff(g, vD, vT, row_stride, RB):
    n=RB//16; sh={8:3,16:4}[n]
    g(f"v_lshrrev_b32 v{vD}, {sh}, v0"); g(f"s_mov_b32 s3, {row_stride}"); g(f"v_mul_lo_u32 v{vD}, v{vD}, s3")
    if RB==128:
        g(f"v_lshrrev_b32 v{vT}, 3, v0"); g(f"v_and_b32 v{vT}, 6, v{vT}")
    else:
        g(f"v_lshrrev_b32 v{vT}, 3, v0"); g(f"v_and_b32 v{vT}, 6, v{vT}")
    g(f"v_xor_b32 v{vT}, v{vT}, v0"); g(f"v_and_b32 v{vT}, {n-1}, v{vT}")
    g(f"v_lshl_add_u32 v{vD}, v{vT}, 4, v{vD}")
    if RB==256: g(f"v_xor_b32 v{vD+1}, 128, v{vD}" if row_stride%256==0 else f"v_xor_b32 v{vT}, 8, v{vT}\nv_lshrrev_b32 v{vD+1}, 4, v0\nv_mul_lo_u32 v{vD+1}, v{vD+1}, s3\nv_lshl_add_u32 v{vD+1}, v{vT}, 4, v{vD+1}")

def fl_dma(g, vOff, sOff, n, step, sL, lds_off, two=False):
    for i in range(n):
        g(f"s_add_u32 m0, s{sL}, {lds_off+i*1024}"); g("s_nop 0")
        g(f"buffer_load_dwordx4 v{vOff+(i&1 if two else 0)}, {WT}, s{sOff} offen lds")
        g(f"s_add_u32 s{sOff}, s{sOff}, {step}")

MF="v_mfma_f32_16x16x32_bf16"
def q4(k,a): return f"{k}[{a}:{a+3}]"

def chain(g, diag=False, opt=None):
    opt = opt or {}
    N="ch"
    sH,sT,sKV,sRed=52,53,54,55
    sKVc,sP,sMm=16,17,28
    sMEM,sEX,sXC,sPC=56,60,64,68
    mOwn=70
    sA,sB,sC,sLB,sLam,sU,sC1=74,75,76,77,78,79,73
    ST=82
    vL16,vA1,vA2,vA3,vAw,vTst,vRs,vFl,vTmp,vL16b=1,2,3,4,5,6,8,9,10,11
    vSent,vSel,vOne,vBias,vPm,vM0=12,16,20,24,28,34
    vM=36; vAc=116; vQ=128; vK=144
    vKS=36; vVM=68; vS=76; vP=88; vO=92; vLs=108; vOf=36; vW=92; vRD=76; vXR=56; vMx=112
    vKSa,vVSa,vOa,vNeed,vXw,vMrb,vPCw,vPCh,vEXv=160,161,162,164,165,167,168,169,7
    vTst2,vTst3,vRem=163,166,175
    vXr=[170,171,174]
    vRl=172
    vWo=176
    aQ,aK,aV,aVS=0,80,160,240
    L_MEM,L_QK,L_O,L_KV=0,20480,24576,28672
    TP=opt.get("tp",0)
    PA,PB_=[0,3],[1,2,4]
    POS=(lambda jj,i: 2*jj+PA.index(i) if i in PA else 8+3*jj+PB_.index(i)) if TP else (lambda jj,i: 5*jj+i)
    cold=[]
    stamp_i=[0]
    PTS=opt.get("pts",["mem","kdone","qok","kok","ostg","wo","red","xc"])
    def stamp(n):
        if diag and n in PTS:
            i=PTS.index(n); g(f"s_memrealtime s[{ST+2*i}:{ST+2*i+1}]")
    def dly(k):
        n=opt.get(k,0)
        while n>0:
            m=min(n,4); g(f"s_nop {4*m-1}"); n-=m
    def retry(back, pre=()):
        l=g.uniq("rt")
        g(f"s_cbranch_vccnz {l}")
        def f():
            g.label(l)
            for x in pre: g(x)
            timeout(g, back)
        cold.append(f)
    g.label(f"L_{N}")
    if opt.get("ldiag"): g("s_memrealtime s[92:93]"); g("s_waitcnt lgkmcnt(0)")
    if diag: g.raw("; PTS "+" ".join(PTS))
    g(f"s_lshr_b32 s{sH}, s{sTK}, 1"); g(f"s_lshl_b32 s3, s{sX}, 3"); g(f"s_add_u32 s{sH}, s{sH}, s3")
    g(f"s_and_b32 s{sP}, s{sTK}, 1")
    g(f"s_lshr_b32 s{sLam}, s{sW}, 1")
    g(f"s_and_b32 s{sC}, s{sW}, 1")
    g(f"s_mul_i32 s{sLB}, s{sLam}, 81920")
    srd(g, 8, 26, 4096*1280)
    fl_voff(g, vTmp, vL16b, 1280, 128)
    g(f"s_mul_i32 s{sKV}, s{sH}, {128*1280}"); g(f"s_mul_i32 s3, s{sP}, 640"); g(f"s_add_u32 s{sKV}, s{sKV}, s3"); g(f"s_mul_i32 s3, s{sW}, {32*1280}"); g(f"s_add_u32 s{sKV}, s{sKV}, s3")
    g(f"s_lshl_b32 s{sU}, s{sW}, 12")
    for st in range(5):
        g(f"s_add_u32 s{sA}, s{sKV}, {128*st}")
        fl_dma(g, vTmp, sA, 4, 8*1280, sU, 81920+st*16384)
    fl_voff(g, vTmp, vL16b, 8192, 128)
    g(f"s_lshl_b32 s{sA}, s{sH}, 8"); g(f"s_lshl_b32 s3, s{sP}, 7"); g(f"s_add_u32 s{sA}, s{sA}, s3")
    g(f"s_mul_i32 s3, s{sW}, {160*8192}"); g(f"s_add_u32 s{sA}, s{sA}, s3")
    g(f"s_mul_i32 s{sU}, s{sW}, 20480")
    srd(g, 8, 24, 640*8192)
    fl_dma(g, vTmp, sA, 20, 8*8192, sU, 0)
    g(f"s_cmp_eq_u32 s{sP}, 0"); g("s_cselect_b32 s8, s20, s22"); g("s_cselect_b32 s9, s21, s23"); g("s_and_b32 s9, s9, 0xffff")
    fl_voff(g, vM, vL16b, 8192, 256)
    def wdma(half):
        g(f"s_lshl_b32 s{sA}, s{sH}, 8"); g(f"s_mul_i32 s3, s{sW}, {80*8192}"); g(f"s_add_u32 s{sA}, s{sA}, s3"); g(f"s_add_u32 s{sA}, s{sA}, {half*320*8192}")
        fl_dma(g, vM, sA, 20, 4*8192, sU, half*81920, two=True)
    g(f"v_lshlrev_b32 v{vL16}, 4, v0")
    g(f"v_lshrrev_b32 v{vA1}, 2, v0"); g(f"v_lshlrev_b32 v{vA1}, 7, v{vA1}")
    g(f"v_and_b32 v{vA2}, 3, v0"); g(f"v_lshl_add_u32 v{vA1}, v{vA2}, 3, v{vA1}")
    g(f"v_and_b32 v{vA2}, 24, v0"); g(f"v_lshl_add_u32 v{vA1}, v{vA2}, 2, v{vA1}")
    g(f"s_lshl_b32 s3, s{sW}, 5"); g(f"v_xor_b32 v{vA3}, s3, v{vA1}")
    for i in range(4): g(f"v_mov_b32 v{vSent+i}, -1")
    for i in range(4): g(f"v_mov_b32 v{vOne+i}, 0x3f803f80")
    for i in range(6): g(f"v_mov_b32 v{vPm+i}, 0")
    for i in range(32): g(f"v_mov_b32 v{vQ+i}, 0")
    g("s_waitcnt vmcnt(20)"); g("s_barrier")
    for x in range(5):
        g(f"s_mul_i32 s{sA}, s{sLam}, 10")
        if x<4: g(f"s_mul_i32 s3, s{sC}, 6"); g(f"s_add_u32 s{sA}, s{sA}, s3"); g(f"s_add_u32 s{sA}, s{sA}, {x}")
        else: g(f"s_add_u32 s{sA}, s{sA}, s{sC}"); g(f"s_add_u32 s{sA}, s{sA}, 4")
        g(f"s_and_b32 s3, s{sA}, 3"); g("s_lshl_b32 s3, s3, 5"); g(f"v_xor_b32 v{vA2}, s3, v{vA1}")
        g(f"s_lshr_b32 s3, s{sA}, 2"); g("s_lshl_b32 s3, s3, 14"); g("s_add_u32 s3, s3, 81920"); g(f"v_add_u32 v{vA2}, s3, v{vA2}")
        for j in range(4):
            b=vWo+32*(x>>1)+8*j+4*(x&1) if x<4 else vWo+64+4*j
            g(f"ds_read_b64_tr_b16 v[{b}:{b+1}], v{vA2} offset:{j*4096}")
            g(f"ds_read_b64_tr_b16 v[{b+2}:{b+3}], v{vA2} offset:{j*4096+2048}")
    g("s_waitcnt lgkmcnt(0)"); g("s_barrier")
    def tr_w(base, half, keep):
        g(f"s_waitcnt vmcnt({keep})"); g("s_barrier")
        for j in range(4):
            g(f"s_xor_b32 s3, s{sW}, {j}"); g(f"s_mul_i32 s3, s3, 20480"); g(f"s_add_u32 s3, s3, {half*81920}"); g(f"v_add_u32 v{vA2}, s3, v{vA3}")
            for ii in range(5):
                b=base+4*POS(j,ii)
                g(f"ds_read_b64_tr_b16 a[{b}:{b+1}], v{vA2} offset:{ii*4096}")
                g(f"ds_read_b64_tr_b16 a[{b+2}:{b+3}], v{vA2} offset:{ii*4096+2048}")
        g("s_waitcnt lgkmcnt(0)"); g("s_barrier")
    tl(g,opt.get("trace"),DBG3+16384,101,1,vM+4)
    wdma(1)
    tr_w(aV,0,20)
    wdma(0)
    import pre, bulk
    vT1,vT2,vT3=vM+4,vM+5,vM+6
    g(f"s_mul_i32 s{sB}, s{sP}, 10"); g(f"s_mul_i32 s3, s{sLam}, 5"); g(f"s_add_u32 s{sB}, s{sB}, s3")
    g(f"s_mul_i32 s{sA}, s{sH}, 20480"); g(f"s_lshl_b32 s3, s{sB}, 10"); g(f"s_add_u32 s{sA}, s{sA}, s3")
    g(f"s_mul_i32 s3, s{sC}, 3072"); g(f"s_add_u32 s3, s3, s{sA}"); g(f"v_add_u32 v{vPCw}, s3, v{vL16}")
    g(f"s_lshl_b32 s3, s{sC}, 3"); g(f"s_add_u32 s3, s3, s{sA}"); g(f"s_add_u32 s3, s3, 2048"); g(f"v_add_u32 v{vPCh}, s3, v{vL16}")
    for s_ in range(4):
        g(f"s_mul_i32 s3, s{sX}, 20480");  g(f"s_add_u32 s{sMEM+s_}, s3, {MEM+s_*4*20480}")
        g(f"s_mul_i32 s3, s{sH}, 12288");  g(f"s_add_u32 s{sEX+s_}, s3, {EX+s_*32*12288}")
    for s_ in range(2): g(f"s_mov_b32 s{sPC+s_}, {PC+s_*32*20480}")
    g(f"v_add_u32 v{vL16b}, 4096, v{vL16}")
    for j,va in ((1,vA1),(2,vA2),(3,vA3),(0,vAw)):
        g(f"s_xor_b32 s3, s{sW}, {j}"); g(f"s_mul_i32 s3, s3, 5120"); g(f"v_add_u32 v{va}, s3, v{vL16}")
    g(f"s_mul_i32 s{sMm}, s{sW}, 5120")
    g(f"v_add_u32 v{vMrb}, 4096, v{vAw}")
    g(f"s_lshl_b32 s3, s{sP}, 11"); g(f"s_lshl_b32 s{sB}, s{sLam}, 10"); g(f"s_add_u32 s3, s3, s{sB}"); g(f"s_lshl_b32 s{sB}, s{sC}, 3"); g(f"s_add_u32 s3, s3, s{sB}")
    g(f"s_add_u32 s3, s3, 8192"); g(f"v_add_u32 v{vTst3}, s3, v{vL16}")
    g(f"s_lshl_b32 s3, s{sW}, 10"); g(f"v_add_u32 v{vTst2}, s3, v{vL16}")
    g(f"s_lshl_b32 s3, s{sP}, 12"); g(f"v_add_u32 v{vTst}, s3, v{vTst2}")
    g(f"v_and_b32 v{vRem}, 55, v0"); g(f"s_lshl_b32 s3, s{sLam}, 3"); g(f"v_or_b32 v{vRem}, s3, v{vRem}"); g(f"v_lshlrev_b32 v{vRem}, 4, v{vRem}")
    g(f"v_xor_b32 v{vTmp}, s3, v0"); g(f"v_and_b32 v{vTmp}, 8, v{vTmp}"); g(f"v_lshl_add_u32 v{vRem}, v{vTmp}, 8, v{vRem}")
    g(f"s_xor_b32 s3, s{sP}, 1"); g("s_lshl_b32 s3, s3, 12"); g(f"v_add_u32 v{vRem}, s3, v{vRem}")
    g(f"s_lshl_b32 s3, s{sLam}, 13"); g(f"v_add_u32 v{vKSa}, s3, v{vL16}")
    g(f"s_lshl_b32 s{sB}, s{sC}, 12"); g(f"v_add_u32 v{vVSa}, s{sB}, v{vKSa}")
    g(f"s_lshl_b32 s{sB}, s{sC}, 11"); g(f"v_add_u32 v{vOa}, s{sB}, v{vL16}")
    g(f"v_add_u32 v{vEXv}, 8192, v{vOa}")
    g(f"s_lshl_b32 s{sU}, s{sTK}, 1"); g(f"s_add_u32 s{sU}, s{sU}, s{sC}")
    g(f"s_mov_b32 s{sRed}, s{sLam}")
    g(f"s_lshr_b32 s3, s{sTK}, 1"); g(f"s_add_u32 s3, s3, 32")
    g(f"s_lshl_b32 s{sB}, s{sP}, 2"); g(f"s_add_u32 s{sB}, s{sB}, s{sW}")
    g(f"s_cmp_eq_u32 s{sB}, 1"); g(f"s_cselect_b32 s{sU}, s3, s{sU}"); g(f"s_cselect_b32 s{sRed}, 1, s{sRed}")
    if TP:
        g(f"s_lshr_b32 s{sA}, s{sTK}, 1")
        g(f"s_lshr_b32 s3, s{sA}, 1"); g(f"s_mul_i32 s{sU}, s3, 10"); g(f"s_and_b32 s3, s{sA}, 1"); g(f"s_mul_i32 s3, s3, 6"); g(f"s_add_u32 s{sU}, s{sU}, s3"); g(f"s_add_u32 s{sU}, s{sU}, s{sC}")
        g(f"s_and_b32 s3, s{sA}, 1"); g("s_mul_i32 s3, s3, 3"); g(f"s_add_u32 s3, s3, s{sW}"); g("s_sub_u32 s3, s3, 1")
        g(f"s_add_u32 s{sB}, s3, 2"); g("s_cmp_ge_u32 s3, 4"); g("s_cselect_b32 s3, 2, 0"); g(f"s_add_u32 s{sB}, s{sB}, s3")
        g(f"s_lshr_b32 s3, s{sA}, 1"); g("s_mul_i32 s3, s3, 10"); g(f"s_add_u32 s{sB}, s{sB}, s3")
        g(f"s_cmp_eq_u32 s{sP}, 0"); g(f"s_cselect_b32 s{sU}, s{sB}, s{sU}")
        g(f"s_cmp_eq_u32 s{sRed}, 0"); g(f"s_cselect_b32 s{sU}, 0, s{sU}")
    g(f"v_lshrrev_b32 v{vRl}, 4, v0"); g(f"s_mov_b32 s3, 20480"); g(f"v_mul_lo_u32 v{vRl}, v{vRl}, s3")
    g(f"v_and_b32 v{vTmp}, 15, v0"); g(f"v_lshl_add_u32 v{vRl}, v{vTmp}, 4, v{vRl}")
    g(f"s_lshl_b32 s3, s{sU}, 9"); g(f"s_mul_i32 s{sB}, s{sX}, {8*20480}"); g(f"s_add_u32 s{sB}, s{sB}, s3")
    g(f"v_add_u32 v{vRl}, s{sB}, v{vRl}"); g(f"v_add_u32 v{vRl+1}, {4*20480}, v{vRl}")
    g(f"v_lshrrev_b32 v{vRs}, 5, v0"); g(f"v_lshlrev_b32 v{vRs}, 8, v{vRs}"); g(f"v_lshl_add_u32 v{vRs}, v{vTmp}, 4, v{vRs}")
    g(f"v_and_b32 v{vM}, 16, v0"); g(f"v_lshrrev_b32 v{vM}, 1, v{vM}"); g(f"v_add3_u32 v{vRs}, v{vRs}, v{vM}, s3")
    g(f"s_lshr_b32 s3, s{sU}, 4"); g("s_lshl_b32 s3, s3, 14")
    g(f"s_and_b32 s{sB}, s{sU}, 15"); g(f"s_lshl_b32 s{sB}, s{sB}, 9"); g(f"s_add_u32 s3, s3, s{sB}")
    for k,vv in enumerate([vXw]+vXr):
        g(f"s_xor_b32 s{sB}, s{sX}, {k}"); g(f"s_mul_i32 s{sB}, s{sB}, {XCS}"); g(f"s_add_u32 s{sB}, s{sB}, s3"); g(f"v_lshl_add_u32 v{vv}, v0, 3, s{sB}")
    g(f"s_cmp_eq_u32 s{sRed}, 0"); g(f"s_cselect_b32 s3, {OOB}, 0"); g(f"v_add_u32 v{vXw}, s3, v{vXw}"); g(f"v_add_u32 v{vRs}, s3, v{vRs}")
    g(f"s_cmp_eq_u32 s{sLam}, 0"); g(f"s_mov_b32 s3, 0xff00ff00"); g(f"s_cselect_b32 s{mOwn}, 0x00ff00ff, s3"); g(f"s_mov_b32 s{mOwn+1}, s{mOwn}")
    g(f"v_and_b32 v{vFl}, 3, v0"); g(f"v_lshlrev_b32 v{vFl}, 2, v{vFl}"); g(f"s_lshl_b32 s3, s{sH}, 7"); g(f"s_add_u32 s3, s3, {FLW}"); g(f"v_add_u32 v{vFl}, s3, v{vFl}")
    g(f"v_mov_b32 v{vNeed}, 0")
    g(f"v_and_b32 v{vTmp}, 7, v0")
    for r in range(4):
        g(f"v_mov_b32 v{vSel+r}, 0")
        g(f"v_cmp_eq_u32 vcc, {2*r}, v{vTmp}"); g(f"v_mov_b32 v{vM}, 0x3f80"); g(f"s_nop 1")
        g(f"v_cndmask_b32 v{vSel+r}, v{vSel+r}, v{vM}, vcc")
        g(f"v_cmp_eq_u32 vcc, {2*r+1}, v{vTmp}"); g(f"v_mov_b32 v{vM}, 0x3f800000"); g(f"s_nop 1")
        g(f"v_cndmask_b32 v{vSel+r}, v{vSel+r}, v{vM}, vcc")
    g(f"v_lshrrev_b32 v{vTmp}, 5, v0"); g(f"v_cmp_ne_u32 vcc, s{sLam}, v{vTmp}"); g(f"v_mov_b32 v{vM}, 0xff61b1e6"); g(f"s_nop 1")
    for r in range(4): g(f"v_cndmask_b32 v{vBias+r}, 0, v{vM}, vcc")
    srd(g, 8, 18, 8*1280)
    g(f"s_lshl_b32 s3, s{sU}, 1"); g(f"v_lshrrev_b32 v{vM}, 5, v0"); g(f"v_add_u32 v{vM}, s3, v{vM}")
    g(f"v_lshrrev_b32 v{vM+1}, 2, v{vM}"); g(f"v_lshlrev_b32 v{vM+1}, 6, v{vM+1}"); g(f"v_and_b32 v{vM}, 3, v{vM}"); g(f"v_lshl_add_u32 v{vM+1}, v{vM}, 3, v{vM+1}")
    g(f"v_and_b32 v{vTmp}, 7, v0"); g(f"s_mov_b32 s3, 1280"); g(f"v_mul_lo_u32 v{vTmp}, v{vTmp}, s3")
    g(f"v_and_b32 v{vM}, 16, v0"); g(f"v_lshl_add_u32 v{vTmp}, v{vM}, 1, v{vTmp}"); g(f"v_add_u32 v{vTmp}, v{vTmp}, v{vM+1}")
    g(f"buffer_load_dwordx2 v[{vM0}:{vM0+1}], v{vTmp}, {WT}, 0 offen")
    g(f"s_mov_b32 s{sC1}, {hex(f32bits(128**-0.5*math.log2(math.e)))}")
    bulk.hblk(g,sKV,sH); g(f"s_add_u32 s{sKV}, s{sKV}, {KQ}")
    pre.dbsrd(g)
    g(f"v_lshlrev_b32 v{vM+7}, 2, v0")
    g(f"buffer_load_dword v{vM+8}, v{vM+7}, {pre.DB}, 0 offen sc1")
    g(f"v_lshrrev_b32 v{vT1}, 2, v0"); g(f"v_and_b32 v{vT2}, 7, v{vT1}"); g(f"s_lshl_b32 s3, s{sW}, 1"); g(f"v_xor_b32 v{vT2}, s3, v{vT2}")
    g(f"v_lshlrev_b32 v{vT1}, 8, v{vT1}"); g(f"v_lshl_add_u32 v{vT1}, v{vT2}, 5, v{vT1}"); g(f"v_and_b32 v{vT2}, 3, v0"); g(f"v_lshl_add_u32 v{vT1}, v{vT2}, 3, v{vT1}")
    g("s_waitcnt vmcnt(0)")
    lsl=g.uniq("cs"); lok=g.uniq("ck")
    g(f"s_lshl_b32 s3, s{sX}, 3"); g(f"v_readlane_b32 s{sA}, v{vM+8}, {(pre.BA[0]+128)//4}"); g(f"v_readlane_b32 s{sPAR}, v{vM+8}, 36"); g(f"v_readlane_b32 s{sB}, v{vM+8}, s3")
    g(f"s_mov_b32 s{bulk.sSlow}, 0"); g("s_nop 2")
    g(f"s_sub_u32 s{sPAR}, s{sPAR}, 1")
    g(f"s_cmp_eq_u32 s{sA}, 0"); g(f"s_cbranch_scc1 {lsl}")
    g(f"s_cmp_ge_u32 s{sB}, {999 if opt.get('force_slow') else 32}"); g(f"s_cbranch_scc1 {lok}")
    g.label(lsl)
    pre.wait_bar(g,*pre.BA,vM)
    bulk.group_local(g,vM)
    g.label(lok)
    g(f"buffer_store_dwordx2 v[{vM0}:{vM0+1}], v{vRs}, {WS}, s{sMEM} offen sc1")
    g(f"buffer_load_dword v{vTmp}, v{vFl}, {WS}, 0 offen sc1")
    g("s_barrier")
    for j in range(4):
        g(f"s_xor_b32 s3, s{sW}, {j}"); g(f"s_mul_i32 s3, s3, 40960"); g(f"v_add_u32 v{vT2}, s3, v{vT1}"); g(f"v_xor_b32 v{vT3}, 32, v{vT2}")
        for ii in range(5):
            for t in range(2):
                b=80*t+4*POS(j,ii)
                g(f"ds_read_b64_tr_b16 a[{b}:{b+1}], v{vT2 if t==0 else vT3} offset:{ii*8192}")
                g(f"ds_read_b64_tr_b16 a[{b+2}:{b+3}], v{vT2 if t==0 else vT3} offset:{ii*8192+4096}")
    g("s_waitcnt lgkmcnt(0)"); g("s_barrier")
    tl(g,opt.get("trace"),DBG3+16384,101,2,vM)
    g(f"s_mov_b32 s{sT}, -1")

    def kvdma(lo,hi,gap):
        for i in range(lo,hi):
            reg=i//8
            if opt.get("direct"): reg=[1,3,0,2][reg]
            kv,lam=reg>>1,reg&1
            if i%8==0 or i==lo:
                g(f"s_add_u32 s{sA}, s{sT}, {1-LAG*lam}" if 1-LAG*lam>=0 else f"s_sub_u32 s{sA}, s{sT}, {LAG*lam-1}")
                bulk.blk(g,3,sA,sKV,0); g(f"s_add_u32 s3, s3, {kv*(VO-KQ)+lam*LST}")
                g(f"s_cmp_lt_u32 s{sA}, 64"); g(f"s_cselect_b32 s{sKVc}, s3, {OOB}")
            if i%4==0 or i==lo:
                g(f"s_mov_b32 m0, {L_KV+reg*8192+((i//4)&1)*4096}"); g("s_nop 0")
            g(f"buffer_load_dwordx4 v{vL16 if (i//4)%2==0 else vL16b}, {WS}, s{sKVc} offen offset:{1024*(i%4)} sc1 lds")
            if gap: g(f"s_nop {gap-1}")
    def loader(n1,gap):
        lend=g.uniq("ld")
        g(f"s_cmp_lg_u32 s{sW}, 0"); g(f"s_cbranch_scc1 {lend}")
        g(f"s_add_u32 s{sA}, s{sT}, 1"); g(f"s_sub_u32 s{sB}, s{sA}, {LAG}")
        g(f"s_add_u32 s3, s{sA}, 1"); g(f"s_cmp_lt_u32 s{sA}, 64"); g(f"s_cselect_b32 s3, s3, 0"); g(f"v_writelane_b32 v{vNeed}, s3, 0")
        g(f"s_add_u32 s3, s{sB}, 1"); g(f"s_cmp_lt_u32 s{sB}, 64"); g(f"s_cselect_b32 s3, s3, 0"); g(f"v_writelane_b32 v{vNeed}, s3, 1")
        g(f"s_max_i32 s3, s{sT}, 0"); g("s_min_u32 s3, s3, 64"); g(f"v_writelane_b32 v{vNeed}, s3, 2")
        g(f"s_cmp_gt_i32 s{sT}, {LAG}"); g(f"s_cselect_b32 s3, s{sT}, 0"); g(f"v_writelane_b32 v{vNeed}, s3, 3")
        if opt.get("free"):
            g("s_mov_b32 s3, 0")
            for i in range(2 if opt["free"]==1 else 4): g(f"v_writelane_b32 v{vNeed}, s3, {i}")
        if n1 is None:
            g(f"buffer_load_dword v{vTmp}, v{vFl}, {WS}, 0 offen sc1")
            g("s_waitcnt vmcnt(0)")
        else:
            g("s_waitcnt vmcnt(0)")
            flagwait()
            kvdma(0,n1,gap)
        g.label(lend)
    def flagwait():
        lf=g.uniq("fl"); lfd=g.uniq("fld")
        g.label(lf)
        g(f"v_cmp_gt_u32 vcc, v{vNeed}, v{vTmp}")
        g(f"s_cbranch_vccz {lfd}")
        g(f"buffer_load_dword v{vTmp}, v{vFl}, {WS}, 0 offen sc1")
        g("s_waitcnt vmcnt(0)")
        timeout(g, lf)
        g.label(lfd)
    g(f"s_xor_b32 s29, s{sPAR}, {((PROBE>>21)^opt.get('cfar',0))&1}"); g("s_lshl_b32 s29, s29, 13")
    DIR=opt.get("direct",0); sC2,vC2=30,113+2
    if DIR:
        g(f"s_lshl_b32 s{sC2}, s{sH}, 8"); g(f"s_add_u32 s{sC2}, s{sC2}, s29"); g(f"s_add_u32 s{sC2}, s{sC2}, {CQKV1+4*(1-LAG)}")
        g(f"s_cmp_lg_u32 s{sW}, 0"); g(f"s_cselect_b32 s{sC2}, {OOB}, s{sC2}")
    def c2poll():
        g(f"v_mov_b32 v{vC2}, 0"); g("s_mov_b64 exec, 1")
        g(f"buffer_atomic_add v{vC2}, off, {WS}, s{sC2} sc0")
        g("s_mov_b64 exec, -1")
    loader(32,0)
    def xcbases():
        for s_ in range(4):
            g(f"s_xor_b32 s3, s{sPAR}, {(((XC>>21)+s_)^(PROBE>>21)^opt.get('far',0))&1}"); g("s_and_b32 s3, s3, 1"); g("s_lshl_b32 s3, s3, 13")
            g(f"s_add_u32 s{sXC+s_}, s3, {XC+(s_<<21)}")
    xcbases()
    assert not DIR
    tl(g,opt.get("trace"),DBG3+16384,101,3,vM)
    g(f"s_mov_b32 s{sT}, 0")
    if opt.get("ldiag")==2: g("s_memrealtime s[94:95]"); g("s_waitcnt lgkmcnt(0)")
    g(f"s_cmp_lg_u32 s{bulk.sSlow}, 0"); g(f"s_cbranch_scc1 L_{N}_loops")
    for LS,LN in (("","f"),(" sc1","s")):
        if opt.get("al") is not None:
            g.raw(".p2align 6, , 63" if False else ".p2align 8")
            for _ in range(opt["al"]): g("s_nop 0")
        g.label(f"L_{N}_loop{LN}")
        g.amf=bool(opt.get("amf"))
        for U in range(4):
            stamp_i[0]=0
            s4=U; s4n=(U+1)&3; s4z=(U+3)&3; s4y=(U+2)&3; s2=U&1; ph=1-((U>>1)&1)
            EXs=f"s{sEX+s4}"
            if opt.get("alu") and U>0:
                g.raw(f".p2align {opt['alu']}")
                for _ in range(opt["al"]%(1<<(opt['alu']-2))): g("s_nop 0")
            g(f"s_mov_b32 s{sTO}, 0")
            if opt.get("ldiag") and U==0:
                for tv,sr_ in ((8,84),(60,88)):
                    l=g.uniq("lt"); g(f"s_cmp_lg_u32 s{sT}, {tv}"); g(f"s_cbranch_scc1 {l}")
                    g(f"s_memrealtime s[{sr_}:{sr_+1}]"); g(f"s_memtime s[{sr_+2}:{sr_+3}]"); g("s_waitcnt lgkmcnt(0)"); g.label(l)
            dly("dly_mem")
            def mloads(j,s4=s4):
                L=[]
                if j<4: L+=[f"s_mov_b32 m0, s{sMm}","s_nop 0"]+[f"buffer_load_dwordx4 v{vAw}, {WS}, s{sMEM+s4} offen offset:{1024*i} sc1 lds" for i in range(j,4)]
                return L+[f"s_add_u32 m0, s{sMm}, 4096","s_nop 0",f"buffer_load_dwordx4 v{vMrb}, {WS}, s{sMEM+s4} offen sc1 lds"]
            def pm(t,i):
                d=q4('v',vAc+4*t); w=q4('a',80*t+4*i); x=q4('v',vM+4*i)
                return f"{MF} {d}, {x if t==2 else w}, {w if t==2 else x}, {'0' if i==0 else d}"
            if TP:
                def dmas(P,s4=s4):
                    L=[f"s_mov_b32 m0, s{sMm}","s_nop 0"]
                    for i in P:
                        if i==4: L+=[f"s_add_u32 m0, s{sMm}, 4096","s_nop 0",f"buffer_load_dwordx4 v{vMrb}, {WS}, s{sMEM+s4} offen sc1 lds"]
                        else: L.append(f"buffer_load_dwordx4 v{vAw}, {WS}, s{sMEM+s4} offen offset:{1024*i} sc1 lds")
                    return L
                rdp=lambda jj,i: f"ds_read_b128 {q4('v',vM+4*POS(jj,i))}, v{[vAw,vA1,vA2,vA3][jj]} offset:{L_MEM+1024*i}"
                def mx(P):
                    R=[vM+4*n+h for n in P for h in (0,2)]
                    return [f"v_max_u32 v{vTmp}, v{R[0]}, v{R[1]}"]+[f"v_max3_u32 v{vTmp}, v{vTmp}, v{R[i]}, v{R[i+1]}" for i in range(2,len(R),2)]+[f"v_cmp_eq_u32 vcc, -1, v{vTmp}"]
                stamp("mld")
                for x in dmas(PA): g(x)
                lq=g.uniq("tb")
                g(f"s_cmp_eq_u32 s{sP}, 0"); g(f"s_cbranch_scc1 {lq}")
                dly("dly_b1")
                g.label(lq)
                dly("dly_b0")
                for x in dmas(PB_): g(x)
                lp=g.uniq("pa")
                g("s_waitcnt vmcnt(3)")
                g.label(lp)
                for i in PA: g(rdp(0,i))
                g("s_waitcnt lgkmcnt(0)")
                for x in mx([0,1]): g(x)
                retry(lp, dmas(PA)+dmas(PB_)+["s_waitcnt vmcnt(3)"])
                stamp("mem")
                g("s_barrier")
                stamp("b1")
                for jj in range(1,4):
                    for i in PA: g(rdp(jj,i))
                for m in [pm(0,0),pm(1,0),pm(0,1),pm(1,1),pm(2,0),pm(2,1)]: g(m)
                g(f"buffer_store_dwordx2 v[{vSent}:{vSent+1}], v{vXw}, {WS}, s{sXC+s4y} offen sc1") if False else None
                BA=opt.get("ba",3)
                out=6
                for k in range(6):
                    g(f"s_waitcnt lgkmcnt({out-1})"); out-=1
                    g(pm(0,2+k)); g(pm(1,2+k))
                    if k==BA-1:
                        g("s_waitcnt vmcnt(0)")
                        for i in PB_: g(rdp(0,i))
                        out+=3
                    if k==BA:
                        lp=g.uniq("pb")
                        g("s_waitcnt lgkmcnt(0)"); out=5-k
                        g.label(lp)
                        for x in mx([8,9,10]): g(x)
                        retry(lp, dmas(PB_)+["s_waitcnt vmcnt(0)"]+[rdp(0,i) for i in PB_]+["s_waitcnt lgkmcnt(0)"])
                        g("s_barrier")
                        for jj in range(1,4):
                            for i in PB_: g(rdp(jj,i))
                        out+=9
                        g(f"buffer_store_dwordx2 v[{vSent}:{vSent+1}], v{vXw}, {WS}, s{sXC+s4y} offen sc1")
                for n in (8,9,10): g(pm(0,n)); g(pm(1,n))
                for k in range(9):
                    g(f"s_waitcnt lgkmcnt({8-k})")
                    g(pm(0,11+k)); g(pm(1,11+k))
                if diag: g(f"s_mov_b32 s12, s{sTO}")
                rem_loads=[f"buffer_load_dwordx4 {q4('v',vK+4*i)}, v{vRem}, {WS}, {EXs} offen offset:{1024*i} sc1" for i in range(2)]
                vm_loads=[f"buffer_load_dwordx4 {q4('v',vVM+4*i)}, v{vEXv}, {WS}, {EXs} offen offset:{1024*i} sc1" for i in range(2)]
            else:
                MR=opt.get("mreg",0)
                if MR: mloads=lambda j,s4=s4: [f"buffer_load_dwordx4 {q4('v',vM+4*i)}, v{vAw if i<4 else vMrb}, {WS}, s{sMEM+s4} offen offset:{1024*i if i<4 else 0} sc1" for i in range(j,5)]
                stamp("mld")
                for x in mloads(0): g(x)
                NE=opt.get("ne",4)
                lm=[g.uniq("pm") for i in range(5)]
                def mchk(i):
                    g(f"v_max_u32 v{vTmp}, v{vM+4*i}, v{vM+4*i+2}"); g(f"v_cmp_eq_u32 vcc, -1, v{vTmp}")
                    if opt.get("m2",0):
                        lc=g.uniq("mc"); lb=g.uniq("mb")
                        g(f"s_cbranch_vccnz {lc}")
                        g.label(lb)
                        def mc(lc=lc,lb=lb,i=i,s4=s4):
                            ld=lambda r: f"buffer_load_dwordx4 {q4('v',r)}, v{vAw if i<4 else vMrb}, {WS}, s{sMEM+s4} offen offset:{1024*i if i<4 else 0} sc1"
                            A,B=vM+4*i,vM+76
                            g.label(lc)
                            if opt["m2"]==1:
                                g(ld(A)); g("s_waitcnt vmcnt(0)")
                                g(f"v_max_u32 v{vTmp}, v{A}, v{A+2}"); g(f"v_cmp_eq_u32 vcc, -1, v{vTmp}")
                                lo=g.uniq("mo"); g(f"s_cbranch_vccz {lo}")
                                timeout(g, lc)
                                g.label(lo)
                            else:
                                l2=g.uniq("m2"); lo=g.uniq("mo"); lB=g.uniq("mB")
                                g(ld(A)); g(f"s_nop {opt.get('m2g',15)}"); g(f"s_nop {opt.get('m2g',15)}")
                                g.label(l2)
                                g(ld(B)); g("s_waitcnt vmcnt(1)")
                                g(f"v_max_u32 v{vTmp}, v{A}, v{A+2}"); g(f"v_cmp_eq_u32 vcc, -1, v{vTmp}"); g(f"s_cbranch_vccz {lo}")
                                g(ld(A)); g("s_waitcnt vmcnt(1)")
                                g(f"v_max_u32 v{vTmp}, v{B}, v{B+2}"); g(f"v_cmp_eq_u32 vcc, -1, v{vTmp}"); g(f"s_cbranch_vccz {lB}")
                                timeout(g, l2)
                                g.label(lB)
                                g(f"ds_write_b128 v{vAw}, {q4('v',B)} offset:{L_MEM+1024*i}")
                                g("s_waitcnt vmcnt(0) lgkmcnt(0)")
                                g(f"s_branch {lb}")
                                g.label(lo)
                            g(f"ds_write_b128 v{vAw}, {q4('v',A)} offset:{L_MEM+1024*i}")
                            g("s_waitcnt lgkmcnt(0)" if opt["m2"]==1 else "s_waitcnt vmcnt(0) lgkmcnt(0)")
                            g(f"s_branch {lb}")
                        cold.append(mc)
                    else:
                        retry(lm[i], mloads(i)+[f"s_waitcnt vmcnt({4-i})", f"ds_read_b128 {q4('v',vM+4*i)}, v{vAw} offset:{L_MEM+1024*i}"])
                    if i<NE: g(pm(0,i)); g(pm(1,i))
                if opt.get("m1",0):
                    g.label(lm[0])
                    for i in range(5):
                        g(f"s_waitcnt vmcnt({4-i})")
                        g(f"ds_write_b128 v{vAw}, {q4('v',vM+4*i)} offset:{L_MEM+1024*i}" if MR else f"ds_read_b128 {q4('v',vM+4*i)}, v{vAw} offset:{L_MEM+1024*i}")
                        n=i if MR else i-1
                        if n>=0:
                            if not MR: g("s_waitcnt lgkmcnt(1)")
                            g(f"v_max_u32 v{vTmp}, v{vM}, v{vM+2}" if n==0 else f"v_max3_u32 v{vTmp}, v{vTmp}, v{vM+4*n}, v{vM+4*n+2}")
                            if n<NE: g(pm(0,n)); g(pm(1,n))
                    if not MR:
                        g("s_waitcnt lgkmcnt(0)"); g(f"v_max3_u32 v{vTmp}, v{vTmp}, v{vM+16}, v{vM+18}")
                    g(f"v_cmp_eq_u32 vcc, -1, v{vTmp}")
                    lc=g.uniq("mc")
                    g(f"s_cbranch_vccnz {lc}")
                    if MR: g("s_waitcnt lgkmcnt(0)")
                    def mcold(lc=lc,back=lm[0],mloads=mloads):
                        g.label(lc)
                        g("s_waitcnt lgkmcnt(0)")
                        lj_=g.uniq("mj")
                        for j in range(5):
                            ln=g.uniq("mn")
                            if j<4:
                                g(f"v_max_u32 v{vTmp}, v{vM+4*j}, v{vM+4*j+2}"); g(f"v_cmp_eq_u32 vcc, -1, v{vTmp}"); g(f"s_cbranch_vccz {ln}")
                            for x in mloads(j): g(x)
                            if j<4: g(f"s_branch {lj_}"); g.label(ln)
                        g.label(lj_)
                        timeout(g, back)
                    cold.append(mcold)
                elif MR:
                    for i in range(5):
                        g.label(lm[i])
                        g(f"s_waitcnt vmcnt({4-i})")
                        g(f"ds_write_b128 v{vAw}, {q4('v',vM+4*i)} offset:{L_MEM+1024*i}")
                        if MR==1 or i in (2,4):
                            lo=i if MR==1 else (0 if i==2 else 3)
                            R=[vM+4*n+h for n in range(lo,i+1) for h in (0,2)]
                            g(f"v_max_u32 v{vTmp}, v{R[0]}, v{R[1]}")
                            for x in range(2,len(R),2): g(f"v_max3_u32 v{vTmp}, v{vTmp}, v{R[x]}, v{R[x+1]}")
                            g(f"v_cmp_eq_u32 vcc, -1, v{vTmp}")
                            retry(lm[lo], ["s_waitcnt lgkmcnt(0)"]+mloads(lo))
                            for n in range(lo,i+1):
                                if n<NE: g(pm(0,n)); g(pm(1,n))
                    g("s_waitcnt lgkmcnt(0)")
                else:
                    g("s_waitcnt vmcnt(4)")
                    g(f"ds_read_b128 {q4('v',vM)}, v{vAw} offset:{L_MEM}")
                    for i in range(1,5):
                        g.label(lm[i-1])
                        g(f"s_waitcnt vmcnt({4-i})")
                        g(f"ds_read_b128 {q4('v',vM+4*i)}, v{vAw} offset:{L_MEM+1024*i}")
                        g("s_waitcnt lgkmcnt(1)"); mchk(i-1)
                    g.label(lm[4])
                    g("s_waitcnt lgkmcnt(0)"); mchk(4)
                if diag: g(f"s_mov_b32 s12, s{sTO}")
                stamp("mem")
                g("s_barrier")
                rd=lambda k: f"ds_read_b128 {q4('v',vM+20+4*k)}, v{[vA1,vA2,vA3][k//5]} offset:{L_MEM+1024*(k%5)}"
                rem_loads=[f"buffer_load_dwordx4 {q4('v',vK+4*i)}, v{vRem}, {WS}, {EXs} offen offset:{1024*i} sc1" for i in range(2)]
                vm_loads=[f"buffer_load_dwordx4 {q4('v',vVM+4*i)}, v{vEXv}, {WS}, {EXs} offen offset:{1024*i} sc1" for i in range(2)]
                stamp("b1")
                if opt.get("sp",0):
                    NR0=opt.get("nr0",3); nxt=NR0
                    for k in range(NR0): g(rd(k))
                    for m in [pm(t,i) for i in range(NE,5) for t in range(2)]+[pm(2,i) for i in range(2)]:
                        g(m)
                        if nxt<opt.get("nr1",6): g(rd(nxt)); nxt+=1
                    for k in range(15):
                        if nxt<15 or k in (10,12): g(f"s_waitcnt lgkmcnt({nxt-1-k if nxt<15 else {10:3,12:0}[k]})")
                        elif k<10: g(f"s_waitcnt lgkmcnt({14-k})")
                        g(pm(0,5+k))
                        if nxt<15: g(rd(nxt)); nxt+=1
                        g(pm(1,5+k))
                        if k==11: g(f"buffer_store_dwordx2 v[{vSent}:{vSent+1}], v{vXw}, {WS}, s{sXC+s4y} offen sc1") if opt["sp"]==2 else None
                        if k==0 and opt["sp"]==1: g(f"buffer_store_dwordx2 v[{vSent}:{vSent+1}], v{vXw}, {WS}, s{sXC+s4y} offen sc1")
                else:
                    NR0=opt.get("nr0",6)
                    for k in range(NR0): g(rd(k))
                    nxt=NR0
                    for m in [pm(t,i) for i in range(NE,5) for t in range(2)]+[pm(2,i) for i in range(2)]:
                        g(m)
                        for _ in range(2):
                            if nxt<15: g(rd(nxt)); nxt+=1
                    while nxt<15: g(rd(nxt)); nxt+=1
                    if opt.get('xz_b1'): g(f"buffer_store_dwordx2 v[{vSent}:{vSent+1}], v{vXw}, {WS}, s{sXC+s4y} offen sc1")
                    rsl=[f"buffer_store_dwordx2 v[{vSent}:{vSent+1}], v{vRs}, {WS}, s{sMEM+s4z} offen{LS}",
                         f"buffer_store_dwordx4 {q4('v',vSent)}, v{vTst}, {WS}, s{sEX+s4y} offen{LS}",
                         f"buffer_store_dwordx2 v[{vSent}:{vSent+1}], v{vTst3}, {WS}, s{sEX+s4y} offen{LS}"] if opt.get("rs_b1") else []
                    WK=opt.get("wk",list(range(15)))
                    for k in range(15):
                        if k in WK:
                            nx=min([x for x in WK if x>k]+[15])
                            g(f"s_waitcnt lgkmcnt({15-nx})")
                        g(pm(0,5+k)); g(pm(1,5+k))
                        if rsl and k%2==1: g(rsl.pop(0))
            stamp("kdone")
            qat=opt.get("q_at",16); vat=opt.get("v_at",1)
            lds=[f"ds_read_b128 {q4('v',vQ+4*i)}, v{vL16} offset:{L_QK+1024*i}" for i in range(4)]
            lds+=[f"ds_read_b128 {q4('v',vKS+4*i)}, v{vKSa} offset:{L_KV+1024*i}" for i in range(8)]
            vsr=[f"ds_read_b128 {q4('a',aVS+4*i)}, v{vVSa} offset:{L_KV+16384+1024*i}" for i in range(4)]
            V2=opt.get("v2",0)
            for i in range(2,20):
                g(pm(2,i))
                if i<4 and not V2: g(vsr.pop(0)); g(vsr.pop(0))
                if i==(3 if V2 else 4):
                    if V2: g("s_nop 1")
                    for r in range(4): g(f"v_cvt_pk_bf16_f32 v{vAc+r}, v{vAc+2*r}, v{vAc+2*r+1}")
                    g(f"buffer_store_dwordx4 {q4('v',vAc)}, v{vTst}, {WS}, {EXs} offen{LS}")
                    g(f"ds_write_b128 v{vTst2}, {q4('v',vAc)} offset:{L_QK}")
                if V2 and 4<=i<8: g(vsr.pop(0))
                if i==7: g(f"s_waitcnt lgkmcnt({4 if V2 else 0})"); g("s_barrier")
                if i>=8: g(lds.pop(0))
                if i==qat:
                    for l in rem_loads: g(l)
            stamp("vdone")
            if qat>=20:
                dly("dly_q")
                for l in rem_loads: g(l)
                g("s_nop 4")
            else: g("s_nop 6")
            g(f"v_cvt_pk_bf16_f32 v{vAc+8}, v{vAc+8}, v{vAc+9}"); g(f"v_cvt_pk_bf16_f32 v{vAc+9}, v{vAc+10}, v{vAc+11}")
            g(f"buffer_store_dwordx2 v[{vAc+8}:{vAc+9}], v{vTst3}, {WS}, {EXs} offen{LS}")
            if U==(NSTEP-1)%4:
                g(f"s_cmp_eq_u32 s{sT}, {NSTEP-1}"); g(f"s_cbranch_scc1 L_{N}_last")
            stamp("pub2")
            def chk8(b,n=16):
                R=[b+i for i in range(0,n,2)]
                g(f"v_max_u32 v{vTmp}, v{R[0]}, v{R[1]}")
                for i in range(2,len(R),2): g(f"v_max3_u32 v{vTmp}, v{vTmp}, v{R[i]}, v{R[i+1]}")
                g(f"v_cmp_eq_u32 vcc, -1, v{vTmp}")
            t0,t1=vMx,vMx+1
            S2=opt.get("s2",0)
            def scores(Q,K,first,rem_loads=rem_loads,vm_loads=vm_loads):
                sa=[f"{MF} {q4('v',vS+4)}, {q4('v',vKS+4*j)}, {q4('v',Q+4*j)}, {'0' if j==0 else q4('v',vS+4)}" for j in range(4)]
                sb=[f"{MF} {q4('v',vS+8)}, {q4('v',vKS+16+4*j)}, {q4('v',Q+4*j)}, {'0' if j==0 else q4('v',vS+8)}" for j in range(4)]
                sm=[f"{MF} {q4('v',vS)}, {q4('v',K+4*j)}, {q4('v',Q+4*j)}, {q4('v',vBias) if j==0 else q4('v',vS)}" for j in range(4)]
                mv=[f"v_mov_b32_dpp v{vK+8+i}, v{vK+i} row_ror:8 row_mask:0xf bank_mask:0xf" for i in range(8)]
                g("s_waitcnt lgkmcnt(0)")
                if first:
                    for x in sa+sb: g(x)
                lp=g.uniq("pq")
                g("s_waitcnt vmcnt(1)")
                g.label(lp)
                g(f"v_max_u32 v{vTmp}, v{vK}, v{vK+4}"); g(f"v_cmp_eq_u32 vcc, -1, v{vTmp}")
                retry(lp, rem_loads+["s_waitcnt vmcnt(0)"])
                stamp("qok")
                if first:
                    interleave(g, sm[:2], mv, per=4); g("s_nop 0")
                    interleave(g, sm[2:], vm_loads if S2 else [], per=1)
                else:
                    interleave(g, [sa[0],sb[0],sa[1],sb[1],sm[0],sm[1]], mv, per=2)
                    interleave(g, [sa[2],sb[2],sa[3],sb[3],sm[2],sm[3]], vm_loads if S2 else [], per=1, start=2)
            l0=g.uniq("p0"); l1=g.uniq("p1")
            g(f"s_cmp_eq_u32 s{sP}, 0"); g(f"s_cbranch_scc1 {l0}")
            scores(vK,vQ,False)
            g.label(l1)
            def p0(l0=l0,l1=l1,scores=scores):
                g.label(l0); scores(vQ,vK,True); g(f"s_branch {l1}")
            cold.append(p0)
            if diag: g(f"s_mov_b32 s13, s{sTO}")
            stamp("kok")
            if not S2:
                for l in vm_loads: g(l)
            g("s_nop 1")
            g(f"v_max3_f32 v{t0}, v{vS+4}, v{vS+5}, v{vS+6}")
            g(f"v_max3_f32 v{t0}, v{t0}, v{vS+7}, v{vS+8}")
            g(f"v_max3_f32 v{t0}, v{t0}, v{vS+9}, v{vS+10}")
            g(f"v_max_f32 v{t0}, v{t0}, v{vS+11}")
            if S2: g("s_nop 1")
            g(f"v_max3_f32 v{t0}, v{t0}, v{vS}, v{vS+1}")
            g(f"v_max3_f32 v{t0}, v{t0}, v{vS+2}, v{vS+3}")
            g(f"v_mov_b32 v{t1}, v{t0}"); g("s_nop 1")
            g(f"v_permlane16_swap_b32 v{t0}, v{t1}"); g(f"v_max_f32 v{t0}, v{t0}, v{t1}")
            g(f"v_mov_b32 v{t1}, v{t0}"); g("s_nop 1")
            g(f"v_permlane32_swap_b32 v{t0}, v{t1}"); g(f"v_max_f32 v{t0}, v{t0}, v{t1}")
            g(f"v_mul_f32 v{t0}, s{sC1}, v{t0}")
            for i in range(4,12): g(f"v_fma_f32 v{vS+i}, v{vS+i}, s{sC1}, -v{t0}")
            for i in range(4,12): g(f"v_exp_f32 v{vS+i}, v{vS+i}")
            g(f"v_fma_f32 v{vS}, v{vS}, s{sC1}, -v{t0}")
            for i in range(4): g(f"v_cvt_pk_bf16_f32 v{vP+i}, v{vS+4+2*i}, v{vS+5+2*i}")
            for i in range(1,3): g(f"v_fma_f32 v{vS+i}, v{vS+i}, s{sC1}, -v{t0}")
            Ps=q4('v',vP); Pm_lo=q4('v',vPm+2); Pm_hi=q4('v',vPm)
            g(f"{MF} {q4('v',vLs)}, {q4('v',vOne)}, {Ps}, 0")
            g(f"v_fma_f32 v{vS+3}, v{vS+3}, s{sC1}, -v{t0}")
            if S2==2:
                ck=[f"v_max_u32 v{vTmp}, v{vVM}, v{vVM+2}", f"v_max3_u32 v{vTmp}, v{vTmp}, v{vVM+4}, v{vVM+6}", f"v_cmp_eq_u32 vcc, -1, v{vTmp}"]
                for i in range(4):
                    g(f"{MF} {q4('v',vO+4*i)}, {q4('a',aVS+4*i)}, {Ps}, 0")
                    g(f"v_exp_f32 v{vS+i}, v{vS+i}")
                g("s_waitcnt vmcnt(0)")
                for x in ck: g(x)
                g(f"v_cvt_pk_bf16_f32 v{vPm+2}, v{vS}, v{vS+1}")
                g(f"v_cvt_pk_bf16_f32 v{vPm+3}, v{vS+2}, v{vS+3}")
                lp=g.uniq("pv"); g.label(lp)
                retry(lp, vm_loads+["s_waitcnt vmcnt(0)"]+ck)
                g("s_nop 0")
                g(f"{MF} {q4('v',vLs)}, {q4('v',vOne)}, {Pm_lo}, {q4('v',vLs)}")
            else:
                for i in range(4):
                    g(f"{MF} {q4('v',vO+4*i)}, {q4('a',aVS+4*i)}, {Ps}, 0")
                    g(f"v_exp_f32 v{vS+i}, v{vS+i}")
                g(f"v_cvt_pk_bf16_f32 v{vPm+2}, v{vS}, v{vS+1}")
                g(f"v_cvt_pk_bf16_f32 v{vPm+3}, v{vS+2}, v{vS+3}")
                stamp("vwait")
                lp=g.uniq("pv")
                g("s_waitcnt vmcnt(0)")
                if S2: g("s_nop 0"); g(f"{MF} {q4('v',vLs)}, {q4('v',vOne)}, {Pm_lo}, {q4('v',vLs)}")
                g.label(lp)
                chk8(vVM,8)
                retry(lp, vm_loads+["s_waitcnt vmcnt(0)"])
            stamp("vok")
            if not S2: g(f"{MF} {q4('v',vLs)}, {q4('v',vOne)}, {Pm_lo}, {q4('v',vLs)}")
            for i in range(4):
                g(f"{MF} {q4('v',vO+4*i)}, {q4('v',vVM+4*(i//2))}, {Pm_lo if i%2==0 else Pm_hi}, {q4('v',vO+4*i)}")
                if i==1 and S2==1: g(f"v_rcp_f32 v{vLs}, v{vLs}")
                if i==0 and not opt.get('xz_b1'): g(f"buffer_store_dwordx2 v[{vSent}:{vSent+1}], v{vXw}, {WS}, s{sXC+s4y} offen sc1")
            if DIR: c2poll()
            if S2!=1: g(f"v_rcp_f32 v{vLs}, v{vLs}")
            else: g("s_nop 0")
            if diag: g(f"s_mov_b32 s14, s{sTO}")
            g(f"s_mov_b64 exec, s[{mOwn}:{mOwn+1}]")
            for i in range(4):
                g(f"v_pk_mul_f32 v[{vO+4*i}:{vO+4*i+1}], v[{vO+4*i}:{vO+4*i+1}], v[{vLs}:{vLs+1}] op_sel_hi:[1,0]")
                g(f"v_pk_mul_f32 v[{vO+4*i+2}:{vO+4*i+3}], v[{vO+4*i+2}:{vO+4*i+3}], v[{vLs}:{vLs+1}] op_sel_hi:[1,0]")
                g(f"v_cvt_pk_bf16_f32 v{vS+2*i}, v{vO+4*i}, v{vO+4*i+1}")
                g(f"v_cvt_pk_bf16_f32 v{vS+2*i+1}, v{vO+4*i+2}, v{vO+4*i+3}")
                if i%2==1: g(f"ds_write_b128 v{vOa}, {q4('v',vS+4*(i//2))} offset:{L_O+1024*(i//2)}")
            g("s_mov_b64 exec, -1")
            stamp("ow")
            g("s_waitcnt lgkmcnt(0)")
            g("s_barrier")
            for j in range(4): g(f"ds_read_b128 {q4('v',vOf+4*j)}, v{vL16} offset:{L_O+1024*j}")
            stamp("ostg")
            def wo(bi,j,tq):
                d=vW+8*bi+4*tq; a=vWo+32*bi+8*j+4*tq if bi<2 else vWo+64+4*j
                return f"{MF} {q4('v',d)}, {q4('v',a)}, {q4('v',vOf+4*j)}, {'0' if j==0 else q4('v',d)}"
            tag=(lambda r: f"v_or_b32 v{r}, 1, v{r}") if ph else (lambda r: f"v_and_b32 v{r}, -2, v{r}")
            def wout(bi):
                d=vW+8*bi
                c=[f"v_cvt_pk_bf16_f32 v{d+r}, v{d+2*r}, v{d+2*r+1}" for r in range(4)]
                if bi<2:
                    return [c[0],c[1],tag(d),c[2],c[3],tag(d+2),f"buffer_store_dwordx4 {q4('v',d)}, v{vPCw}, {WS}, s{sPC+s2} offen offset:{1024*bi}{LS}"]
                return [c[0],c[1],tag(d),f"buffer_store_dwordx2 v[{d}:{d+1}], v{vPCh}, {WS}, s{sPC+s2} offen{LS}"]
            if opt.get("wo2",1)==3:
                for j in range(4):
                    g(f"s_waitcnt lgkmcnt({3-j})")
                    g(wo(0,j,0)); g(wo(0,j,1))
                w0=wout(0); w1=wout(1)
                M=[wo(2,j,0) for j in range(4)]+[wo(1,j,0) for j in range(4)]
                interleave(g, M, w0, per=3, start=2)
                interleave(g, [wo(1,j,1) for j in range(4)], wout(2), per=2, start=0)
                for x in w1[:3]: g(x)
                g("s_nop 4")
                for x in w1[3:]: g(x)
            elif opt.get("wo2",1)==2:
                for j in range(4):
                    g(f"s_waitcnt lgkmcnt({3-j})")
                    g(wo(0,j,0)); g(wo(0,j,1))
                for j in range(4): g(wo(2,j,0))
                w1=wout(1)
                interleave(g, [wo(1,j,0) for j in range(4)], wout(0), per=2, start=0)
                interleave(g, [wo(1,j,1) for j in range(4)], wout(2), per=2, start=0)
                for x in w1[:3]: g(x)
                g("s_nop 4")
                for x in w1[3:]: g(x)
            elif opt.get("wo2",1):
                for j in range(4):
                    g(f"s_waitcnt lgkmcnt({3-j})")
                    g(wo(2,j,0)); g(wo(0,j,0)); g(wo(0,j,1))
                w1=wout(1)
                interleave(g, [wo(1,j,0) for j in range(4)], wout(2), per=2, start=2)
                interleave(g, [wo(1,j,1) for j in range(4)], wout(0), per=2, start=0)
                for x in w1[:3]: g(x)
                g("s_nop 3")
                for x in w1[3:]: g(x)
            else:
                for j in range(4):
                    g(f"s_waitcnt lgkmcnt({3-j})")
                    g(wo(0,j,0)); g(wo(0,j,1))
                interleave(g, [wo(1,j,tq) for j in range(4) for tq in range(2)], wout(0), per=2, start=4)
                for j in range(4): g(wo(2,j,0))
                for x in wout(1): g(x)
                g("s_nop 0")
                for x in wout(2): g(x)
            stamp("wo")
            if U==0:
                lpa=g.uniq("pa"); lpb=g.uniq("pab")
                g(f"s_cmp_eq_i32 s{sPAR}, -1"); g(f"s_cbranch_scc1 {lpa}")
                g.label(lpb)
                def getpar(lpa=lpa,lpb=lpb):
                    g.label(lpa); pre.wait_bar(g,*pre.BA,vRD,par=True); xcbases(); g(f"s_branch {lpb}")
                cold.append(getpar)
            def resets(s4y=s4y):
                if opt.get("no_rs"): return
                g(f"buffer_store_dwordx4 {q4('v',vSent)}, v{vTst}, {WS}, s{sEX+s4y} offen{LS}")
                g(f"buffer_store_dwordx2 v[{vSent}:{vSent+1}], v{vTst3}, {WS}, s{sEX+s4y} offen{LS}")
            lnr=g.uniq("nr"); lj=g.uniq("rj")
            g(f"s_cmp_eq_u32 s{sRed}, 0"); g(f"s_cbranch_scc1 {lnr}")
            if opt.get("rs_pc"):
                g(f"buffer_store_dwordx2 v[{vSent}:{vSent+1}], v{vRs}, {WS}, s{sMEM+s4z} offen{LS}")
                resets()
            if TP:
                lq=g.uniq("tp")
                g(f"s_cmp_lg_u32 s{sP}, 0"); g(f"s_cbranch_scc1 {lq}")
                dly("dly_pc")
                g.label(lq)
                dly("dly_pca")
            else: dly("dly_pc")
            stamp("pcld")
            lp=g.uniq("pp")
            g.label(lp)
            for i in range(4): g(f"buffer_load_dwordx4 {q4('v',vRD+4*i)}, v{vRl+(i>>1)}, {WS}, s{sPC+s2} offen offset:{256*(i&1)} sc1")
            for i in range(4):
                g(f"s_waitcnt vmcnt({3-i})")
                d = vAc+4*(i&1)
                g(f"{MF} {q4('v',d)}, {q4('v',vSel)}, {q4('v',vRD+4*i)}, {'0' if i<2 else q4('v',d)}")
                if i==0: g(f"{'v_and_b32' if ph else 'v_or_b32'} v{vTmp}, v{vRD}, v{vRD+2}")
                elif ph: g(f"v_bitop3_b32 v{vTmp}, v{vTmp}, v{vRD+4*i}, v{vRD+4*i+2} bitop3:0x80")
                else: g(f"v_or3_b32 v{vTmp}, v{vTmp}, v{vRD+4*i}, v{vRD+4*i+2}")
            g(f"v_and_b32 v{vTmp}, 1, v{vTmp}")
            g(f"v_cmp_ne_u32 vcc, {ph}, v{vTmp}")
            retry(lp)
            if diag: g(f"s_mov_b32 s15, s{sTO}")
            stamp("red")
            g("s_barrier")
            stamp("bx")
            g("s_mov_b32 exec_lo, 0")
            g("s_nop 1")
            for r in range(4): g(f"v_mov_b32 v{vAc+r}, v{vAc+4+r}")
            g("s_mov_b32 exec_lo, -1")
            XB=opt.get("xbf",0)
            if XB:
                g(f"v_cvt_pk_bf16_f32 v{vAc+8}, v{vAc}, v{vAc+1}"); g(f"v_cvt_pk_bf16_f32 v{vAc+9}, v{vAc+2}, v{vAc+3}")
                for vv in [vXw]: g(f"buffer_store_dwordx2 v[{vAc+8}:{vAc+9}], v{vv}, {WS}, s{sXC+s4} offen sc1")
                for r in range(2):
                    g(f"v_lshlrev_b32 v{vAc+2*r}, 16, v{vAc+8+r}"); g(f"v_and_b32 v{vAc+2*r+1}, 0xffff0000, v{vAc+8+r}")
            else: g(f"buffer_store_dwordx4 {q4('v',vAc)}, v{vXw}, {WS}, s{sXC+s4} offen sc1")
            RB=opt.get("rs_b1",0)
            if not opt.get("rs_pc") and not RB:
                g(f"buffer_store_dwordx2 v[{vSent}:{vSent+1}], v{vRs}, {WS}, s{sMEM+s4z} offen{LS}")
                resets()
            dly("dly_xc")
            stamp("xcld")
            lp=g.uniq("px")
            g.label(lp)
            if XB:
                XA=opt.get("xat",0)
                xat=[f"v_mov_b32 v{vXR+i}, 0" for i in range(6)]+[f"buffer_atomic_or_x2 v[{vXR+2*k}:{vXR+2*k+1}], v{vXr[k]}, {WS}, s{sXC+s4} offen sc0" for k in range(3)]
                if XA==2:
                    for x in xat: g(x)
                else:
                    for k in range(3): g(f"buffer_load_dwordx2 v[{vXR+2*k}:{vXR+2*k+1}], v{vXr[k]}, {WS}, s{sXC+s4} offen sc1")
                lp2=g.uniq("px2"); g.label(lp2)
                for k in range(3):
                    g(f"s_waitcnt vmcnt({2-k})")
                    if k==0: stamp("xc1")
                    if k==2: stamp("xc3")
                    if k==2:
                        g(f"v_max3_u32 v{vTmp}, v{vXR}, v{vXR+2}, v{vXR+4}"); g(f"v_cmp_eq_u32 vcc, -1, v{vTmp}")
                    for r in range(2):
                        g(f"v_lshlrev_b32 v{vXR+8+2*r}, 16, v{vXR+2*k+r}"); g(f"v_and_b32 v{vXR+9+2*r}, 0xffff0000, v{vXR+2*k+r}")
                    src=vAc if k==0 else vAc+4
                    g(f"v_pk_add_f32 v[{vAc+4}:{vAc+5}], v[{src}:{src+1}], v[{vXR+8}:{vXR+9}]")
                    g(f"v_pk_add_f32 v[{vAc+6}:{vAc+7}], v[{src+2}:{src+3}], v[{vXR+10}:{vXR+11}]")
            else:
                for k in range(3): g(f"buffer_load_dwordx4 {q4('v',vXR+4*k)}, v{vXr[k]}, {WS}, s{sXC+s4} offen sc1")
                g("s_waitcnt vmcnt(1)")
                g(f"v_pk_add_f32 v[{vAc+4}:{vAc+5}], v[{vAc}:{vAc+1}], v[{vXR}:{vXR+1}]")
                g(f"v_pk_add_f32 v[{vAc+6}:{vAc+7}], v[{vAc+2}:{vAc+3}], v[{vXR+2}:{vXR+3}]")
                g(f"v_pk_add_f32 v[{vAc+4}:{vAc+5}], v[{vAc+4}:{vAc+5}], v[{vXR+4}:{vXR+5}]")
                g(f"v_pk_add_f32 v[{vAc+6}:{vAc+7}], v[{vAc+6}:{vAc+7}], v[{vXR+6}:{vXR+7}]")
                g("s_waitcnt vmcnt(0)")
                g(f"v_max3_u32 v{vTmp}, v{vXR}, v{vXR+4}, v{vXR+8}")
                g(f"v_cmp_eq_u32 vcc, -1, v{vTmp}")
                g(f"v_pk_add_f32 v[{vAc+4}:{vAc+5}], v[{vAc+4}:{vAc+5}], v[{vXR+8}:{vXR+9}]")
                g(f"v_pk_add_f32 v[{vAc+6}:{vAc+7}], v[{vAc+6}:{vAc+7}], v[{vXR+10}:{vXR+11}]")
            if XB and XA==1: retry(lp2, xat)
            else: retry(lp)
            g(f"v_cvt_pk_bf16_f32 v{vAc+4}, v{vAc+4}, v{vAc+5}")
            g(f"v_cvt_pk_bf16_f32 v{vAc+5}, v{vAc+6}, v{vAc+7}")
            if U<LAG or LAG>4:
                lo=g.uniq("ov"); lob=g.uniq("ovb")
                g(f"s_cmp_lt_u32 s{sT}, {LAG}"); g(f"s_cbranch_scc1 {lo}")
                g.label(lob)
                def ov(lo=lo,lob=lob):
                    g.label(lo)
                    g(f"s_mov_b32 exec_lo, 0xff00ff00"); g(f"s_mov_b32 exec_hi, 0xff00ff00")
                    g(f"v_mov_b32 v{vAc+4}, v{vM0}"); g(f"v_mov_b32 v{vAc+5}, v{vM0+1}")
                    g("s_mov_b64 exec, -1")
                    g(f"s_branch {lob}")
                cold.append(ov)
            g(f"buffer_store_dwordx2 v[{vAc+4}:{vAc+5}], v{vRs}, {WS}, s{sMEM+s4n} offen{LS}")
            g.label(lj)
            def nonred(lnr=lnr,lj=lj,resets=resets):
                g.label(lnr)
                if diag:
                    g(f"s_mov_b32 s15, s{sTO}"); stamp("red"); stamp("bx"); stamp("xcld"); stamp("pcld"); stamp("xc1"); stamp("xc3")
                loader(None,0)
                g("s_barrier")
                if not opt.get("rs_b1"): resets()
                dly("dly_kv")
                li=g.uniq("id")
                g(f"s_cmp_lg_u32 s{sW}, 0"); g(f"s_cbranch_scc1 {li}")
                if DIR:
                    lw=g.uniq("dw"); ld=g.uniq("dd")
                    g.label(lw)
                    g(f"v_readfirstlane_b32 s3, v{vC2}"); g("s_nop 3"); g("s_cmp_lt_u32 s3, 12"); g(f"s_cbranch_scc1 {ld}")
                    g("s_mov_b32 s3, 0"); g(f"v_writelane_b32 v{vNeed}, s3, 1")
                    g.label(ld)
                    lf=g.uniq("df")
                    g(f"v_cmp_gt_u32 vcc, v{vNeed}, v{vTmp}"); g(f"s_cbranch_vccz {lf}")
                    c2poll()
                    g(f"buffer_load_dword v{vTmp}, v{vFl}, {WS}, 0 offen sc1"); g("s_waitcnt vmcnt(0)")
                    timeout(g, lw)
                    g.label(lf)
                    g(f"s_add_u32 s{sC2}, s{sC2}, 4")
                else: flagwait()
                kvdma(0,opt.get("kv_end",32),opt.get("kv_gap2",6))
                dly("dly_w0")
                g(f"s_branch {lj}")
                g.label(li)
                dly("dly_idle")
                g(f"s_branch {lj}")
            cold.append(nonred)
            stamp("xc")
            if diag:
                g("s_waitcnt lgkmcnt(0)")
                g(f"s_lshl_b32 s3, s{sT}, 6"); g(f"s_mul_i32 s{sA}, s{sW}, 8192"); g(f"s_add_u32 s3, s3, s{sA}"); g(f"s_add_u32 s3, s3, 65536")
                g(f"v_mov_b32 v{vRD+8}, s12"); g(f"v_mov_b32 v{vRD+9}, s13"); g(f"v_mov_b32 v{vRD+10}, s14"); g(f"v_mov_b32 v{vRD+11}, s15"); g(f"v_mov_b32 v{vRD+13}, s{sTO}")
                for i in range(8): g(f"v_mov_b32 v{vRD+i}, s{ST+2*i}")
                g(f"v_mov_b32 v{vTmp}, s3")
                g("s_mov_b64 exec, 1")
                for i in range(4): g(f"ds_write_b128 v{vTmp}, {q4('v',vRD+4*i)} offset:{16*i}")
                g("s_mov_b64 exec, -1")
                g("s_waitcnt lgkmcnt(0)")
            g(f"s_add_u32 s{sT}, s{sT}, 1")
            if not opt.get("nofb"): g("s_barrier")
        g(f"s_branch L_{N}_loop{LN}")
        while cold: cold.pop(0)()
    g.amf=(opt.get("amf")==2)
    g.label(f"L_{N}_last")
    if opt.get("ldiag"):
        g("s_sub_u32 s85, s84, s92"); g(f"v_mov_b32 v{vRD+4}, s85")
        g("s_sub_u32 s84, s88, s84"); g("s_sub_u32 s86, s90, s86")
        g(f"v_mov_b32 v{vRD}, s84"); g(f"v_mov_b32 v{vRD+1}, s86")
        g(f"s_lshl_b32 s3, s{sH}, 3"); g(f"s_add_u32 s3, s3, {DBG3+32768}")
        g("s_mov_b64 exec, 1")
        g(f"buffer_store_dwordx2 v[{vRD}:{vRD+1}], off, {WS}, s3")
        g(f"buffer_store_dword v{vRD+4}, off, {WS}, s3 offset:256")
        if opt.get("ldiag")==2:
            pre.dbsrd(g)
            g("s_memrealtime s[84:85]"); g("s_waitcnt lgkmcnt(0)"); g("s_sub_u32 s84, s84, s92"); g("s_sub_u32 s94, s94, s92")
            g(f"v_mov_b32 v{vRD+2}, s84"); g(f"v_mov_b32 v{vRD+3}, s94")
            g(f"buffer_store_dwordx4 {q4('v',vRD)}, off, {pre.DB}, 0 offset:40")
        g("s_mov_b64 exec, -1")
    if diag:
        g("s_waitcnt lgkmcnt(0)")
        g(f"s_mul_i32 s{sA}, s{sW}, 8192"); g(f"s_add_u32 s{sA}, s{sA}, 65536")
        g(f"v_add_u32 v{vTmp}, s{sA}, v{vL16}")
        g(f"s_lshl_b32 s3, s{sH}, 3"); g(f"s_add_u32 s3, s3, s{sW}"); g(f"s_lshl_b32 s{sA}, s{sP}, 2"); g(f"s_add_u32 s3, s3, s{sA}"); g(f"s_mul_i32 s3, s3, 5120"); g(f"s_add_u32 s3, s3, {DBG}")
        for i in range(5):
            g(f"ds_read_b128 {q4('v',vRD)}, v{vTmp} offset:{1024*i}")
            g("s_waitcnt lgkmcnt(0)")
            g(f"buffer_store_dwordx4 {q4('v',vRD)}, v{vL16}, {WS}, s3 offen")
            g(f"s_add_u32 s3, s3, 1024")
            g("s_waitcnt vmcnt(0)")
    g("s_endpgm")
```

```python
import os
S=2048; D=640; H=32; DH=128; NSEG=64; M=8
LAG=int(os.environ.get('LAG','5'))
NSTEP=NSEG+LAG
AHEAD=(LAG+2)//2*2
NX=int(os.environ.get("NX","4"))
HX=32//NX
WS_BYTES=268435456
def al(x,a=4096): return (x+a-1)//a*a
_o=0
def alloc(n):
    global _o
    r=_o; _o=al(_o+n); return r
FLW    = alloc(32*128)
CQKV   = alloc(32*256)
_o=al(_o,16384)
CQKV1  = alloc(2*32*256)
CO     = alloc(3*16384)
CPBS=2*32*512; CXNS=2*96*256
CPB    = alloc(4*CPBS)
CXN    = alloc(4*CXNS)
PC     = alloc(2*32*20480)
ZERO_END=_o
MEM    = alloc(4*4*20480)
EX     = alloc(4*32*12288)
SENT_END=_o
_o=al(_o,1<<21)
XCS=49152
XC     = alloc(4<<21)
_o=al(_o,16384)
PROBE  = alloc(8*16384)
_o=al(_o,1<<22)
KQ     = alloc(2*64*32*16384)
VO     = alloc(2*64*32*16384)
LST    = 64*32*16384
PB     = alloc(2*64*8*81920)
XN     = alloc(2*64*40960)
KVT    = alloc(640*4096)
YT     = alloc(32*81920)
DBG    = alloc(2<<20)
DBG2   = alloc(1024*80*32)
DBG3   = alloc(65536)
assert _o<=WS_BYTES, _o
OOB = WS_BYTES
CLEARS=[(0,ZERO_END,0),(ZERO_END,SENT_END,-1)]+[(XC+(s<<21),XC+(s<<21)+4*XCS,-1) for s in range(4)]
```

```python
from asmlib import *
from layout import *
import chain as ch
import bulk as bk
from chain import WS,WT,MF,q4,sX,sTK,sW,sTO,sPAR,timeout
W2="s[12:15]"; DB="s[96:99]"
sHI,sRole=82,83
CH_LDS=13312
KVO,EO,OO=0,4608,4608+4160
NH=88; NHW=4*NH
BA,BB,BY1,BC1,BC2,BY2=(4,88),(68,40),(8,160),(72,8),(12,64),(76,160)
BB2=(80,40)
ROW1,ROW2=352,544
def dbsrd(g): srd(g, 96, 44, 256)

def arrive_w(g, bar, v):
    off,n=bar
    dbsrd(g)
    l=g.uniq("aw")
    g(f"v_mov_b32 v{v}, 1"); g("s_mov_b64 exec, 1")
    g(f"buffer_atomic_add v{v}, off, {DB}, 0 offset:{off} sc0")
    g("s_waitcnt vmcnt(0)")
    g(f"v_cmp_eq_u32 vcc, {n-1}, v{v}"); g(f"s_cbranch_vccz {l}")
    g(f"buffer_store_dword v{v}, off, {DB}, 0 offset:{off+128} sc1")
    g.label(l)
    g("s_mov_b64 exec, -1")

def arrive(g, bar):
    g("s_waitcnt vmcnt(0)"); g("s_barrier")
    l=g.uniq("ar")
    g(f"s_cmp_lg_u32 s{sW}, 3"); g(f"s_cbranch_scc1 {l}")
    arrive_w(g,bar,1)
    g.label(l)

def wait_bar(g, off, n, v, par=False):
    dbsrd(g)
    g(f"v_mov_b32 v{v}, {off+128}")
    if par: g("s_mov_b32 s3, 144"); g(f"v_writelane_b32 v{v}, s3, 1")
    lp=g.uniq("wb"); ld=g.uniq("wbd")
    g(f"s_mov_b32 s{sTO}, 0"); g(f"s_mov_b64 exec, {3 if par else 1}")
    g.label(lp)
    g(f"buffer_load_dword v{v+1}, v{v}, {DB}, 0 offen sc1")
    g("s_waitcnt vmcnt(0)")
    g(f"v_cmp_eq_u32 vcc, 0, v{v+1}")
    g(f"s_cbranch_vccz {ld}")
    g("s_sleep 2")
    timeout(g, lp)
    g.label(ld)
    g("s_mov_b64 exec, -1")
    if par:
        g(f"v_readlane_b32 s{sPAR}, v{v+1}, 1"); g("s_nop 3"); g(f"s_sub_u32 s{sPAR}, s{sPAR}, 1")

def wait_wg(g, off, n, v, par=False):
    l=g.uniq("ww")
    g(f"s_cmp_lg_u32 s{sW}, 0"); g(f"s_cbranch_scc1 {l}")
    wait_bar(g,off,n,v,par)
    g.label(l)
    g("s_barrier")
    if par: wait_bar(g,off,n,v,par)

def probe(g):
    g("s_mov_b32 s64, 0xffff"); g("s_mov_b32 s65, 0xffff"); g("s_mov_b32 s62, 0")
    g("s_getreg_b32 s70, hwreg(HW_REG_XCC_ID, 2, 1)"); g("s_lshl_b32 s70, s70, 13")
    g("v_lshlrev_b32 v1, 8, v0"); g("v_mov_b32 v2, 0")
    dbsrd(g)
    g.label("L_probe0")
    g(f"s_sub_u32 s61, s{sHI}, 80"); g("s_lshl_b32 s61, s61, 14"); g(f"s_add_u32 s61, s61, {PROBE}"); g("s_add_u32 s63, s61, 8192")
    g("s_mov_b64 exec, -1")
    g(f"buffer_store_dword v2, v1, {WS}, s61 offen sc1")
    g("s_waitcnt vmcnt(0)")
    g("s_mov_b64 exec, 1")
    g.label("L_probe")
    for half in range(2):
        g(f"s_add_u32 s60, s61, {half*8192}"); g("s_xor_b32 s60, s60, s70")
        g("s_memtime s[66:67]"); g("s_waitcnt lgkmcnt(0)")
        g(f"buffer_load_dword v3, off, {WS}, s60 sc1")
        g("s_waitcnt vmcnt(0)")
        g("s_memtime s[68:69]"); g("s_waitcnt lgkmcnt(0)")
        g("s_sub_u32 s68, s68, s66"); g(f"s_min_u32 s{64+half}, s{64+half}, s68")
    g("s_add_u32 s61, s61, 2048")
    g("s_cmp_lt_u32 s61, s63"); g("s_cbranch_scc1 L_probe")
    g("s_cmp_lg_u32 s62, 0"); g("s_cbranch_scc1 L_probe_dec")
    g("s_sub_u32 s66, 0x10000, s64"); g("s_sub_u32 s67, 0x10000, s65")
    g("v_mov_b32 v4, s66"); g("v_mov_b32 v5, s67"); g("v_mov_b32 v3, 1")
    g(f"buffer_atomic_umax v4, off, {DB}, 0 offset:24"); g(f"buffer_atomic_umax v5, off, {DB}, 0 offset:28")
    g("s_waitcnt vmcnt(0)")
    g(f"buffer_atomic_add v3, off, {DB}, 0 offset:16 sc0")
    g("s_waitcnt vmcnt(0)")
    g("v_cmp_eq_u32 vcc, 7, v3"); g("s_cbranch_vccz L_probe_done")
    g(f"buffer_atomic_umax v4, off, {DB}, 0 offset:24 sc0"); g(f"buffer_atomic_umax v5, off, {DB}, 0 offset:28 sc0")
    g("s_waitcnt vmcnt(0)")
    g("v_readfirstlane_b32 s66, v4"); g("v_readfirstlane_b32 s67, v5"); g("s_nop 3")
    g("s_sub_u32 s64, 0x10000, s66"); g("s_sub_u32 s65, 0x10000, s67")
    g.label("L_probe_dec")
    g("s_add_u32 s62, s62, 1")
    g("s_absdiff_i32 s60, s64, s65")
    g("s_cmp_ge_u32 s62, 5"); g("s_cselect_b32 s60, 0xffff, s60")
    g("s_cmp_lt_u32 s60, 112"); g("s_cbranch_scc1 L_probe0")
    g("s_cmp_gt_u32 s64, s65"); g("s_cselect_b32 s60, 2, 1"); g("v_mov_b32 v3, s60")
    g(f"buffer_store_dword v3, off, {DB}, 0 offset:144 sc1")
    g("v_mov_b32 v4, s62"); g(f"buffer_store_dword v4, off, {DB}, 0 offset:60 sc1")
    g.label("L_probe_done")
    g("s_mov_b64 exec, -1")

sHW,sA,sB,sInv,sEps,sRow,sCh,sLB,sN=60,73,74,63,68,69,70,71,72
P=lambda r: f"v[{r}:{r+1}]"

def ln_rows(g, stride, end, between=None):
    srd(g, 8, 16, 2048*1280)
    g("v_lshlrev_b32 v1, 4, v0"); g("v_lshlrev_b32 v2, 3, v0")
    g("v_cmp_lt_u32 vcc, 31, v0"); g(f"v_mov_b32 v3, {OOB}"); g("s_nop 1"); g("v_cndmask_b32 v7, v2, v3, vcc")
    g(f"s_mov_b32 s{sInv}, {hex(ch.f32bits(1/640))}"); g(f"s_mov_b32 s{sEps}, {hex(ch.f32bits(1e-5))}")
    def rowload(add):
        g(f"s_add_u32 s3, s{sN}, {add}"); g("s_mul_i32 s3, s3, 1280")
        for i in range(3): g(f"buffer_load_dwordx2 v[{48+2*i}:{48+2*i+1}], v{2 if i<2 else 7}, {WT}, s3 offen offset:{512*i}")
    rowload(0)
    if between: between()
    else: g("s_waitcnt vmcnt(0)")
    l=g.uniq("ln")
    g.label(l)
    bk.unpack6(g,12,48)
    if not between: rowload(stride)
    g(f"s_and_b32 s3, s{sN}, 15")
    bk.xn_addr(g, 4, 9, 3)
    g("v_cndmask_b32 v8, v4, v3, vcc")
    bk.layernorm(g,12,36,10,11,9,sInv,sEps,packed=24)
    g(f"s_mul_i32 s3, s{sN}, 1280"); g(f"s_add_u32 s3, s3, {XN}")
    for i in range(3): g(f"buffer_store_dwordx2 v[{24+2*i}:{24+2*i+1}], v{4 if i<2 else 8}, {WS}, s3 offen offset:{512*i} sc1")
    if not between:
        g(f"s_add_u32 s{sN}, s{sN}, {stride}")
        g("s_waitcnt vmcnt(3)")
        g(f"s_cmp_lt_u32 s{sN}, {end}"); g(f"s_cbranch_scc1 {l}")

def conv_loads(g, hi, h=True, k=True):
    nK = 4 if hi else 2; vH=96; vKv = 240 if hi else vH+8
    if h:
        g(f"s_lshl_b32 s{sA}, s{sCh}, 12"); g(f"s_add_u32 s{sB}, s{sA}, 2")
        for i in range(nK): g(f"buffer_load_dwordx4 {q4('v',vH+4*i)}, v130, {WT}, s{sA} offen offset:{1024*i}")
        for i in range(nK): g(f"buffer_load_dwordx4 {q4('v',vH+16+4*i)}, v130, {WT}, s{sB} offen offset:{1024*i}")
        g(f"s_lshl_b32 s3, s{sCh}, 1")
        g(f"buffer_load_ushort v{vH+32}, off, {W2}, s3")
    if k:
        g(f"s_lshl_b32 s3, s{sCh}, 12"); g(f"s_add_u32 s3, s3, {KVT}")
        for i in range(nK): g(f"buffer_load_dwordx4 {q4('v',vKv+4*i)}, v130, {WS}, s3 offen offset:{1024*i} sc1")
def conv_pref(g, hi):
    srd(g, 8, 38, 640*4096); srd(g, 12, 40, 1280)
    g("v_lshlrev_b32 v130, 4, v0")
    conv_loads(g, hi, True, bool(hi))

def conv(g, hi, step, pre_wait=None):
    nK = 4 if hi else 2
    nX = 8 if hi else 4
    srd(g, 8, 38, 640*4096); srd(g, 12, 40, 1280)
    g("v_lshlrev_b32 v130, 4, v0")
    g(f"v_add_u32 v7, s{sLB}, v130")
    for i in range(4): g(f"v_mov_b32 v{8+i}, 0")
    g("s_mov_b32 exec_hi, 0"); g(f"ds_write_b128 v7, v[8:11] offset:{KVO}")
    g("s_mov_b32 exec_lo, 3"); g(f"ds_write_b128 v7, v[8:11] offset:{EO}"); g(f"ds_write_b128 v7, v[8:11] offset:{OO}")
    g("s_mov_b64 exec, -1")
    vAa,vBa,vKa,vYa,vDd=14,16,15,13,12
    vFA,vFB,vD,vH=32,64,144,96
    g("v_and_b32 v8, 15, v0"); g("v_lshrrev_b32 v9, 5, v0"); g("v_sub_u32 v10, v8, v9"); g("v_lshlrev_b32 v10, 5, v10")
    g("v_and_b32 v11, 16, v0"); g("v_add_u32 v10, v10, v11")
    g(f"s_add_u32 s3, s{sLB}, {KVO+512-32*14}"); g(f"v_add_u32 v{vAa}, s3, v10")
    g("v_lshlrev_b32 v10, 5, v9"); g("v_lshl_add_u32 v10, v8, 1, v10"); g("v_sub_u32 v10, v10, v11")
    g("v_and_b32 v11, 1, v0"); g("v_cmp_eq_u32 vcc, 1, v11")
    g(f"v_mov_b32 v12, {OO+16}"); g(f"v_mov_b32 v11, {EO+18}"); g("s_nop 0"); g("v_cndmask_b32 v11, v12, v11, vcc")
    g(f"v_add3_u32 v{vBa}, v10, v11, s{sLB}")
    for m in range(1,nX): g(f"v_add_u32 v{vBa+m}, {512*m}, v{vBa}")
    g("v_lshlrev_b32 v10, 5, v8"); g("v_lshl_add_u32 v10, v9, 4, v10"); g("v_and_b32 v11, 16, v0"); g("v_lshrrev_b32 v11, 1, v11"); g("v_xor_b32 v11, 8, v11")
    g(f"s_add_u32 s3, s{sLB}, {KVO+512}"); g(f"v_add3_u32 v{vKa}, v10, v11, s3")
    g("v_and_b32 v10, 1, v0"); g("v_lshlrev_b32 v10, 4, v10"); g("v_lshrrev_b32 v11, 4, v0"); g("v_lshl_add_u32 v10, v11, 2, v10")
    g("s_mov_b32 s3, 40960"); g(f"v_mul_lo_u32 v{vYa}, v10, s3"); g("v_lshrrev_b32 v11, 1, v8"); g(f"v_lshl_add_u32 v{vYa}, v11, 3, v{vYa}")
    vKv = 240 if hi else vH+8
    if pre_wait:
        pre_wait(); conv_loads(g,hi,False,True)
    g("s_waitcnt vmcnt(0)")
    lt=g.uniq("cv")
    g.label(lt)
    g("s_waitcnt vmcnt(4)")
    for i in range(nK):
        g(f"ds_write_b128 v7, {q4('v',vKv+4*i)} offset:{KVO+512+1024*i}")
        g(f"ds_write_b128 v7, {q4('v',vH+4*i)} offset:{EO+32+1024*i}")
        g(f"ds_write_b128 v7, {q4('v',vH+16+4*i)} offset:{OO+32+1024*i}")
    g(f"v_lshlrev_b32 v8, 16, v{vH}"); g(f"v_lshlrev_b32 v{vDd}, 16, v{vH+32}")
    g("s_mov_b64 exec, 1"); g(f"ds_write_b32 v7, v8 offset:{OO+28}"); g("s_mov_b64 exec, -1")
    g(f"s_lshl_b32 s{sN}, s{sCh}, 6"); g(f"s_add_u32 s{sN}, s{sN}, {YT+hi*32*40960}")
    g(f"s_add_u32 s{sCh}, s{sCh}, s{step}")
    g("s_waitcnt lgkmcnt(0)")
    conv_loads(g,hi)
    def loads(ci):
        c0=2*ci; o=144*(ci&1); L=[]
        for x in range(nX):
            L.append(f"ds_read_b128 {q4('v',vFA+o+4*x)}, v{vAa} offset:{32*(14-c0)+512*x}")
            L.append(f"ds_read2_b32 v[{vFB+o+4*x}:{vFB+o+4*x+1}], v{vBa+x} offset0:{8*c0} offset1:{8*c0+1}")
            L.append(f"ds_read2_b32 v[{vFB+o+4*x+2}:{vFB+o+4*x+3}], v{vBa+x} offset0:{8*c0+2} offset1:{8*c0+3}")
        return L
    for x in loads(0): g(x)
    for ci in range(8):
        o=144*(ci&1)
        g("s_waitcnt lgkmcnt(0)")
        mf=[]
        for m in range(nX):
            for d in range(nX-m):
                i=m+d
                if i<4*hi: continue
                mf.append(f"{MF} {q4('v',vD+4*(i&3))}, {q4('v',vFB+o+4*m)}, {q4('v',vFA+o+4*d)}, {'0' if (ci==0 and m==0) else q4('v',vD+4*(i&3))}")
        interleave(g, mf, loads(ci+1) if ci<7 else [f"ds_read_b64 v[{vFA+2*i}:{vFA+2*i+1}], v{vKa} offset:{512*(i+4*hi)}" for i in range(4)], per=1 if hi else 2)
    g("s_waitcnt lgkmcnt(0)")
    for i in range(4):
        b=vFB+4*i
        g(f"v_and_b32 v{b}, 0xffff0000, v{vFA+2*i+1}"); g(f"v_lshlrev_b32 v{b+1}, 16, v{vFA+2*i+1}")
        g(f"v_and_b32 v{b+2}, 0xffff0000, v{vFA+2*i}"); g(f"v_lshlrev_b32 v{b+3}, 16, v{vFA+2*i}")
        for r in range(4): g(f"v_mul_f32 v{b+r}, v{b+r}, v{vDd}")
    bk.rnd_pairs(g,[vFB+i for i in range(16)],8)
    bk.rnd_pairs(g,[vD+i for i in range(16)],8)
    for i in range(0,16,2): g(f"v_pk_add_f32 {P(vD+i)}, {P(vD+i)}, {P(vFB+i)}")
    for rr in range(4):
        for q in range(2): g(f"v_cvt_pk_bf16_f32 v{160+2*rr+q}, v{vD+8*q+rr}, v{vD+8*q+4+rr}")
        g(f"buffer_store_dwordx2 {P(160+2*rr)}, v{vYa}, {WS}, s{sN} offen sc1")
        g(f"s_add_u32 s{sN}, s{sN}, 40960")
    g(f"s_cmp_lt_u32 s{sCh}, 640"); g(f"s_cbranch_scc1 {lt}")

def helper(g):
    T=bk.TRACE[0]
    g.label("L_helper")
    l=g.uniq("np"); l2=g.uniq("np")
    g(f"s_and_b32 s3, s{sHI}, 0x78"); g("s_cmp_lg_u32 s3, 80"); g(f"s_cbranch_scc1 {l2}")
    g(f"s_cmp_lg_u32 s{sW}, 0"); g(f"s_cbranch_scc1 {l}")
    probe(g)
    tl(g,T,DBG3,sHI,2)
    g.label(l)
    g("s_barrier")
    g(f"s_lshl_b32 s{sN}, s{sHI}, 2"); g(f"s_add_u32 s{sN}, s{sN}, s{sW}"); g(f"s_add_u32 s{sN}, s{sN}, {ROW1-320}")
    ln_rows(g,32,ROW2)
    arrive(g,BC1)
    tl(g,T,DBG3,sHI,1)
    g("s_branch L_help_done")
    g.label(l2)
    g(f"s_lshl_b32 s{sHW}, s{sHI}, 2"); g(f"s_add_u32 s{sHW}, s{sHW}, s{sW}")
    g(f"s_sub_u32 s3, s{sHW}, 32"); g(f"s_cmp_ge_u32 s{sHW}, 320"); g(f"s_cselect_b32 s{sHW}, s3, s{sHW}")
    def clears():
        for (lo,hi,val) in CLEARS:
            l=g.uniq("cl"); le=g.uniq("cle")
            for i in range(4): g(f"v_mov_b32 v{12+i}, {val}")
            g(f"s_lshl_b32 s{sA}, s{sHW}, 10"); g(f"s_add_u32 s{sA}, s{sA}, {lo}")
            g.label(l)
            g(f"s_cmp_ge_u32 s{sA}, {hi}"); g(f"s_cbranch_scc1 {le}")
            g(f"buffer_store_dwordx4 v[12:15], v1, {WS}, s{sA} offen sc1")
            g(f"s_add_u32 s{sA}, s{sA}, {NHW*1024}")
            g(f"s_branch {l}")
            g.label(le)
            g("s_nop 1")
        g(f"s_waitcnt vmcnt({sum((hi-lo)//1024//NHW for lo,hi,_ in CLEARS)})")
    g(f"s_mov_b32 s{sN}, s{sHW}")
    ln_rows(g,0,0,clears)
    arrive(g,BA)
    tl(g,T,DBG3,sHI,0)
    g(f"s_cmp_eq_u32 s{sRole}, 3"); g("s_cbranch_scc1 L_help_done")
    if bk.OPT.get("wpf",0):
        l=g.uniq("wp")
        g(f"s_cmp_lg_u32 s{sRole}, 0"); g(f"s_cbranch_scc1 {l}")
        NPF=bk.OPT.get("wpf",0)*5
        g("v_lshrrev_b32 v90, 1, v0"); g("v_lshlrev_b32 v90, 13, v90"); g("v_and_b32 v91, 1, v0"); g("v_lshl_add_u32 v90, v91, 7, v90")
        srd(g, 8, 20, 640*8192)
        g(f"s_cmp_lt_u32 s{sW}, 2"); g("s_cselect_b32 s8, s20, s22"); g("s_cselect_b32 s9, s21, s23"); g("s_and_b32 s9, s9, 0xffff")
        g(f"s_and_b32 s3, s{sW}, 1"); g(f"s_mul_i32 s{sA}, s3, {NPF*32*8192}"); g(f"s_lshl_b32 s3, s{sHI}, 8"); g(f"s_add_u32 s{sA}, s{sA}, s3")
        for i in range(NPF):
            g(f"buffer_load_dword v{230+i}, v90, {WT}, s{sA} offen"); g(f"s_add_u32 s{sA}, s{sA}, {32*8192}")
        g.label(l)
    l=g.uniq("k2")
    g(f"s_sub_u32 s{sHW}, s{sHW}, 128")
    g(f"s_cmp_eq_u32 s{sRole}, 1"); g(f"s_cbranch_scc1 {l}")
    g(f"s_add_u32 s3, s{sHW}, 288"); g(f"s_add_u32 s{sHW}, s{sHW}, 128"); g(f"s_cmp_eq_u32 s{sRole}, 0"); g(f"s_cselect_b32 s{sHW}, s3, s{sHW}")
    if bk.OPT.get("kvdefer",0): wait_wg(g,*BB,24)
    g.label(l)
    vK,vV,vWt=100,144,176
    srd(g, 8, 32, 2048*1280); srd(g, 12, 34, 2048*1280)
    g(f"s_mul_i32 s{sA}, s{sHW}, 6554"); g(f"s_lshr_b32 s{sA}, s{sA}, 16"); g(f"s_mul_i32 s3, s{sA}, 10"); g(f"s_sub_u32 s{sB}, s{sHW}, s3")
    g(f"s_mul_i32 s{sRow}, s{sA}, {64*1280}"); g(f"s_lshl_b32 s3, s{sB}, 7"); g(f"s_add_u32 s{sRow}, s{sRow}, s3")
    g("v_lshrrev_b32 v90, 3, v0"); g("s_mov_b32 s3, 10240"); g("v_mul_lo_u32 v91, v90, s3"); g("v_and_b32 v92, 7, v0"); g("v_lshl_add_u32 v91, v92, 4, v91")
    g(f"v_add_u32 v91, s{sRow}, v91")
    g("v_subrev_u32 v93, 3840, v91"); g("v_cmp_gt_i32 vcc, 0, v93"); g("s_nop 1"); g("v_cndmask_b32 v93, v93, v3, vcc")
    for r in range(3): g(f"buffer_load_dwordx4 {q4('v',vK+4*r)}, v93, {WT}, 0 offen offset:{1280*r}")
    for r in range(8):
        g(f"s_mov_b32 s3, {1280*r}")
        g(f"buffer_load_dwordx4 {q4('v',vK+12+4*r)}, v91, {WT}, s3 offen")
        g(f"buffer_load_dwordx4 {q4('v',vV+4*r)}, v91, {W2}, s3 offen")
    srd(g, 8, 36, 640*8)
    g("v_lshlrev_b32 v93, 6, v92"); g(f"s_lshl_b32 s3, s{sB}, 9")
    for i in range(4): g(f"buffer_load_dwordx4 {q4('v',vWt+4*i)}, v93, {WT}, s3 offen offset:{16*i}")
    vU,vA,vP,vW,vO,vT=12,36,52,68,76,84
    g("v_lshlrev_b32 v94, 15, v92"); g("v_lshl_add_u32 v94, v90, 4, v94")
    g(f"s_lshl_b32 s{sCh}, s{sB}, 18"); g(f"s_lshl_b32 s3, s{sA}, 7"); g(f"s_add_u32 s{sCh}, s{sCh}, s3"); g(f"s_add_u32 s{sCh}, s{sCh}, {KVT}")
    g("s_waitcnt vmcnt(0)")
    tl(g,T,DBG3,sHI,7)
    def rnd(D):
        for r in range(8):
            g(f"v_cvt_pk_bf16_f32 v{vT}, v{D+2*r}, v{D+2*r+1}"); g(f"v_lshlrev_b32 v{D+2*r}, 16, v{vT}"); g(f"v_and_b32 v{D+2*r+1}, 0xffff0000, v{vT}")
    for c in range(4):
        for r in range(11):
            g(f"v_lshlrev_b32 v{vU+2*r}, 16, v{vK+4*r+c}"); g(f"v_and_b32 v{vU+2*r+1}, 0xffff0000, v{vK+4*r+c}")
        for j in range(4):
            for h in range(2):
                src=vWt+4*c+2*h+j//2
                g(f"v_lshlrev_b32 v{vW+2*j+h}, 16, v{src}" if j%2==0 else f"v_and_b32 v{vW+2*j+h}, 0xffff0000, v{src}")
        for j in range(4):
            D=vA if j==0 else vP
            for r in range(8): g(f"v_pk_mul_f32 {P(D+2*r)}, {P(vU+2*(r+j))}, {P(vW+2*(3-j))}")
            rnd(D)
            if j>0:
                for r in range(8): g(f"v_pk_add_f32 {P(vA+2*r)}, {P(vA+2*r)}, {P(vP+2*r)}")
                rnd(vA)
        for r in range(8):
            g(f"v_lshlrev_b32 v{vU+2*r}, 16, v{vV+4*r+c}"); g(f"v_and_b32 v{vU+2*r+1}, 0xffff0000, v{vV+4*r+c}")
        for r in range(8): g(f"v_pk_mul_f32 {P(vA+2*r)}, {P(vA+2*r)}, {P(vU+2*r)}")
        for h in range(2):
            for q in range(4): g(f"v_cvt_pk_bf16_f32 v{vO+4*h+q}, v{vA+2*(7-2*q)+h}, v{vA+2*(6-2*q)+h}")
            g(f"s_add_u32 s3, s{sCh}, {(2*c+h)*4096}")
            g(f"buffer_store_dwordx4 {q4('v',vO+4*h)}, v94, {WS}, s3 offen sc1")
    l=g.uniq("k3")
    g(f"s_cmp_eq_u32 s{sRole}, 1"); g(f"s_cbranch_scc1 {l}")
    arrive(g,BB2)
    tl(g,T,DBG3,sHI,1)
    g("s_branch L_help_conv")
    g.label(l)
    arrive(g,BB)
    tl(g,T,DBG3,sHI,1)
    bk.wo_weights(g,0); bk.wo_weights(g,1)
    g.label("L_help_conv")
    g(f"s_cmp_ge_u32 s{sHI}, 64"); g("s_cbranch_scc1 L_help_done")
    g(f"s_lshl_b32 s{sCh}, s{sHI}, 2"); g(f"s_add_u32 s{sCh}, s{sCh}, s{sW}"); g(f"s_add_u32 s{sCh}, s{sCh}, 384")
    g(f"s_mul_i32 s{sLB}, s{sW}, {CH_LDS}"); g(f"s_mov_b32 s{sRow}, 640")
    conv_pref(g,0)
    call(g,"L_conv0")
    arrive(g,BY1)
    tl(g,T,DBG3,sHI,3)
    g.label("L_help_done")
    wait_wg(g,*BA,1)
    g(f"s_cmp_eq_u32 s{sRole}, 0"); g("s_cbranch_scc1 L_t4")
    g(f"s_cmp_eq_u32 s{sRole}, 1"); g("s_cbranch_scc1 L_wo")
    g(f"s_cmp_eq_u32 s{sRole}, 2"); g("s_cbranch_scc1 L_att")
    g("s_branch L_wm")

def t4_late(g, sR):
    g(f"s_lshl_b32 s{sHW}, s{sR}, 1"); g(f"s_and_b32 s3, s{sW}, 1"); g(f"s_add_u32 s{sHW}, s{sHW}, s3")
    g(f"s_mul_i32 s{sLB}, s3, {CH_LDS}"); g(f"s_add_u32 s{sLB}, s{sLB}, {81920+49152}")
    g(f"s_add_u32 s{sN}, s{sHW}, {ROW2}")
    ln_rows(g,64,2048)
    g("s_waitcnt vmcnt(0)"); arrive_w(g,BC2,1)
    g(f"s_add_u32 s{sCh}, s{sHW}, 384"); g(f"s_mov_b32 s{sRow}, 64")
    wait_bar(g,*BB2,1)
    conv_pref(g,1)
    call(g,"L_conv1")
    g("s_waitcnt vmcnt(0)"); arrive_w(g,BY2,1)
    wait_bar(g,*BY2,1)

def conv_subs(g):
    for hi in range(2):
        g.label(f"L_conv{hi}")
        conv(g,hi,sRow,(lambda: wait_wg(g,*BB,24)) if hi==0 else None)
        g("s_setpc_b64 s[76:77]")
def call(g, label):
    l=g.uniq("ca")
    g("s_getpc_b64 s[76:77]"); g.label(l)
    g(f"s_add_u32 s76, s76, {label}-{l}"); g("s_addc_u32 s77, s77, -1")
    g("s_swappc_b64 s[76:77], s[76:77]")
def qkv_conv(g, hi):
    g(f"s_mul_i32 s{sLB}, s{sW}, {CH_LDS}"); g(f"s_add_u32 s{sLB}, s{sLB}, 81920")
    g(f"s_mov_b32 s{sCh}, s75"); g(f"s_mov_b32 s{sRow}, 640")
    call(g,f"L_conv{hi}")
    arrive(g,BY2 if hi else BY1)
    tl(g,bk.TRACE[0],DBG3+16384,101,4+hi,131)
    if not hi:
        wait_wg(g,*BB2,24)
        g(f"s_mov_b32 s{sCh}, s75"); conv_pref(g,1)
```

```python
from asmlib import *
from layout import *
from chain import WS,WT,sX,sTK,sW,sTO,sPAR,timeout,dma_rows64,dma_voff,fl_voff,fl_dma,MF,q4,f32bits
import math
MF32="v_mfma_f32_32x32x16_bf16"
W2="s[12:15]"
TRACE=[False]
OPT={}
def trace(g, sItem, ev, vT):
    if not TRACE[0]: return
    g(f"s_memrealtime s[{84+2*ev}:{85+2*ev}]")
    g("s_waitcnt lgkmcnt(0)")
def tflush(g, sItem, v8):
    if not TRACE[0]: return
    g(f"s_lshl_b32 s96, s{sX}, 5"); g(f"s_add_u32 s96, s96, s{sTK}"); g("s_lshl_b32 s96, s96, 2"); g(f"s_add_u32 s96, s96, s{sW}")
    g("s_mul_i32 s96, s96, 80"); g(f"s_add_u32 s96, s96, s{sItem}"); g("s_lshl_b32 s96, s96, 5"); g(f"s_add_u32 s96, s96, {DBG2}")
    for i in range(6): g(f"v_mov_b32 v{v8+i}, s{84+2*i}")
    g("s_mov_b64 exec, 1")
    g(f"buffer_store_dwordx4 v[{v8}:{v8+3}], off, {WS}, s96")
    g(f"buffer_store_dwordx2 v[{v8+4}:{v8+5}], off, {WS}, s96 offset:16")
    g("s_mov_b64 exec, -1")

def tr32_addr(g, vD, vT):
    g(f"v_lshrrev_b32 v{vD}, 5, v0")
    g(f"v_lshlrev_b32 v{vD}, 8, v{vD}")
    g(f"v_and_b32 v{vT}, 12, v0")
    g(f"v_lshl_add_u32 v{vD}, v{vT}, 4, v{vD}")
    g(f"v_and_b32 v{vT}, 3, v0")
    g(f"v_lshl_add_u32 v{vD}, v{vT}, 3, v{vD}")
    g(f"v_lshrrev_b32 v{vT}, 1, v0")
    g(f"v_xor_b32 v{vT}, v{vT}, v0")
    g(f"v_and_b32 v{vT}, 16, v{vT}")
    g(f"v_lshl_add_u32 v{vD}, v{vT}, 1, v{vD}")

def load_w32(g, nst, row_stride, sA, sLB, vOff, vA, vT, sRot, phase=None):
    if phase!=1:
        fl_voff(g, vOff, vT, row_stride, 256)
        g(f"s_lshl_b32 s{sLB}, s{sW}, 13")
        g(f"s_mul_i32 s3, s{sW}, {32*row_stride}"); g(f"s_add_u32 s{sA}, s{sA}, s3")
        for B in range(nst):
            g(f"s_mul_i32 s{sTO}, s{sRot+B}, {128*row_stride}"); g(f"s_add_u32 s{sTO}, s{sTO}, s{sA}")
            fl_dma(g, vOff, sTO, 8, 4*row_stride, sLB, B*32768, two=True)
    if phase==0: return
    g(f"v_lshrrev_b32 v{vA}, 3, v0"); g(f"v_and_b32 v{vA}, 4, v{vA}"); g(f"v_bfe_u32 v{vT}, v0, 2, 2"); g(f"v_or_b32 v{vA}, v{vA}, v{vT}")
    g(f"v_bfe_u32 v{vT}, v0, 4, 1"); g(f"v_xor_b32 v{vT}, v{vT}, v{vA}"); g(f"s_lshl_b32 s3, s{sW}, 1"); g(f"v_xor_b32 v{vT}, s3, v{vT}")
    g(f"v_lshlrev_b32 v{vA}, 8, v{vA}"); g(f"v_lshl_add_u32 v{vA}, v{vT}, 5, v{vA}")
    g(f"v_and_b32 v{vT}, 3, v0"); g(f"v_lshl_add_u32 v{vA}, v{vT}, 3, v{vA}")
    for B in range(nst):
        g(f"s_waitcnt vmcnt({8*(nst-1-B)})"); g("s_barrier")
        for f in range(4):
            for gp in range(2):
                r=32*B+8*f+4*gp
                g(f"ds_read_b64_tr_b16 a[{r}:{r+1}], v{vA} offset:{f*8192+gp*2048}")
                g(f"ds_read_b64_tr_b16 a[{r+2}:{r+3}], v{vA} offset:{f*8192+gp*2048+4096}")
        g(f"v_add_u32 v{vA}, 0x8000, v{vA}")
    g("s_waitcnt lgkmcnt(0)")
    g("s_barrier")
    tl(g,TRACE[0],DBG3+16384,101,1)

def rot_table(g, sRot, sSrc, nst):
    for B in range(nst):
        g(f"s_add_u32 s{sRot+B}, s{sSrc}, {B}")
        g(f"s_sub_u32 s3, s{sRot+B}, {nst}")
        g(f"s_cmp_ge_u32 s{sRot+B}, {nst}"); g(f"s_cselect_b32 s{sRot+B}, s3, s{sRot+B}")

def gemm_stream(g, nst, Rd, Mf, staged, hooks={}, extra=(), every=3):
    K=8*nst; LA=4; extra=list(extra); n=[0]
    def Wt(B):
        if staged:
            g(f"s_waitcnt vmcnt({2*(nst-1-B)+n[0]})"); g("s_barrier")
    Wt(0)
    for k in range(LA): g(Rd(k))
    for k in range(K):
        if k in hooks: hooks[k]()
        g(f"s_waitcnt lgkmcnt({min(LA,K-k)-1})")
        if OPT.get("nomf")==2 and k>0:
            import re
            m=re.match(r"\S+ v\[(\d+):\d+\], (\S+), (\S+), .*",Mf(k)); c=int(m.group(1))+8*(k&1)
            g(f"{MF} {q4('v',c)}, {m.group(2)}, {m.group(3)}, {q4('v',c)}"); g(f"{MF} {q4('v',c+4)}, {m.group(3)}, {m.group(2)}, {q4('v',c+4)}")
        else: g("s_nop 6" if (OPT.get("nomf") and k>0) else Mf(k))
        if OPT.get("slow") and not staged: g(f"s_nop {OPT['slow']}")
        r=k+LA
        if r<K:
            if r%8==0: Wt(r//8)
            g(Rd(r))
        if extra and (k in every if isinstance(every,list) else k%every==0):
            g(extra.pop(0)); n[0]+=1
    assert not extra

L_FLAG=163840-64

def flag_store(g, vT, sAddr, sVal, fl=" sc1"):
    g(f"v_mov_b32 v{vT}, s{sVal}")
    g("s_mov_b64 exec, 1")
    g(f"buffer_store_dword v{vT}, off, {WS}, s{sAddr}{fl}")
    g("s_mov_b64 exec, -1")

sSlow=80
def lflag_store(g, vT, sAddr, sVal):
    l1=g.uniq("lf"); l2=g.uniq("lf")
    g(f"s_cmp_lg_u32 s{sSlow}, 0"); g(f"s_cbranch_scc1 {l1}")
    flag_store(g,vT,sAddr,sVal,""); g(f"s_branch {l2}")
    g.label(l1); flag_store(g,vT,sAddr,sVal," sc1"); g.label(l2)

def group_local(g, v):
    import pre
    pre.dbsrd(g)
    lp=g.uniq("gl"); ld=g.uniq("gld")
    g(f"v_lshlrev_b32 v{v}, 5, v0"); g(f"s_mov_b32 s{sTO}, 0")
    g.label(lp)
    g(f"buffer_load_dword v{v+1}, v{v}, {pre.DB}, 0 offen sc1")
    g("s_waitcnt vmcnt(0)")
    g(f"v_readlane_b32 s3, v{v+1}, s{sX}"); g(f"s_mov_b32 s{sSlow}, {1 if OPT.get('force_slow') else 0}"); g("s_nop 2")
    g("s_cmp_ge_u32 s3, 32"); g(f"s_cbranch_scc1 {ld}")
    g(f"s_mov_b32 s{sSlow}, 0")
    for i in range(8):
        g(f"v_readlane_b32 s3, v{v+1}, {i}"); g("s_nop 3"); g(f"s_add_u32 s{sSlow}, s{sSlow}, s3")
    g(f"s_cmp_ge_u32 s{sSlow}, 256"); g(f"s_cbranch_scc1 {ld}")
    g("s_sleep 4")
    timeout(g, lp)
    g.label(ld)

sN0,sN1=78,79
def near_setup(g, v, have=False):
    import pre
    if not have: pre.wait_bar(g,*pre.BA,v,par=True)
    g(f"s_xor_b32 s{sN0}, s{sPAR}, {((PROBE>>21)^OPT.get('cfar',0))&1}"); g(f"s_lshl_b32 s{sN0}, s{sN0}, 13"); g(f"s_xor_b32 s{sN1}, s{sN0}, 8192")
def blk(g, sD, sSeg, sBase, far, sN=None):
    g(f"s_lshl_b32 s{sD}, s{sSeg}, 19"); g(f"s_add_u32 s{sD}, s{sD}, s{sBase}")
    if sN is not None: g(f"s_xor_b32 s{sD}, s{sD}, s{sN}")
    elif far: g(f"s_xor_b32 s{sD}, s{sD}, 8192")
def hblk(g, sD, sH):
    g(f"s_and_b32 s100, s{sH}, 1"); g("s_lshl_b32 s100, s100, 13"); g(f"s_lshl_b32 s{sD}, s{sH}, 14"); g(f"s_add_u32 s{sD}, s{sD}, s100")
def spread_s(g, s):
    g(f"s_lshr_b32 s100, s{s}, 13"); g("s_lshl_b32 s100, s100, 13"); g(f"s_add_u32 s{s}, s{s}, s100")
def spread_v(g, v, t):
    g(f"v_and_b32 v{t}, 0xffffe000, v{v}"); g(f"v_add_u32 v{v}, v{v}, v{t}")

def poll_ge(g, vD, vAddr, sOff, need, mask=None, sleep=2):
    lp=g.uniq("pl"); ld=g.uniq("pld")
    g(f"s_mov_b32 s{sTO}, 0")
    if mask: g(f"s_mov_b64 exec, {mask}")
    g.label(lp)
    g(f"buffer_load_dword v{vD}, v{vAddr}, {WS}, {sOff} offen sc1")
    g("s_waitcnt vmcnt(0)")
    g(f"v_cmp_gt_u32 vcc, {need}, v{vD}")
    g(f"s_cbranch_vccz {ld}")
    if sleep: g(f"s_sleep {sleep}")
    timeout(g, lp)
    g.label(ld)
    if mask: g("s_mov_b64 exec, -1")

def signal(g, vOne, vAddr, sOff, mask, off=0):
    g(f"v_mov_b32 v{vOne}, 1")
    g("s_mov_b32 exec_hi, 0" if mask=="lo32" else f"s_mov_b64 exec, {mask}")
    g(f"buffer_atomic_add v{vOne}, v{vAddr}, {WS}, s{sOff} offen" + (f" offset:{off}" if off else ""))
    g("s_mov_b64 exec, -1")

def wait_cnt(g, vD, vAddr, sOff, need, mask="1", sleep=1, v2=None):
    lp=g.uniq("wc"); ld=g.uniq("wcd")
    g(f"s_mov_b32 s{sTO}, 0")
    g(f"s_mov_b64 exec, {mask}")
    poll=lambda v: (g(f"v_mov_b32 v{v}, 0"), g(f"buffer_atomic_add v{v}, v{vAddr}, {WS}, {sOff} offen sc0"))
    if v2 is not None and OPT.get("pipe",1):
        poll(vD); g(f"s_sleep {OPT.get('pipe_gap',5)}")
        g.label(lp)
        for a,c in ((v2,vD),(vD,v2)):
            poll(a)
            g("s_waitcnt vmcnt(1)")
            g(f"v_cmp_gt_u32 vcc, {need}, v{c}")
            g(f"s_cbranch_vccz {ld}")
    else:
        g.label(lp)
        poll(vD)
        g("s_waitcnt vmcnt(0)")
        g(f"v_cmp_gt_u32 vcc, {need}, v{vD}")
        g(f"s_cbranch_vccz {ld}")
        if sleep: g(f"s_sleep {sleep}")
    timeout(g, lp)
    g.label(ld)
    g("s_mov_b64 exec, -1")

def qkv(g, isv):
    N="qkv"+("v" if isv else "q")
    sH,sTy,sI,sA,sB,sLB,sOut,sFl,sSeg,sP1,sFx,sRot=52,53,54,55,56,57,58,59,60,61,62,64
    sFl1,sHf=63,82
    vOff,vA,vT,vSt,vFa,vPl,vLf=1,2,3,4,5,6,7
    vAd=8
    vF=32
    vC=64
    vPk=80
    g.label(f"L_{N}")
    g(f"s_mul_i32 s{sLB}, s{sW}, 40960")
    g(f"s_mul_i32 s{sFx}, s{sH}, 3"); g(f"s_add_u32 s{sFx}, s{sFx}, s{sTy}")
    g(f"s_mul_i32 s3, s{sFx}, 13108"); g("s_lshr_b32 s3, s3, 16"); g("s_mul_i32 s3, s3, 5"); g(f"s_sub_u32 s{sA}, s{sFx}, s3")
    rot_table(g, sRot, sA, 5)
    g(f"s_lshl_b32 s{sA}, s{sH}, 8")
    import pre
    load_w32(g, 5, 8192, sA, sLB, 4, vA, vT, sRot, 0)
    pre.dbsrd(g)
    g(f"buffer_load_dword v30, off, {pre.DB}, 0 offset:{pre.BA[0]+128} sc1")
    load_w32(g, 5, 8192, sA, sLB, 4, vA, vT, sRot, 1)
    lA=g.uniq("qa")
    g("v_cmp_eq_u32 vcc, 0, v30"); g(f"s_cbranch_vccz {lA}")
    pre.wait_bar(g,*pre.BA,1)
    g.label(lA)
    for B in range(5): g(f"s_lshl_b32 s{sRot+B}, s{sRot+B}, 8")
    vOff2=24
    def vsetup():
        g(f"v_lshrrev_b32 v{vOff}, 4, v0"); g("s_mov_b32 s3, 1280"); g(f"v_mul_lo_u32 v{vOff}, v{vOff}, s3")
        g(f"v_and_b32 v{vT}, 15, v0"); g(f"v_lshl_add_u32 v{vOff}, v{vT}, 4, v{vOff}")
        g(f"v_add_u32 v{vPl}, {4*1280}, v{vOff}")
        g(f"v_mov_b32 v{vOff2}, v{vPl}")
        g(f"v_and_b32 v{vA}, 31, v0"); g(f"v_lshlrev_b32 v{vA}, 8, v{vA}")
        g(f"v_lshrrev_b32 v{vSt}, 5, v0"); g(f"v_xor_b32 v{vSt}, v{vSt}, v{vT}")
        for j in range(8):
            g(f"v_xor_b32 v{vAd+j}, {2*j}, v{vSt}")
            g(f"v_lshl_add_u32 v{vAd+j}, v{vAd+j}, 4, v{vA}")
            g(f"v_add_u32 v{vAd+8+j}, 40960, v{vAd+j}")
        g(f"v_lshrrev_b32 v{vSt}, 5, v0"); g(f"v_lshlrev_b32 v{vSt}, 8, v{vSt}")
        g(f"v_lshl_add_u32 v{vSt}, v{vT}, 4, v{vSt}")
        g(f"v_and_b32 v{vA}, 16, v0"); g(f"v_lshl_add_u32 v{vSt}, v{vA}, {6 if isv else 8}, v{vSt}")
        g(f"s_lshl_b32 s3, s{sW}, {11 if isv else 10}"); g(f"v_add_u32 v{vSt}, s3, v{vSt}")
        g(f"v_mul_u32_u24 v{vFa}, {CXNS}, v0"); g(f"v_mov_b32 v{vLf}, {L_FLAG}")
    vsetup()
    g(f"s_lshl_b32 s75, s{sFx}, 2"); g(f"s_add_u32 s75, s75, s{sW}")
    hblk(g,sOut,sH); g(f"s_add_u32 s{sOut}, s{sOut}, {VO if isv else KQ}")
    g(f"s_cmp_eq_u32 s{sTy}, 0"); g(f"s_cselect_b32 s{sHf}, 8192, 0")
    g(f"s_lshl_b32 s{sFl}, s{sH}, 8"); g(f"s_add_u32 s{sFl}, s{sFl}, {CQKV}")
    g(f"s_lshl_b32 s{sB}, s{sW}, 11")
    g(f"s_mov_b32 s{sI}, 0")
    g(f"s_mov_b32 s{sP1}, 0")
    def dma(layer, sS, defer=False, buf=None):
        buf=layer if buf is None else buf
        g(f"s_mul_i32 s{sA}, s{sS}, 40960"); g(f"s_mul_i32 s3, s{sW}, {8*1280}"); g(f"s_add_u32 s{sA}, s{sA}, s3"); g(f"s_add_u32 s{sA}, s{sA}, {XN+layer*64*40960}")
        L=[f"s_add_u32 m0, s{sB}, {buf*40960+B*8192+1024*e}\ns_add_u32 s3, s{sA}, s{sRot+B}\nbuffer_load_dwordx4 v{vOff2 if e else vOff}, {WS}, s3 offen sc1 lds" for B in range(5) for e in range(2)]
        if defer: return L
        for x in L: g(x)
    def compute(layer, staged, hooks={}, extra=(), buf=None):
        buf=layer if buf is None else buf
        Rd=lambda k: f"ds_read_b128 {q4('v',vF+4*(k%8))}, v{vAd+8*buf+k%8} offset:{(k//8)*8192}"
        def Mf(k):
            x=q4('v',vF+4*(k%8)); w=q4('a',4*k)
            return f"{MF32} v[{vC}:{vC+15}], {x if isv else w}, {w if isv else x}, {'0' if k==0 else f'v[{vC}:{vC+15}]'}"
        gemm_stream(g,5,Rd,Mf,staged,hooks,extra,3)
        blk(g,3,sSeg,sOut,0,sHf)
        if layer: g(f"s_add_u32 s3, s3, {LST}")
        g("s_nop 8")
        P=vPk+8*buf
        for c in range(2):
            for h in range(2):
                a=c+2*h
                g(f"v_cvt_pk_bf16_f32 v{P+4*c+2*h}, v{vC+4*a}, v{vC+4*a+1}")
                g(f"v_cvt_pk_bf16_f32 v{P+4*c+2*h+1}, v{vC+4*a+2}, v{vC+4*a+3}")
            g(f"buffer_store_dwordx4 {q4('v',P+4*c)}, v{vSt}, {WS}, s3 offen offset:{512*c} sc1")
    def pend_flag():
        l=g.uniq("pf")
        g(f"s_cmp_eq_u32 s{sP1}, 0"); g(f"s_cbranch_scc1 {l}")
        g(f"s_lshl_b32 s3, s{sP1}, 2"); g(f"s_add_u32 s3, s3, s{sFl}"); g("s_sub_u32 s3, s3, 4")
        signal(g, vT, vFa, 3, "1")
        g(f"s_mov_b32 s{sP1}, 0")
        g.label(l)
    def sig2():
        g(f"s_lshl_b32 s3, s{sI}, 2"); g(f"s_add_u32 s3, s3, s{sFl1}")
        signal(g, vT, vFa, 3, "1")
    assert AHEAD%2==0
    g(f"s_mov_b32 s{pre.sCh}, s75")
    dma(0, sI)
    g("s_waitcnt vmcnt(0)")
    g.label(f"L_{N}_pre")
    for bf in range(2):
        g("s_barrier")
        g(f"s_mov_b32 s{sSeg}, s{sI}"); g(f"s_add_u32 s{sI}, s{sI}, 1")
        def h_p():
            g(f"s_waitcnt vmcnt(7)"); pend_flag()
        compute(0, False, {20:h_p}, extra=dma(0, sI, True, 1-bf), buf=bf)
        g(f"s_mov_b32 s{sP1}, s{sI}")
        if bf==0:
            l1=g.uniq("f1")
            g(f"s_cmp_lg_u32 s{sI}, 1"); g(f"s_cbranch_scc1 {l1}")
            g("s_waitcnt vmcnt(0)"); pend_flag()
            tl(g,TRACE[0],DBG3+16384,101,2)
            pre.conv_pref(g,0)
            l2=g.uniq("f2"); g(f"s_branch {l2}")
            g.label(l1)
        g("s_waitcnt vmcnt(2)")
        if bf==0: g.label(l2)
    lcv=g.uniq("cv")
    g(f"s_cmp_lg_u32 s{sI}, {OPT.get('conv_at',4)}"); g(f"s_cbranch_scc1 {lcv}")
    g("s_waitcnt vmcnt(0)"); pend_flag()
    pre.qkv_conv(g,0); vsetup()
    g.label(lcv)
    g(f"s_cmp_lt_u32 s{sI}, {AHEAD}"); g(f"s_cbranch_scc1 L_{N}_pre")
    g("s_waitcnt vmcnt(0)"); pend_flag()
    pre.qkv_conv(g,1); vsetup()
    pre.wait_wg(g,*pre.BC1,25)
    near_setup(g,25)
    g(f"s_cmp_lt_u32 s{sFx}, {56 if OPT.get('place',1)==1 else 96}"); g(f"s_cselect_b32 s3, s{sN1}, s{sN0}")
    g(f"s_lshl_b32 s{sFx}, s{sFx}, 8"); spread_s(g,sFx); g(f"s_add_u32 s{sFx}, s{sFx}, s3"); g(f"s_add_u32 s{sFx}, s{sFx}, {CXN}")
    g(f"s_add_u32 s{sFl1}, s{sFl}, s{sN0}"); g(f"s_add_u32 s{sFl1}, s{sFl1}, {CQKV1-CQKV-4*AHEAD}")
    g.label(f"L_{N}_block")
    lw=g.uniq("w"); lw2=g.uniq("w")
    g(f"s_lshl_b32 s{sA}, s{sI}, 2"); g(f"s_add_u32 s{sA}, s{sA}, s{sFx}"); g(f"s_sub_u32 s{sA}, s{sA}, {4*AHEAD}")
    g(f"s_cmp_lg_u32 s{sW}, 0"); g(f"s_cselect_b32 s3, {OOB}, s{sA}")
    g(f"v_mov_b32 v{vPl}, 8"); g("s_mov_b64 exec, 15"); g(f"v_mov_b32 v{vPl}, 0")
    g(f"buffer_atomic_add v{vPl}, v{vFa}, {WS}, s3 offen sc0")
    g("s_mov_b64 exec, -1")
    g("s_waitcnt vmcnt(0)")
    pend_flag()
    g(f"s_cmp_lg_u32 s{sW}, 0"); g(f"s_cbranch_scc1 {lw}")
    g(f"v_cmp_gt_u32 vcc, 8, v{vPl}"); g(f"s_cbranch_vccz {lw}")
    wait_cnt(g, 28, vFa, f"s{sA}", "8", mask="15", v2=29)
    g.label(lw)
    g("s_barrier")
    g.label(f"L_{N}_loop")
    lc=g.uniq("c2")
    g(f"s_cmp_lg_u32 s{sI}, {pre.ROW2//32}"); g(f"s_cbranch_scc1 {lc}")
    pre.wait_wg(g,*pre.BC2,25)
    g.label(lc)
    trace(g,sI,0,vT)
    g(f"s_sub_u32 s{sSeg}, s{sI}, {AHEAD}")
    dma(1, sSeg)
    g(f"s_min_u32 s{sTO}, s{sI}, 63")
    compute(1, True, {0:lambda: trace(g,sI,4,vT)}, extra=dma(0, sTO, True))
    trace(g,sI,1,vT)
    l_no0=g.uniq("n0")
    g(f"s_cmp_ge_u32 s{sI}, 64"); g(f"s_cbranch_scc1 {l_no0}")
    g("s_waitcnt vmcnt(2)")
    g("s_barrier")
    g(f"s_lshl_b32 s{sA}, s{sI}, 2"); g(f"s_add_u32 s{sA}, s{sA}, s{sFx}"); g(f"s_sub_u32 s{sA}, s{sA}, {4*AHEAD-4}")
    g(f"s_cmp_lg_u32 s{sW}, 0"); g(f"s_cselect_b32 s{sA}, {OOB}, s{sA}")
    g(f"v_mov_b32 v{vPl}, 8")
    g(f"s_mov_b32 s{sSeg}, s{sI}")
    def h_poll():
        g("s_mov_b64 exec, 15"); g(f"v_mov_b32 v{vPl}, 0")
        g(f"buffer_atomic_add v{vPl}, v{vFa}, {WS}, s{sA} offen sc0")
        g("s_mov_b64 exec, -1")
    def h_sig():
        g("s_waitcnt vmcnt(0)")
        sig2(); pend_flag()
        trace(g,sI,2,vT)
    compute(0, False, {OPT.get('qkv_sig',18):h_sig, OPT.get('qkv_poll',26):h_poll})
    trace(g,sI,3,vT)
    tflush(g,sI,100)
    g(f"s_add_u32 s{sI}, s{sI}, 1"); g(f"s_mov_b32 s{sP1}, s{sI}")
    lw=g.uniq("w")
    g(f"s_cmp_lg_u32 s{sW}, 0"); g(f"s_cbranch_scc1 {lw}")
    g(f"s_waitcnt vmcnt({2+(2 if TRACE[0] else 0)})")
    g(f"v_cmp_gt_u32 vcc, 8, v{vPl}"); g("s_nop 1"); g(f"v_mov_b32 v{vT}, vcc_lo")
    g(f"ds_write_b32 v{vLf}, v{vT}")
    g("s_waitcnt lgkmcnt(0)")
    g.label(lw)
    g("s_barrier")
    g(f"ds_read_b32 v{vT}, v{vLf}")
    g("s_waitcnt lgkmcnt(0)")
    g(f"v_readfirstlane_b32 s3, v{vT}")
    g("s_cmp_eq_u32 s3, 0"); g(f"s_cbranch_scc1 L_{N}_loop")
    g(f"s_branch L_{N}_block")
    g.label(l_no0)
    g("s_waitcnt vmcnt(0)")
    sig2()
    tflush(g,sI,100)
    g(f"s_add_u32 s{sI}, s{sI}, 1")
    g(f"s_cmp_lt_u32 s{sI}, {64+AHEAD}"); g(f"s_cbranch_scc1 L_{N}_block")
    g("s_endpgm")

def xsum4(g, v, t, op):
    g(f"v_mov_b32 v{t}, v{v}"); g("s_nop 1")
    g(f"v_permlane16_swap_b32 v{v}, v{t}")
    g(f"{op} v{v}, v{v}, v{t}")
    g(f"v_mov_b32 v{t}, v{v}"); g("s_nop 1")
    g(f"v_permlane32_swap_b32 v{v}, v{t}")
    g(f"{op} v{v}, v{v}, v{t}")

def rnd_pairs(g, regs, tmp):
    for i in range(0,len(regs),2):
        a,b=regs[i],regs[i+1]
        g(f"v_cvt_pk_bf16_f32 v{tmp}, v{a}, v{b}")
        g(f"v_lshlrev_b32 v{a}, 16, v{tmp}")
        g(f"v_and_b32 v{b}, 0xffff0000, v{tmp}")

def warm(g):
    import chain
    N="wm"
    sH,sT,sA,sNeed,sFW,sIn,sB=52,53,54,55,56,57,58
    vO,vT,vFq,vZ,vC,vFl=1,2,3,4,5,6
    g.label(f"L_{N}")
    chain.startup_checks(g,OPT,1,sA,sB)
    near_setup(g,0,have=True)
    g(f"s_and_b32 s{sH}, s{sX}, 1"); g(f"s_lshl_b32 s{sH}, s{sH}, 1"); g(f"s_add_u32 s{sH}, s{sH}, s{sTK}"); g(f"s_sub_u32 s{sH}, s{sH}, 30")
    g(f"s_lshl_b32 s{sH}, s{sH}, 2"); g(f"s_add_u32 s{sH}, s{sH}, s{sW}"); g(f"s_lshl_b32 s{sH}, s{sH}, 1")
    g(f"v_lshlrev_b32 v{vO}, 7, v0"); g(f"v_lshlrev_b32 v{vFl}, 8, v0")
    g(f"s_add_u32 s{sA}, s{sN0}, {CQKV1}"); g(f"s_cmp_lt_u32 s{sX}, 2"); g(f"s_cselect_b32 s{sA}, {CQKV}, s{sA}")
    g(f"s_cselect_b32 s{sIn}, {KQ}, {KQ+LST+0}" if False else f"s_cselect_b32 s{sIn}, 0, {LST}"); g(f"s_cselect_b32 s{sFW}, 0, 8192")
    g(f"s_lshl_b32 s3, s{sH}, 8"); g(f"s_add_u32 s{sA}, s{sA}, s3"); g(f"v_add_u32 v{vFq}, s{sA}, v{vFl}")
    g(f"s_add_u32 s{sFW}, s{sFW}, s3"); g(f"s_add_u32 s{sFW}, s{sFW}, {FLW}")
    g(f"s_lshl_b32 s3, s{sH}, 14"); g(f"s_add_u32 s{sIn}, s{sIn}, s3"); g(f"s_add_u32 s{sIn}, s{sIn}, {KQ}")
    g(f"s_mov_b32 s{sT}, 0"); g(f"v_mov_b32 v{vZ}, 0"); g(f"v_mov_b32 v{vC}, 0"); g(f"v_mov_b32 v7, 0")
    g.label(f"L_{N}_loop")
    lg=g.uniq("wg"); lh=g.uniq("wh")
    g(f"s_sub_i32 s{sNeed}, s{sT}, {OPT.get('warm_ahead',2)}"); g(f"s_max_i32 s{sNeed}, s{sNeed}, 0")
    g(f"v_cmp_gt_u32 vcc, s{sNeed}, v7"); g(f"s_cbranch_vccz {lg}")
    g(f"s_add_u32 s{sA}, s{sFW}, 8")
    poll_ge(g, vT, vZ, f"s{sA}", f"s{sNeed}", mask="1", sleep=2)
    g.label(lg)
    g(f"s_lshl_b32 s{sA}, s{sT}, 2")
    trace(g,sT,0,vT)
    g(f"v_cmp_gt_u32 vcc, 12, v{vC}"); g("s_and_b32 s3, vcc_lo, 3"); g(f"s_cbranch_scc0 {lh}")
    if not OPT.get("nocnt"): wait_cnt(g, vC, vFq, f"s{sA}", "12", mask="3", sleep=OPT.get("warm_sleep",1))
    g.label(lh)
    trace(g,sT,2,vT)
    blk(g,sB,sT,sIn,0)
    for i,o in enumerate((0,24576,VO-KQ,VO-KQ+24576,8192,16384)[:6 if OPT.get("warmq") else 4]):
        g(f"s_add_u32 s3, s{sB}, {o}")
        g(f"buffer_load_dword v{8+i}, v{vO}, {WS}, s3 offen sc1")
    g(f"v_mov_b32 v{vC}, 0"); g("s_mov_b64 exec, 3")
    g(f"buffer_atomic_add v{vC}, v{vFq}, {WS}, s{sA} offen offset:4 sc0"); g("s_mov_b64 exec, -1")
    g(f"buffer_load_dword v7, off, {WS}, s{sFW} offset:8 sc1")
    g(f"s_add_u32 s{sNeed}, s{sT}, 1"); g(f"v_mov_b32 v{vT}, s{sNeed}")
    g("s_waitcnt vmcnt(2)")
    l1=g.uniq("lf"); l2=g.uniq("lf")
    g("s_mov_b64 exec, 3")
    g(f"s_cmp_lg_u32 s{sSlow}, 0"); g(f"s_cbranch_scc1 {l1}")
    g(f"buffer_store_dword v{vT}, v{vFl}, {WS}, s{sFW} offen"); g(f"s_branch {l2}")
    g.label(l1); g(f"buffer_store_dword v{vT}, v{vFl}, {WS}, s{sFW} offen sc1"); g.label(l2)
    g("s_mov_b64 exec, -1")
    trace(g,sT,1,vT); trace(g,sT,3,vT)
    g("s_waitcnt vmcnt(1)")
    tflush(g,sT,20)
    g(f"s_add_u32 s{sT}, s{sT}, 1")
    g(f"s_cmp_lt_u32 s{sT}, 64"); g(f"s_cbranch_scc1 L_{N}_loop")
    g("s_endpgm")

def wo_weights(g, phase):
    sG,sCC,sA,sLB,sRot=52,53,55,57,64
    if phase==0:
        srd(g, 8, 26, 4096*1280)
        g(f"s_mul_i32 s{sLB}, s{sW}, 40960")
        g(f"s_and_b32 s{sA}, s{sCC}, 3")
        rot_table(g, sRot, sA, 4)
        g(f"s_mul_i32 s{sA}, s{sG}, {512*1280}"); g(f"s_lshl_b32 s3, s{sCC}, 8"); g(f"s_add_u32 s{sA}, s{sA}, s3")
    load_w32(g, 4, 1280, sA, sLB, 4, 2, 3, sRot, phase)

def wo(g):
    N="wo"
    sG,sCC,sT,sA,sB,sLB,sOut,sSeg,sP1,sRot=52,53,54,55,56,57,58,60,61,64
    vOff,vA,vT,vSt,vFa,vNeed,vL16,vSig,vPl,vLf=1,2,3,4,5,6,7,8,9,10
    vF=32; vC=64
    g.label(f"L_{N}")
    for B in range(4): hblk(g,sRot+B,sRot+B); g(f"s_xor_b32 s{sRot+B}, s{sRot+B}, 8192")
    g(f"v_lshlrev_b32 v{vL16}, 4, v0")
    vTw,vTr=14,15
    g(f"s_lshl_b32 s3, s{sW}, 3"); g(f"v_lshrrev_b32 v{vSt}, 4, v0"); g(f"v_add_u32 v{vSt}, s3, v{vSt}"); g(f"v_mul_u32_u24 v{vTr}, 272, v{vSt}"); g(f"v_mul_u32_u24 v{vSt}, 1280, v{vSt}")
    g(f"v_and_b32 v{vT}, 15, v0"); g(f"v_lshl_add_u32 v{vSt}, v{vT}, 4, v{vSt}"); g(f"v_lshl_add_u32 v{vTr}, v{vT}, 4, v{vTr}")
    g(f"v_and_b32 v{vTw}, 31, v0"); g(f"v_mul_u32_u24 v{vTw}, 272, v{vTw}"); g(f"v_lshrrev_b32 v{vT}, 5, v0"); g(f"v_lshl_add_u32 v{vTw}, v{vT}, 3, v{vTw}")
    g(f"s_lshl_b32 s3, s{sW}, 6"); g("s_add_u32 s3, s3, 65536"); g(f"v_add_u32 v{vTw}, s3, v{vTw}"); g(f"v_add_u32 v{vTr}, 0x10000, v{vTr}")
    g(f"s_lshl_b32 s3, s{sCC}, 8"); g(f"v_add_u32 v{vSt}, s3, v{vSt}")
    g(f"s_mul_i32 s{sOut}, s{sG}, 40960"); g(f"s_add_u32 s{sOut}, s{sOut}, {PB}")
    near_setup(g,12)
    g(f"v_lshlrev_b32 v{vSig}, 9, v0"); spread_v(g,vSig,vT); g(f"v_add_u32 v{vSig}, s{sN0 if OPT.get('place',1)==0 else sN1}, v{vSig}")
    g(f"s_mul_i32 s3, s{sG}, 5"); g(f"s_add_u32 s3, s3, s{sCC}"); g(f"s_and_b32 s{sA}, s3, 3"); g(f"s_mul_i32 s{sA}, s{sA}, {CPBS}"); g(f"v_add_u32 v{vSig}, s{sA}, v{vSig}")
    g("s_lshl_b32 s3, s3, 9"); spread_s(g,3); g(f"s_add_u32 s3, s3, s{sN0 if OPT.get('place',1)==2 else sN1}"); g(f"s_add_u32 s3, s3, {CO}")
    g(f"v_lshlrev_b32 v{vFa}, 8, v0"); g(f"v_add_u32 v{vFa}, s3, v{vFa}")
    g(f"v_mov_b32 v{vNeed}, 0"); g(f"v_and_b32 v{vLf}, 1, v0"); g(f"v_lshlrev_b32 v{vLf}, 2, v{vLf}"); g(f"v_add_u32 v{vLf}, {L_FLAG}, v{vLf}")
    g(f"s_lshl_b32 s{sB}, s{sW}, 11")
    g(f"s_mov_b32 s{sT}, 0"); g(f"s_mov_b32 s{sP1}, -1")
    def dma(layer, sS, defer=False):
        g(f"s_lshl_b32 s3, s{sG}, 16"); g(f"s_add_u32 s3, s3, s{sB}"); g(f"s_add_u32 s3, s3, {VO+layer*LST}"); blk(g,sA,sS,3,0)
        g(f"s_cmp_lt_u32 s{sS}, 64"); g(f"s_cselect_b32 s{sA}, s{sA}, {OOB}")
        L=[f"s_add_u32 m0, s{sB}, {layer*32768+B*8192}\ns_add_u32 s3, s{sA}, s{sRot+B}\nbuffer_load_dwordx4 v{vL16}, {WS}, s3 offen offset:{1024*e} sc1 lds" for B in range(4) for e in range(2)]
        if defer: return L
        for x in L: g(x)
    sO=[62,63]
    g(f"s_mov_b32 s{sO[1]}, {OOB}")
    def stores(layer): return [f"s_add_u32 s3, s{sO[layer]}, {4*i*1280}\nbuffer_store_dwordx4 {q4('v',96+16*layer+4*i)}, v{vSt}, {WS}, s3 offen sc1" for i in range(2)]
    def tread(layer):
        for i in range(2): g(f"ds_read_b128 {q4('v',96+16*layer+4*i)}, v{vTr} offset:{layer*8704+4*272*i}")
    def compute(layer, staged, sS, hooks={}, extra=(), every=3):
        C=vC+16*layer; A=sO[layer]
        Rd=lambda k: f"ds_read_b128 {q4('v',vF+4*(k%8))}, v{vL16} offset:{layer*32768+k*1024}"
        Mf=lambda k: f"{MF32} v[{C}:{C+15}], {q4('a',4*k)}, {q4('v',vF+4*(k%8))}, {'0' if k==0 else f'v[{C}:{C+15}]'}"
        gemm_stream(g,4,Rd,Mf,staged,hooks,extra,every)
        g(f"s_mul_i32 s{A}, s{sS}, {8*40960}"); g(f"s_add_u32 s{A}, s{A}, s{sOut}")
        if layer: g(f"s_add_u32 s{A}, s{A}, {64*8*40960}")
        g(f"s_cmp_lt_u32 s{sS}, 64"); g(f"s_cselect_b32 s{A}, s{A}, {OOB}")
        g("s_nop 8")
        for a in range(4):
            g(f"v_cvt_pk_bf16_f32 v{C+4*a}, v{C+4*a}, v{C+4*a+1}"); g(f"v_cvt_pk_bf16_f32 v{C+4*a+1}, v{C+4*a+2}, v{C+4*a+3}")
            g(f"ds_write_b64 v{vTw}, v[{C+4*a}:{C+4*a+1}] offset:{layer*8704+16*a}")
    def sig(layer, sS, w=1):
        l=g.uniq("sg")
        g(f"s_cmp_lg_u32 s{sW}, {w}"); g(f"s_cbranch_scc1 {l}")
        g(f"s_cmp_ge_u32 s{sS}, 64"); g(f"s_cbranch_scc1 {l}")
        g(f"s_lshl_b32 s3, s{sS}, 2"); g(f"s_add_u32 s3, s3, {CPB+256*layer}")
        signal(g, vT, vSig, 3, "lo32")
        g.label(l)
    sP,sPo=59,68
    g(f"s_mov_b32 s{sP}, 0"); g(f"s_cmp_lg_u32 s{sW}, 0"); g(f"s_cselect_b32 s{sPo}, {OOB}, 0")
    def addr():
        g(f"v_mov_b32 v{vA}, s{sP}"); g(f"v_writelane_b32 v{vA}, s{sT}, 0"); g(f"v_lshl_add_u32 v{vA}, v{vA}, 2, v{vFa}")
        g(f"s_cmp_lt_u32 s{sT}, 64"); g("s_cselect_b32 s3, 8, 0"); g(f"v_writelane_b32 v{vNeed}, s3, 0")
        g(f"s_cselect_b32 s3, {WL}, 0"); g(f"s_add_u32 s3, s3, s{sP}"); g(f"s_cmp_ge_u32 s{sT}, s3"); g("s_cselect_b32 s3, 8, 0"); g(f"v_writelane_b32 v{vNeed}, s3, 1")
    def poll():
        addr()
        g(f"v_mov_b32 v{vPl}, 0")
        g("s_mov_b64 exec, 3")
        g(f"buffer_atomic_add v{vPl}, v{vA}, {WS}, s{sPo} offen sc0")
        g("s_mov_b64 exec, -1")
    def share(off):
        g(f"s_cmp_lg_u32 s{sW}, 0"); g("s_cselect_b64 exec, 0, 3")
        g(f"ds_write_b32 v{vLf}, v{vPl} offset:{off}"); g("s_mov_b64 exec, -1")
        g("s_waitcnt lgkmcnt(0)"); g("s_barrier")
        g(f"ds_read_b32 v{vPl}, v{vLf} offset:{off}")
    def wait(first):
        lw=g.uniq("w")
        g(f"s_cmp_lg_u32 s{sW}, 0"); g(f"s_cbranch_scc1 {lw}")
        if first:
            g("s_waitcnt vmcnt(0)")
            g(f"v_cmp_gt_u32 vcc, v{vNeed}, v{vPl}"); g(f"s_cbranch_vccz {lw}")
        g("v_mov_b32 v13, 0")
        wait_cnt(g, 12, vA, "0", f"v{vNeed}", mask="3", sleep=0, v2=13)
        g(f"v_max_u32 v{vPl}, v12, v13")
        g.label(lw)
    addr()
    g.label(f"L_{N}_block")
    wait(False); share(8); g("s_waitcnt lgkmcnt(0)")
    g.label(f"L_{N}_loop")
    trace(g,sT,0,vT)
    dma(0,sT)
    g(f"v_readlane_b32 s3, v{vPl}, 1"); g("s_nop 3"); g("s_cmp_ge_u32 s3, 8"); g(f"s_cselect_b32 s{sSeg}, s{sP}, -1"); g(f"s_addc_u32 s{sP}, s{sP}, 0")
    compute(0,True,sT,{0:lambda: trace(g,sT,4,vT),31:lambda: trace(g,sT,5,vT)},extra=dma(1,sSeg,True)+stores(1),every=list(range(0,16,2))+[16,20])
    g("s_waitcnt vmcnt(2) lgkmcnt(0)"); g("s_barrier")
    tread(0)
    trace(g,sT,3,vT)
    g(f"s_add_u32 s{sT}, s{sT}, 1"); g(f"s_sub_u32 s{sLB}, s{sT}, 1")
    def h_sig():
        g("s_waitcnt vmcnt(1)"); g("s_barrier")
        sig(0,sLB)
        trace(g,sLB,1,vT)
    compute(1,False,sSeg,{OPT.get("wo_poll",14):poll, OPT.get("wo_sig",20):h_sig},extra=stores(0),every=[0,OPT.get("wo_sp",2)])
    l=g.uniq("w0"); g(f"s_cmp_lg_u32 s{sW}, 0"); g(f"s_cbranch_scc1 {l}"); g("s_waitcnt vmcnt(0)"); g.label(l)
    share(0); tread(1)
    sig(1,sP1,2)
    trace(g,sLB,2,vT)
    tflush(g,sLB,140)
    g(f"s_mov_b32 s{sP1}, s{sSeg}")
    g("s_waitcnt lgkmcnt(0)")
    g(f"v_cmp_gt_u32 vcc, v{vNeed}, v{vPl}")
    g(f"s_cmp_ge_u32 s{sT}, 64"); g(f"s_cbranch_scc1 L_{N}_tail")
    g(f"s_cbranch_vccz L_{N}_loop")
    g(f"s_branch L_{N}_block")
    g.label(f"L_{N}_tail")
    for x in stores(1): g(x)
    poll()
    g("s_waitcnt vmcnt(1)"); g("s_barrier")
    sig(1,sP1)
    g(f"s_cmp_ge_u32 s{sP}, 64"); g("s_cbranch_scc1 L_bail")
    wait(True); g("s_barrier")
    g(f"s_mov_b32 s{sP1}, s{sP}"); g(f"s_add_u32 s{sP}, s{sP}, 1")
    dma(1,sP1)
    compute(1,True,sP1)
    g("s_waitcnt lgkmcnt(0)"); g("s_barrier")
    tread(1)
    g("s_waitcnt lgkmcnt(0)")
    g(f"s_branch L_{N}_tail")

def wsum(g, v, t):
    for d in ("quad_perm:[1,0,3,2]","quad_perm:[2,3,0,1]","row_half_mirror","row_mirror"):
        g("s_nop 1")
        g(f"v_add_f32_dpp v{v}, v{v}, v{v} {d} row_mask:0xf bank_mask:0xf")
    xsum4(g,v,t,"v_add_f32")

def rnd1(g, v):
    g(f"v_cvt_pk_bf16_f32 v{v}, v{v}, v{v}")
    g(f"v_and_b32 v{v}, 0xffff0000, v{v}")

def layernorm(g, X, Y, t0,t1,t2, sInv, sEps, packed=None, mim=True):
    assert t1==t0+1 and t0%2==0
    PP=lambda r: f"v[{r}:{r+1}]"
    g(f"v_readfirstlane_b32 s3, v{X}")
    g("s_nop 1")
    for i in range(8): g(f"v_subrev_f32 v{Y+i}, s3, v{X+i}")
    for i in range(8,12): g(f"v_mov_b32 v{Y+i}, 0")
    g("s_mov_b32 exec_hi, 0")
    for i in range(8,12): g(f"v_subrev_f32 v{Y+i}, s3, v{X+i}")
    g("s_mov_b32 exec_hi, -1")
    g(f"v_pk_mul_f32 {PP(t0)}, {PP(Y)}, {PP(Y)}")
    for i in range(2,12,2): g(f"v_pk_fma_f32 {PP(t0)}, {PP(Y+i)}, {PP(Y+i)}, {PP(t0)}")
    for i in range(2,12,2): g(f"v_pk_add_f32 {PP(Y)}, {PP(Y)}, {PP(Y+i)}")
    g(f"v_add_f32 v{t1}, v{t0}, v{t1}"); g(f"v_add_f32 v{t0}, v{Y}, v{Y+1}")
    for d in ("quad_perm:[1,0,3,2]","quad_perm:[2,3,0,1]","row_half_mirror","row_mirror"):
        g("s_nop 0")
        g(f"v_add_f32_dpp v{t1}, v{t1}, v{t1} {d} row_mask:0xf bank_mask:0xf")
        g(f"v_add_f32_dpp v{t0}, v{t0}, v{t0} {d} row_mask:0xf bank_mask:0xf")
    for sw in ("v_permlane16_swap_b32","v_permlane32_swap_b32"):
        g(f"v_mov_b32 v{Y+1}, v{t1}"); g(f"v_mov_b32 v{Y}, v{t0}"); g("s_nop 0")
        g(f"{sw} v{t1}, v{Y+1}"); g(f"{sw} v{t0}, v{Y}")
        g(f"v_pk_add_f32 {PP(t0)}, {PP(t0)}, {PP(Y)}")
    g(f"v_mul_f32 v{t0}, s{sInv}, v{t0}"); g(f"v_mul_f32 v{t1}, s{sInv}, v{t1}")
    g(f"v_fma_f32 v{t1}, -v{t0}, v{t0}, v{t1}"); g(f"v_max_f32 v{t1}, 0, v{t1}")
    g(f"v_add_f32 v{t0}, s3, v{t0}")
    g(f"v_cvt_pk_bf16_f32 v{t2}, v{t0}, v{t1}"); g(f"v_lshlrev_b32 v{t0}, 16, v{t2}"); g(f"v_and_b32 v{t1}, 0xffff0000, v{t2}")
    g(f"v_add_f32 v{t1}, s{sEps}, v{t1}"); rnd1(g,t1)
    g(f"v_sqrt_f32 v{t1}, v{t1}"); g("s_nop 0")
    for i in range(0,12,2): g(f"v_pk_add_f32 {PP(Y+i)}, {PP(X+i)}, {PP(t0)} op_sel_hi:[1,0] neg_lo:[0,1] neg_hi:[0,1]")
    rnd1(g,t1)
    g(f"v_rcp_f32 v{t1}, v{t1}")
    if mim: rnd_pairs(g,[Y+i for i in range(12)],t2)
    else: g("s_nop 0")
    for i in range(0,12,2): g(f"v_pk_mul_f32 {PP(Y+i)}, {PP(Y+i)}, {PP(t0)} op_sel:[0,1] op_sel_hi:[1,1]")
    if packed is not None: pack6(g,packed,Y)
    elif mim: rnd_pairs(g,[Y+i for i in range(12)],t2)

def unpack6(g, D, Sx):
    for i in range(6):
        g(f"v_lshlrev_b32 v{D+2*i}, 16, v{Sx+i}")
        g(f"v_and_b32 v{D+2*i+1}, 0xffff0000, v{Sx+i}")
def pack6(g, D, Sx):
    for i in range(6): g(f"v_cvt_pk_bf16_f32 v{D+i}, v{Sx+2*i}, v{Sx+2*i+1}")

def xn_addr(g, vX, vT, rowexpr_s):
    g(f"v_lshrrev_b32 v{vX}, 3, v0"); g(f"v_lshlrev_b32 v{vX}, 2, v{vX}")
    g(f"v_and_b32 v{vT}, 3, v0"); g(f"v_add_u32 v{vX}, v{vX}, v{vT}")
    g(f"v_xor_b32 v{vX}, s{rowexpr_s}, v{vX}")
    g(f"v_lshlrev_b32 v{vX}, 4, v{vX}")
    g(f"v_and_b32 v{vT}, 4, v0"); g(f"v_lshl_add_u32 v{vX}, v{vT}, 1, v{vX}")

def t4(g):
    N="t4"
    sR,sLam,sS,sA,sB,sInv,sEps,sNeed,sRow=52,53,54,55,56,57,58,59,60
    vL16,vL8,vT,vXa,vFa,vL16c,vL8c,vXc=1,2,3,4,5,6,7,8
    t0,t1,t2=10,11,9
    vX,vY,vN,vA,vPk,vFl=12,24,36,48,60,68
    vP=80
    vYa,vPg,vYw=72,73,74
    import pre
    g.label(f"L_{N}")
    sRs=61
    g(f"s_lshr_b32 s{sLam}, s{sW}, 1")
    g(f"s_and_b32 s{sRs}, s{sW}, 1"); g(f"s_lshl_b32 s{sR}, s{sR}, 1"); g(f"s_add_u32 s{sR}, s{sR}, s{sRs}"); g(f"s_mov_b32 s{sS}, 0")
    g(f"v_lshlrev_b32 v{vL16}, 4, v0")
    g(f"v_mov_b32 v{vYa}, 0"); g(f"s_lshl_b32 s3, s{sW}, 2"); g(f"s_add_u32 s3, s3, {L_FLAG}"); g(f"v_mov_b32 v{vPg}, s3")
    g(f"ds_write_b32 v{vPg}, v{vYa}")
    pre.wait_wg(g,*pre.BY1,vX)
    g(f"s_mul_i32 s{sA}, s{sR}, 40960"); g(f"s_mul_i32 s{sB}, s{sLam}, 20480"); g(f"s_add_u32 s{sA}, s{sA}, s{sB}"); g(f"s_add_u32 s{sA}, s{sA}, {YT}")
    g(f"s_mul_i32 s{sNeed}, s{sRs}, 40960"); g(f"s_add_u32 s{sB}, s{sB}, s{sNeed}")
    def ysrc():
        g(f"v_and_b32 v{vN}, 48, v0"); g(f"v_xor_b32 v{vN}, v{vN}, v{vL16}")
        for e in range(1,4): g(f"v_xor_b32 v{vN+e}, {64*e}, v{vN}")
    ysrc()
    for i in range(5):
        g(f"s_add_u32 m0, s{sB}, {4096*i}"); g(f"s_add_u32 s3, s{sA}, {4096*i}")
        for e in range(4): g(f"buffer_load_dwordx4 v{vN+e}, {WS}, s3 offen offset:{1024*e} sc1 lds")
    g("s_waitcnt vmcnt(0) lgkmcnt(0)")
    g("s_barrier")
    tl(g,TRACE[0],DBG3+16384,101,1)
    le0=g.uniq("e0")
    g(f"s_cmp_eq_u32 s{sLam}, 0"); g(f"s_cbranch_scc1 {le0}")
    pre.t4_late(g,sR,sRs)
    g(f"v_lshlrev_b32 v{vL16}, 4, v0")
    ysrc()
    for i in range(10):
        g(f"s_add_u32 s3, s{sA}, {32*40960-20480+4096*i}")
        for e in range(4): g(f"buffer_load_dwordx4 {q4('a',16*i+4*e)}, v{vN+e}, {WS}, s3 offen offset:{1024*e} sc1")
    g("s_waitcnt vmcnt(0)")
    tl(g,TRACE[0],DBG3+16384,101,2)
    g.label(le0)
    g(f"v_add_u32 v{vYw}, s{sNeed}, v{vL16}")
    g(f"v_and_b32 v{vYa}, 0xf0, v{vL16}"); g(f"v_lshl_add_u32 v{vYa}, v0, 8, v{vYa}"); g(f"v_add_u32 v{vYa}, s{sNeed}, v{vYa}")
    g(f"s_lshl_b32 s3, s{sRs}, 2"); g(f"s_add_u32 s3, s3, {L_FLAG}"); g(f"v_mov_b32 v{vPg}, s3")
    srd(g, 8, 16, 2048*1280)
    srd(g, 12, 42, 2048*1280)
    g(f"v_lshlrev_b32 v{vL16}, 4, v0"); g(f"v_lshlrev_b32 v{vL8}, 3, v0")
    g(f"v_cmp_lt_u32 vcc, 31, v0"); g(f"v_mov_b32 v{vT}, {OOB}"); g("s_nop 1")
    g(f"v_cndmask_b32 v{vL16c}, v{vL16}, v{vT}, vcc"); g(f"v_cndmask_b32 v{vL8c}, v{vL8}, v{vT}, vcc")
    g(f"s_and_b32 s3, s{sR}, 15")
    xn_addr(g, vXa, t0, 3)
    g(f"v_cndmask_b32 v{vXc}, v{vXa}, v{vT}, vcc")
    near_setup(g,vX)
    g(f"s_lshl_b32 s3, s{sR}, 9"); spread_s(g,3); g(f"s_lshl_b32 s{sA}, s{sLam}, 8"); g(f"s_add_u32 s3, s3, s{sA}"); g(f"s_add_u32 s3, s3, s{sN0 if OPT.get('place',1)==0 else sN1}"); g(f"s_add_u32 s3, s3, {CPB}"); g(f"v_mul_u32_u24 v{vFa}, {CPBS}, v0"); g(f"v_add_u32 v{vFa}, s3, v{vFa}")
    g(f"v_lshlrev_b32 v{vFl}, 8, v0"); spread_v(g,vFl,t0); g(f"v_add_u32 v{vFl+1}, s{sN0 if OPT.get('place',1)==1 else sN1}, v{vFl}"); g(f"v_add_u32 v{vFl}, s{sN1}, v{vFl}")
    g(f"v_cmp_lt_u32 vcc, 55, v0"); g("s_nop 1"); g(f"v_cndmask_b32 v{vFl}, v{vFl}, v{vFl+1}, vcc")
    g(f"s_mov_b32 s{sInv}, {hex(f32bits(1/640))}"); g(f"s_mov_b32 s{sEps}, {hex(f32bits(1e-5))}")
    vXn,vPl=176,75
    def xload(add):
        g(f"s_add_u32 s3, s{sRow}, {add}"); g(f"s_cmp_eq_u32 s{sLam}, 0"); g(f"s_cselect_b32 s3, s3, {OOB}")
        for i in range(3): g(f"buffer_load_dwordx2 v[{vXn+2*i}:{vXn+2*i+1}], v{vL8 if i<2 else vL8c}, {WT}, s3 offen offset:{512*i}{OPT.get('xnt','')}")
    def poll(add):
        g(f"s_lshl_b32 s{sA}, s{sS}, 2"); g(f"v_mov_b32 v{vPl}, 0"); g("s_mov_b64 exec, 15")
        g(f"buffer_atomic_add v{vPl}, v{vFa}, {WS}, s{sA} offen offset:{4*add} sc0"); g("s_mov_b64 exec, -1")
    g("s_mov_b32 s62, 0x3f80"); g("s_mov_b32 s63, 0x3f800000")
    for i in range(12): g(f"v_mov_b32 v{vY+i}, 0")
    g(f"s_mul_i32 s{sRow}, s{sR}, 1280")
    xload(0); poll(0); g("s_waitcnt vmcnt(0)")
    g.label(f"L_{N}_loop")
    lp=g.uniq("tw"); ld=g.uniq("twd")
    g(f"s_mov_b32 s{sTO}, 0")
    g.label(lp)
    g(f"v_cmp_gt_u32 vcc, 10, v{vPl}")
    g("s_and_b32 s3, vcc_lo, 15"); g(f"s_cbranch_scc0 {ld}")
    g(f"s_sleep {OPT.get('t4_sleep2',1)}")
    poll(0); g("s_waitcnt vmcnt(0)")
    timeout(g, lp)
    g.label(ld)
    trace(g,sS,0,t0)
    g(f"s_lshl_b32 s{sA}, s{sLam}, 6"); g(f"s_add_u32 s{sA}, s{sA}, s{sS}"); g(f"s_mul_i32 s{sA}, s{sA}, {8*40960}")
    g(f"s_mul_i32 s3, s{sR}, 1280"); g(f"s_add_u32 s{sA}, s{sA}, s3"); g(f"s_add_u32 s{sA}, s{sA}, {PB}")
    for p in range(8):
        for i in range(3): g(f"buffer_load_dwordx2 v[{vP+12+6*p+2*i}:{vP+13+6*p+2*i}], v{vL8 if i<2 else vL8c}, {WS}, s{sA} offen offset:{512*i} sc1{OPT.get('nt','')}")
        g(f"s_add_u32 s{sA}, s{sA}, 40960")
    ly=g.uniq("yh"); lyd=g.uniq("yhd")
    g(f"s_and_b32 s3, s{sS}, 39"); g(f"s_cmp_lg_u32 s3, 32"); g(f"s_cbranch_scc1 {lyd}")
    g(f"s_bfe_u32 s{sA}, s{sS}, 0x20003"); g(f"s_mov_b32 s{sTO}, 0")
    g.label(ly)
    g(f"ds_read_b32 v{vN}, v{vPg} offset:8"); g("s_waitcnt lgkmcnt(0)")
    g(f"v_cmp_ge_u32 vcc, s{sA}, v{vN}"); g(f"s_cbranch_vccz {lyd}")
    g("s_sleep 8")
    timeout(g, ly)
    g.label(lyd)
    g(f"s_and_b32 s3, s{sS}, 7"); g("s_lshl_b32 s3, s3, 3"); g(f"s_bfe_u32 s{sA}, s{sS}, 0x20003"); g(f"s_lshl_b32 s{sA}, s{sA}, 1"); g(f"s_add_u32 s3, s3, s{sA}")
    g(f"v_xor_b32 v{vN}, s3, v{vYa}")
    for e in range(1,4): g(f"v_xor_b32 v{vN+e}, {64*e}, v{vN}")
    for i in range(8): g(f"ds_read_u16_d16_hi v{vY+i}, v{vN+i%4} offset:{(i//4)*16384}")
    g("s_mov_b32 exec_hi, 0")
    for i in range(4): g(f"ds_read_u16_d16_hi v{vY+8+i}, v{vN+i} offset:32768")
    g("s_mov_b32 exec_hi, -1")
    unpack6(g,vX,vXn)
    xload(32*1280)
    l0=g.uniq("l0")
    g(f"s_and_b32 s{sB}, s{sS}, 15"); g(f"s_lshl_b32 s3, s{sRs}, 4"); g(f"s_add_u32 s{sB}, s{sB}, s3"); g(f"s_mul_i32 s{sB}, s{sB}, 1536"); g(f"s_add_u32 s{sB}, s{sB}, 81920")
    g(f"v_add_u32 v{vT}, s{sB}, v{vL8}")
    g(f"s_cmp_eq_u32 s{sLam}, 0"); g(f"s_cbranch_scc1 {l0}")
    for i in range(3): g(f"ds_read_b64 v[{vA+2*i}:{vA+2*i+1}], v{vT} offset:{512*i}")
    g("s_waitcnt lgkmcnt(0)")
    unpack6(g,vX,vA)
    g(f"s_add_u32 s3, s{sS}, 1"); g(f"v_mov_b32 v{t0}, s3"); g(f"ds_write_b32 v{vPg}, v{t0}")
    g.label(l0)
    for p in range(8):
        g(f"s_waitcnt vmcnt({24-3*p})")
        if p==0: unpack6(g,vP,vP+12)
        else:
            for i in range(12): g(f"v_dot2c_f32_bf16 v{vP+i}, s{62+(i&1)}, v{vP+12+6*p+i//2}")
    g("s_waitcnt lgkmcnt(0)"); g("s_nop 1")
    trace(g,sS,1,t0)
    MIM=OPT.get("mim",1)
    if MIM: rnd_pairs(g,[vP+i for i in range(12)],t2)
    for i in range(0,12,2): g(f"v_pk_add_f32 v[{vX+i}:{vX+i+1}], v[{vX+i}:{vX+i+1}], v[{vP+i}:{vP+i+1}]")
    rnd_pairs(g,[vX+i for i in range(12)],t2)
    layernorm(g,vX,vN,t0,t1,t2,sInv,sEps,mim=MIM)
    for i in range(0,12,2): g(f"v_pk_mul_f32 v[{vN+i}:{vN+i+1}], v[{vN+i}:{vN+i+1}], v[{vY+i}:{vY+i+1}]")
    if MIM: rnd_pairs(g,[vN+i for i in range(12)],t2)
    for i in range(0,12,2): g(f"v_pk_add_f32 v[{vX+i}:{vX+i+1}], v[{vX+i}:{vX+i+1}], v[{vN+i}:{vN+i+1}]")
    pack6(g,vPk,vX)
    l1=g.uniq("l1"); le=g.uniq("le")
    g(f"s_cmp_lg_u32 s{sLam}, 0"); g(f"s_cbranch_scc1 {l1}")
    lg=g.uniq("rg"); lgd=g.uniq("rgd")
    g(f"s_cmp_lt_u32 s{sS}, 16"); g(f"s_cbranch_scc1 {lgd}")
    g(f"s_sub_u32 s{sA}, s{sS}, 15"); g(f"s_mov_b32 s{sTO}, 0")
    g.label(lg)
    g(f"ds_read_b32 v{t0}, v{vPg}"); g("s_waitcnt lgkmcnt(0)")
    g(f"v_cmp_gt_u32 vcc, s{sA}, v{t0}"); g(f"s_cbranch_vccz {lgd}")
    g("s_sleep 8")
    timeout(g, lg)
    g.label(lgd)
    for i in range(3): g(f"ds_write_b64 v{vT}, v[{vPk+2*i}:{vPk+2*i+1}] offset:{512*i}")
    unpack6(g,vX,vPk)
    g("s_nop 0")
    layernorm(g,vX,vN,t0,t1,t2,sInv,sEps,packed=vA,mim=MIM)
    g(f"s_add_u32 s3, s{sRow}, {XN+64*40960}")
    for i in range(3): g(f"buffer_store_dwordx2 v[{vA+2*i}:{vA+2*i+1}], v{vXa if i<2 else vXc}, {WS}, s3 offen offset:{512*i} sc1")
    trace(g,sS,2,t0)
    poll(1)
    g("s_waitcnt vmcnt(1) lgkmcnt(0)")
    trace(g,sS,3,t0)
    g(f"s_and_b32 s{sA}, s{sR}, 3"); g(f"s_mul_i32 s{sA}, s{sA}, {CXNS}")
    g(f"s_lshl_b32 s3, s{sS}, 2"); g(f"s_add_u32 s3, s3, s{sA}"); g(f"s_add_u32 s3, s3, {CXN}")
    signal(g, vT, vFl, 3, "-1")
    g(f"s_add_u32 s3, s3, {2*64*256}")
    signal(g, vT, vFl+1, 3, "lo32")
    g("s_waitcnt vmcnt(2)")
    g(f"s_branch {le}")
    g.label(l1)
    for i in range(3): g(f"buffer_store_dwordx2 v[{vPk+2*i}:{vPk+2*i+1}], v{vL8 if i<2 else vL8c}, {W2}, s{sRow} offen offset:{512*i}{OPT.get('nt','')}")
    poll(1)
    lc=g.uniq("yc")
    for j in range(4):
        ln=g.uniq("yn")
        g(f"s_cmp_lg_u32 s{sS}, {8*j+7}"); g(f"s_cbranch_scc1 {ln if j<3 else lc}")
        for i in range(80): g(f"ds_write_b16{'_d16_hi' if j&1 else ''} v{vYw}, a{2*i+(j>>1)} offset:{(i>>1)*1024+(i&1)*8+2*j}")
        g(f"v_mov_b32 v{t0}, {j+1}"); g(f"ds_write_b32 v{vPg}, v{t0} offset:8")
        if j<3: g(f"s_branch {lc}"); g.label(ln)
    g.label(lc)
    g("s_waitcnt vmcnt(0)")
    g.label(le)
    tflush(g,sS,184)
    g(f"s_add_u32 s{sS}, s{sS}, 1"); g(f"s_add_u32 s{sRow}, s{sRow}, {32*1280}")
    g(f"s_cmp_lt_u32 s{sS}, 64"); g(f"s_cbranch_scc1 L_{N}_loop")
    g(f"s_cmp_lg_u32 s{sW}, 3"); g("s_cbranch_scc1 L_bail")
    tl(g,TRACE[0],DBG3+16384,101,3)
    g("s_endpgm")
```

```python
from asmlib import *
from layout import *
import math, struct

WS="s[4:7]"; WT="s[8:11]"
sX,sTK,sW,sTO=48,49,50,51
sPAR=81
TIMEOUT=1<<17
def f32bits(x): return struct.unpack("<I", struct.pack("<f", x))[0]

def timeout(g, back):
    g(f"s_add_u32 s{sTO}, s{sTO}, 1")
    g(f"s_cmp_lt_u32 s{sTO}, {TIMEOUT}")
    g(f"s_cbranch_scc1 {back}")
    g("s_branch L_bail")

def dma_rows64(g, vOff, sOff, n, stride16, sLB, lds_off=0, srdname=WT):
    for i in range(n):
        g(f"s_add_u32 m0, s{sLB}, {lds_off+i*1024}")
        g("s_nop 0")
        g(f"buffer_load_dwordx4 v{vOff}, {srdname}, s{sOff} offen lds")
        g(f"s_add_u32 s{sOff}, s{sOff}, {stride16}")

def dma_voff(g, vD, vT, row_stride):
    g(f"v_lshrrev_b32 v{vD}, 2, v0")
    g(f"s_mov_b32 s3, {row_stride}")
    g(f"v_mul_lo_u32 v{vD}, v{vD}, s3")
    g(f"v_lshrrev_b32 v{vT}, 3, v0")
    g(f"v_and_b32 v{vT}, 2, v{vT}")
    g(f"v_xor_b32 v{vT}, v{vT}, v0")
    g(f"v_and_b32 v{vT}, 3, v{vT}")
    g(f"v_lshl_add_u32 v{vD}, v{vT}, 4, v{vD}")

def tr16_addr(g, vD, vT):
    g(f"v_lshrrev_b32 v{vD}, 2, v0")
    g(f"v_lshlrev_b32 v{vD}, 6, v{vD}")
    g(f"v_and_b32 v{vT}, 3, v0")
    g(f"v_lshl_add_u32 v{vD}, v{vT}, 3, v{vD}")
    g(f"v_and_b32 v{vT}, 16, v0")
    g(f"v_lshl_add_u32 v{vD}, v{vT}, 1, v{vD}")

def fl_voff(g, vD, vT, row_stride, RB):
    n=RB//16; sh={8:3,16:4}[n]
    g(f"v_lshrrev_b32 v{vD}, {sh}, v0"); g(f"s_mov_b32 s3, {row_stride}"); g(f"v_mul_lo_u32 v{vD}, v{vD}, s3")
    if RB==128:
        g(f"v_lshrrev_b32 v{vT}, 3, v0"); g(f"v_and_b32 v{vT}, 6, v{vT}")
    else:
        g(f"v_lshrrev_b32 v{vT}, 3, v0"); g(f"v_and_b32 v{vT}, 6, v{vT}")
    g(f"v_xor_b32 v{vT}, v{vT}, v0"); g(f"v_and_b32 v{vT}, {n-1}, v{vT}")
    g(f"v_lshl_add_u32 v{vD}, v{vT}, 4, v{vD}")
    if RB==256: g(f"v_xor_b32 v{vD+1}, 128, v{vD}" if row_stride%256==0 else f"v_xor_b32 v{vT}, 8, v{vT}\nv_lshrrev_b32 v{vD+1}, 4, v0\nv_mul_lo_u32 v{vD+1}, v{vD+1}, s3\nv_lshl_add_u32 v{vD+1}, v{vT}, 4, v{vD+1}")

def fl_dma(g, vOff, sOff, n, step, sL, lds_off, two=False):
    for i in range(n):
        g(f"s_add_u32 m0, s{sL}, {lds_off+i*1024}"); g("s_nop 0")
        g(f"buffer_load_dwordx4 v{vOff+(i&1 if two else 0)}, {WT}, s{sOff} offen lds")
        g(f"s_add_u32 s{sOff}, s{sOff}, {step}")

MF="v_mfma_f32_16x16x32_bf16"
def q4(k,a): return f"{k}[{a}:{a+3}]"


SM="v_smfmac_f32_16x16x64_bf16"; MH="v_mfma_f32_16x16x16_bf16"
def q8(k,a): return f"{k}[{a}:{a+7}]"
def q2(k,a): return f"{k}[{a}:{a+1}]"
ST=82

class Ctx:
    def __init__(s,g,opt,pts):
        s.g,s.opt,s.cold=g,opt,[]; s.diag=opt.get("diag"); s.pts=pts
    def stamp(s,n):
        if s.diag and n in s.pts:
            i=s.pts.index(n); s.g(f"s_memrealtime s[{ST+2*i}:{ST+2*i+1}]")
    def dly(s,k):
        n=s.opt.get(k,0)
        while n>0:
            m=min(n,4); s.g(f"s_nop {4*m-1}"); n-=m
    def retry(s,back,pre=()):
        g=s.g; l=g.uniq("rt")
        g(f"s_cbranch_vccnz {l}")
        def f():
            g.label(l)
            for x in pre: g(x)
            timeout(g, back)
        s.cold.append(f)
    def flush(s):
        while s.cold: s.cold.pop(0)()
    def dump(s,sT,v):
        if not s.diag: return
        g=s.g
        g("s_waitcnt lgkmcnt(0)")
        g(f"s_lshl_b32 s3, s101, 2"); g(f"s_add_u32 s3, s3, s{sW}"); g("s_lshl_b32 s3, s3, 6"); g(f"s_add_u32 s3, s3, s{sT}"); g("s_lshl_b32 s3, s3, 6"); g(f"s_add_u32 s3, s3, {DBG}")
        for i in range(8): g(f"v_mov_b32 v{v+i}, s{ST+2*i}")
        for i in range(3): g(f"v_mov_b32 v{v+8+i}, s{12+i}")
        g(f"v_mov_b32 v{v+11}, s{sTO}")
        g("s_mov_b64 exec, 1")
        for i in range(3): g(f"buffer_store_dwordx4 {q4('v',v+4*i)}, off, {WS}, s3 offset:{16*i}")
        g("s_mov_b64 exec, -1")

def w_voff(g, vD, vT, stride, qk=False):
    g(f"v_lshrrev_b32 v{vD}, 4, v0"); g(f"v_and_b32 v{vT}, 1, v{vD}"); g(f"v_lshlrev_b32 v{vT}, 1, v{vT}"); g(f"v_xor_b32 v{vT}, v{vT}, v0")
    g(f"s_lshr_b32 s3, s{sW}, 1" if qk else f"s_and_b32 s3, s{sW}, 1"); g("s_lshl_b32 s3, s3, 3"); g(f"v_xor_b32 v{vT}, s3, v{vT}"); g(f"v_and_b32 v{vT}, 15, v{vT}")
    g(f"s_mov_b32 s3, {stride}"); g(f"v_mul_lo_u32 v{vD}, v{vD}, s3"); g(f"v_lshl_add_u32 v{vD}, v{vT}, 4, v{vD}")
    g(f"v_xor_b32 v{vD+1}, 64, v{vD}")
def w_dma(g, vOff, sOff, sL, buf, stride, sh, adv):
    for m in range(8):
        g(f"s_add_u32 m0, s{sL}, {buf*32768+m*1024}"); g("s_nop 0")
        g(f"buffer_load_dwordx4 v{vOff+((m>>sh)&1)}, {WT}, s{sOff} offen lds")
        g(f"s_add_u32 s{sOff}, s{sOff}, {4*stride+(adv if m==7 else 0)}")
def w_raddr(g, vD, vT, wo, qk=False):
    g(f"v_bfe_u32 v{vT}, v0, 2, 1"); g(f"v_lshlrev_b32 v{vD}, 8, v{vT}"); g(f"v_lshl_add_u32 v{vD}, v{vT}, 5, v{vD}")
    g(f"v_bfe_u32 v{vT}, v0, 4, 1"); g(f"v_lshl_add_u32 v{vD}, v{vT}, {12 if wo else 11}, v{vD}"); g(f"v_lshl_add_u32 v{vD}, v{vT}, 6, v{vD}")
    g(f"v_bfe_u32 v{vT}, v0, 5, 1"); g(f"v_lshl_add_u32 v{vD}, v{vT}, {10 if wo else 12}, v{vD}")
    g(f"v_and_b32 v{vT}, 3, v0"); g(f"v_lshl_add_u32 v{vD}, v{vT}, 3, v{vD}")
    g(f"v_bfe_u32 v{vT}, v0, 3, 1"); g(f"v_mul_u32_u24 v{vT}, {16384+128 if qk else 32}, v{vT}"); g(f"v_xor_b32 v{vD}, v{vD}, v{vT}")

def proj(g, acc, RG, W, vAr, vIdx, fill, NR0, first=()):
    seq=[]; fill=list(fill)
    def rd(f): seq.append(f); g(f"ds_read_b128 {q4('v',RG[f%len(RG)])}, v{vAr} offset:{1024*(f>>1)+32*(f&1)}")
    for f in range(NR0): rd(f)
    for x in first: g(x)
    nxt=NR0
    for n in range(40):
        f=n>>1
        if n%2==0: g(f"s_waitcnt lgkmcnt({len(seq)-1-seq.index(f)})")
        g(f"{SM} {q4('v',acc+4*(n&1))}, {q4('v',RG[f%len(RG)])}, {W(n)}, v{vIdx}")
        if nxt<20 and nxt-f<6 and (nxt-f<5 or n%2): rd(nxt); nxt+=1
        elif fill and fill[0][0]<=n: seq.append(None); g(fill.pop(0)[1])
    assert not fill

def sel_regs(g, vS, vT, vU, tmode):
    g(f"v_and_b32 v{vT}, 7, v0")
    if tmode:
        g(f"v_lshrrev_b32 v{vU}, 1, v0"); g(f"v_xor_b32 v{vU}, v{vU}, v0"); g(f"v_and_b32 v{vU}, 8, v{vU}"); g(f"v_or_b32 v{vT}, v{vT}, v{vU}")
    for r in range(4):
        g(f"v_mov_b32 v{vS+r}, 0")
        g(f"v_cmp_eq_u32 vcc, {2*r}, v{vT}"); g(f"v_mov_b32 v{vU}, 0x3f80"); g("s_nop 1")
        g(f"v_cndmask_b32 v{vS+r}, v{vS+r}, v{vU}, vcc")
        g(f"v_cmp_eq_u32 vcc, {2*r+1}, v{vT}"); g(f"v_mov_b32 v{vU}, 0x3f800000"); g("s_nop 1")
        g(f"v_cndmask_b32 v{vS+r}, v{vS+r}, v{vU}, vcc")

def xm_setup(g, vXa,vXb,vLa,vLb,vIdx,vL16,vT,sA,sB):
    g(f"v_lshrrev_b32 v{vXa}, 5, v0"); g(f"v_lshlrev_b32 v{vXa}, 15, v{vXa}")
    g(f"v_bfe_u32 v{vT}, v0, 2, 2"); g(f"v_lshl_add_u32 v{vXa}, v{vT}, 8, v{vXa}")
    g(f"v_bfe_u32 v{vT}, v0, 4, 1"); g(f"v_lshl_add_u32 v{vXa}, v{vT}, 6, v{vXa}")
    g(f"v_and_b32 v{vT}, 3, v0"); g(f"v_lshl_add_u32 v{vXa}, v{vT}, 4, v{vXa}")
    g(f"s_lshr_b32 s{sA}, s{sW}, 1"); g(f"s_and_b32 s{sB}, s{sW}, 1")
    g(f"s_lshl_b32 s3, s{sA}, 14"); g(f"v_add_u32 v{vXa}, s3, v{vXa}")
    g(f"s_lshl_b32 s3, s{sB}, 7"); g("s_add_u32 s3, s3, 2048"); g(f"v_add_u32 v{vXb}, s3, v{vXa}")
    g(f"s_mul_i32 s3, s{sB}, 3072"); g(f"v_add_u32 v{vXa}, s3, v{vXa}")
    g(f"s_mul_i32 s{sA}, s{sA}, 5120"); g(f"s_add_u32 s3, s3, s{sA}"); g(f"v_add_u32 v{vLa}, s3, v{vL16}")
    g(f"s_lshl_b32 s3, s{sB}, 3"); g(f"s_add_u32 s3, s3, s{sA}"); g("s_add_u32 s3, s3, 2048"); g(f"v_add_u32 v{vLb}, s3, v{vL16}")
    g(f"v_and_b32 v{vT}, 2, v0"); g(f"v_cmp_eq_u32 vcc, 0, v{vT}"); g(f"v_mov_b32 v{vIdx}, 0xeeee"); g(f"v_mov_b32 v{vT}, 0x4444"); g("s_nop 0")
    g(f"v_cndmask_b32 v{vIdx}, v{vIdx}, v{vT}, vcc")
def xm_bases(g, sXM, opt):
    for s_ in range(4):
        g(f"s_xor_b32 s3, s{sPAR}, {(((XM>>21)+s_)^(PROBE>>21)^opt.get('far',0))&1}"); g("s_and_b32 s3, s3, 1"); g("s_lshl_b32 s3, s3, 13")
        g(f"s_add_u32 s{sXM+s_}, s3, {XM+(s_<<21)}")
        g(f"s_and_b32 s3, s{sX}, 2"); g("s_lshl_b32 s3, s3, 15"); g(f"s_add_u32 s{sXM+s_}, s{sXM+s_}, s3")
def xm_phase(c, sXs, vXa,vXb,vLa,vLb,vSelT,vTmp,R):
    g=c.g
    ld=[f"buffer_load_dwordx4 {q4('v',R+4*i)}, v{vXa if i<4 else vXb}, {WS}, s{sXs} offen offset:{[0,128,1024,1152,0][i]} sc1" for i in range(5)]
    def out(i):
        d=R+20+4*i
        return [f"v_cvt_pk_bf16_f32 v{d}, v{d}, v{d+1}", f"v_cvt_pk_bf16_f32 v{d+1}, v{d+2}, v{d+3}",
                f"ds_write_b64 v{vLa if i<4 else vLb}, {q2('v',d)} offset:{[0,8,1024,1032,0][i]}"]
    c.stamp("xld")
    for x in ld: g(x)
    lp=g.uniq("xm"); g.label(lp)
    for i in range(5):
        g(f"s_waitcnt vmcnt({4-i})")
        if i==0: c.stamp("x1")
        g(f"{MF} {q4('v',R+20+4*i)}, {q4('v',vSelT)}, {q4('v',R+4*i)}, 0")
        if i==2: g(f"v_max3_u32 v{vTmp}, v{R}, v{R+4}, v{R+8}")
        if i==4: g(f"v_max3_u32 v{vTmp}, v{vTmp}, v{R+12}, v{R+16}"); g(f"v_cmp_eq_u32 vcc, -1, v{vTmp}")
        if i>=2:
            for x in out(i-2): g(x)
    c.retry(lp, ["s_nop 7"]+ld)
    for x in out(3): g(x)
    g("s_nop 0")
    for x in out(4): g(x)
    c.stamp("xm")
    g("s_waitcnt lgkmcnt(0)")
    g("s_barrier")

def startup_checks(g, opt, v, sA, sB):
    import pre, bulk
    if opt.get("alone"):
        g(f"s_mov_b32 s{sPAR}, {opt['alone']-1}"); g(f"s_mov_b32 s{bulk.sSlow}, {1 if opt.get('force_slow') else 0}")
        return
    pre.wait_bar(g,*pre.BA,v,par=True)
    bulk.group_local(g,v)

def chain(g, opt):
    import bulk
    c=Ctx(g,opt,opt.get("pts",["xld","xm","qd","sc","vok","ostg","wo","red"])); stamp,dly,retry,diag=c.stamp,c.dly,c.retry,c.diag
    N="ch"
    sH,sT,sKV,sRed,sXM,sEX,sEV,sPCw,sPCr,sA,sB,sU,sC1=52,53,54,55,56,60,64,68,74,76,77,78,79
    sKVc,sGo,mO,mX,sFl=16,17,28,30,32
    vL16,vXa,vXb,vLa,vLb,vQKw,vTr,vTrw,vOa,vPCw,vXw,vL16b,vGo,vTmp,vWl,vVS,vIdx,vZ2=1,2,3,4,5,6,7,8,9,10,11,12,13,14,15,16,17,18
    vSelR,vSelT,vOne,vSent,vPm=20,24,28,32,36
    R1,R2,Rw,QV,SW=40,88,128,192,224
    vAc=88; vS=88; vP=100; vVX=104; vO=112; vLs=120; vVM=124; t0,t1=126,127; vF=R1+32; vOut=116; vOf=R1+20; vAr=0
    L_KV,L_QK,L_O,L_W=10240,26624,30720,32768
    def qk(n): return q8('v',SW+8*n) if n<4 else q8('v',QV+8*(n-4)) if n<8 else q8('a',8*(n-8))
    WREG=[SW,SW+8,SW+16,SW+24,R1+40]+[Rw+8*i for i in range(8)]+[88,96,SW,SW+8,SW+16,SW+24,R1+40]
    WLDS=[4,5,6,7,8]+[None]*8+list(range(9,16))
    WTMP=[(32+8*(WLDS[n]-4)) if WLDS[n] is not None else WREG[n] for n in range(20)]
    def wrd(reg,m): return [f"ds_read_b128 {q4('v',reg+4*e)}, v{vWl} offset:{m*2048+e*1024}" for e in range(2)]
    g.label(f"L_{N}")
    if diag: g.raw("; PTS "+" ".join(c.pts))
    g(f"s_and_b32 s3, s{sX}, 1"); g("s_lshl_b32 s3, s3, 4"); g(f"s_add_u32 s{sH}, s3, s{sTK}")
    vD,vA,vB=2,4,6
    srd(g, 8, 20, 640*8192)
    g(f"s_cmp_lt_u32 s{sW}, 2"); g("s_cselect_b32 s8, s20, s22"); g("s_cselect_b32 s9, s21, s23"); g("s_and_b32 s9, s9, 0xffff")
    w_voff(g,vD,vTmp,8192,True)
    g(f"s_and_b32 s3, s{sW}, 1"); g(f"s_mul_i32 s{sA}, s3, {32*8192}"); g(f"s_lshl_b32 s3, s{sH}, 8"); g(f"s_add_u32 s{sA}, s{sA}, s3")
    g(f"s_lshl_b32 s{sU}, s{sW}, 13")
    for cch in range(5): w_dma(g,vD,sA,sU,cch,8192,1,32*8192)
    w_raddr(g,vA,vTmp,False,True)
    g(f"s_lshl_b32 s3, s{sW}, 6"); g(f"v_xor_b32 v{vA}, s3, v{vA}"); g(f"v_xor_b32 v{vA+1}, 32, v{vA}")
    for cch in range(10):
        g("s_waitcnt vmcnt(32)"); g("s_barrier")
        g(f"v_add_u32 v{vB}, {(cch%5)*32768}, v{vA}"); g(f"v_add_u32 v{vB+1}, {(cch%5)*32768}, v{vA+1}")
        for t in range(4):
            k,r=qk(4*cch+t)[0],int(qk(4*cch+t)[2:].split(":")[0])
            for rho in range(4): g(f"ds_read_b64_tr_b16 {q2(k,r+2*rho)}, v{vB+(t&1)} offset:{(t>>1)*8192+512*rho}")
        g("s_waitcnt lgkmcnt(0)"); g("s_barrier")
        if cch==5:
            srd(g, 8, 26, 4096*1280)
            w_voff(g,vD,vTmp,1280)
            g(f"s_lshl_b32 s3, s{sH}, 2"); g(f"s_add_u32 s3, s3, s{sW}"); g(f"s_mul_i32 s{sA}, s3, {32*1280}")
        if cch<5: w_dma(g,vD,sA,sU,cch,8192,1,32*8192)
        else: w_dma(g,vD,sA,sU,cch-5,1280,2,256-32*1280+(1<<32))
    tl(g,opt.get("trace"),DBG3+16384,101,1,vTmp)
    w_raddr(g,vA,vTmp,True)
    startup_checks(g,opt,8,sA,sB)
    g("s_waitcnt vmcnt(0)"); g("s_barrier")
    WPF=[(2*(q>>3)+(q&1),(q>>1)&3) if q<16 else (4,q-16) for q in range(20)]
    for P in range(5):
        g(f"s_mul_i32 s{sA}, s{sW}, 10"); g(f"s_and_b32 s3, s{sW}, 1")
        g(f"s_mul_i32 s3, s3, {2 if P<4 else -8}"); g(f"s_add_u32 s{sA}, s{sA}, s3"); g(f"s_add_u32 s{sA}, s{sA}, {2*P}")
        g(f"s_and_b32 s3, s{sA}, 7"); g("s_lshl_b32 s3, s3, 5"); g(f"v_xor_b32 v{vB}, s3, v{vA}")
        g(f"s_lshr_b32 s3, s{sA}, 3"); g("s_lshl_b32 s3, s3, 15"); g(f"v_add_u32 v{vB}, s3, v{vB}"); g(f"v_xor_b32 v{vB+1}, 128, v{vB}")
        for f in range(4):
            for rho in range(4): g(f"ds_read_b64_tr_b16 {q2('v',WTMP[WPF.index((P,f))]+2*rho)}, v{vB+(f&1)} offset:{(32*f+8*(rho>>1)+2*(rho&1))*256}")
    g(f"v_lshlrev_b32 v{vL16}, 4, v0")
    g(f"s_lshl_b32 s3, s{sW}, 15"); g(f"s_add_u32 s3, s3, {L_W}"); g(f"v_add_u32 v{vWl}, s3, v{vL16}")
    g("s_waitcnt lgkmcnt(0)"); g("s_barrier")
    for m in range(16):
        r=SW+8*m if m<4 else 32+8*(m-4)
        for e in range(2): g(f"ds_write_b128 v{vWl}, {q4('v',r+4*e)} offset:{m*2048+e*1024}")
    xm_bases(g,sXM,opt)
    xm_setup(g,vXa,vXb,vLa,vLb,vIdx,vL16,vTmp,sA,sB)
    g(f"s_lshl_b32 s{sU}, s{sX}, 4"); g(f"s_add_u32 s{sU}, s{sU}, s{sTK}")
    g(f"s_lshl_b32 s{sFl}, s{sU}, 8"); g(f"s_add_u32 s{sFl}, s{sFl}, {FLW}")
    g(f"s_mul_i32 s{sA}, s{sU}, {4*EXS}"); g(f"s_lshl_b32 s3, s{sW}, 10"); g(f"s_add_u32 s{sB}, s{sA}, s3")
    for s_ in range(4): g(f"s_add_u32 s{sEX+s_}, s{sB}, {EX+s_*EXS}")
    g(f"s_lshr_b32 s3, s{sW}, 1"); g("s_lshl_b32 s3, s3, 10"); g(f"s_add_u32 s{sA}, s{sA}, s3"); g(f"s_and_b32 s3, s{sW}, 1"); g("s_lshl_b32 s3, s3, 3"); g(f"s_add_u32 s{sA}, s{sA}, s3")
    for s_ in range(4): g(f"s_add_u32 s{sEV+s_}, s{sA}, {EX+s_*EXS+4096}")
    g(f"s_mul_i32 s{sA}, s{sX}, {2*PCX}"); g(f"s_lshl_b32 s3, s{sTK}, 8"); g(f"s_add_u32 s{sB}, s{sA}, s3")
    g(f"s_lshr_b32 s3, s{sW}, 1"); g(f"s_mul_i32 s3, s3, {5*16384}"); g(f"s_add_u32 s{sB}, s{sB}, s3")
    for s_ in range(2):
        g(f"s_and_b32 s3, s{sW}, 1"); g(f"s_mul_i32 s3, s3, {3*16384}"); g(f"s_add_u32 s3, s3, s{sB}")
        g(f"s_add_u32 s{sPCw+3*s_}, s3, {PC+s_*PCX}"); g(f"s_add_u32 s{sPCw+3*s_+1}, s3, {PC+s_*PCX+16384}")
        g(f"s_and_b32 s3, s{sW}, 1"); g("s_lshl_b32 s3, s3, 3"); g(f"s_add_u32 s3, s3, s{sB}"); g(f"s_add_u32 s{sPCw+3*s_+2}, s3, {PC+s_*PCX+2*16384}")
    g(f"s_lshl_b32 s{sU}, s{sTK}, 1"); g(f"s_and_b32 s3, s{sW}, 1"); g(f"s_add_u32 s{sU}, s{sU}, s3")
    g(f"s_lshr_b32 s{sRed}, s{sW}, 1")
    g(f"s_and_b32 s{sB}, s{sTK}, 1"); g(f"s_lshl_b32 s{sB}, s{sB}, 2"); g(f"s_add_u32 s{sB}, s{sB}, s{sW}")
    g(f"s_add_u32 s3, s{sFl}, 128"); g(f"s_cmp_eq_u32 s{sB}, 2"); g(f"s_cselect_b32 s{sGo}, s3, {OOB}")
    g(f"s_lshr_b32 s3, s{sTK}, 1"); g("s_add_u32 s3, s3, 32")
    g(f"s_cmp_eq_u32 s{sB}, 1"); g(f"s_cselect_b32 s{sU}, s3, s{sU}"); g(f"s_cselect_b32 s{sRed}, 1, s{sRed}")
    g(f"s_lshl_b32 s3, s{sU}, 12"); g(f"s_add_u32 s3, s3, s{sA}")
    for s_ in range(2): g(f"s_add_u32 s{sPCr+s_}, s3, {PC+s_*PCX}")
    g(f"v_add_u32 v{vL16b}, 4096, v{vL16}")
    g(f"v_lshrrev_b32 v{vTmp}, 4, v0"); g(f"v_and_b32 v{vPCw}, 15, v0")
    g(f"v_lshlrev_b32 v{vQKw}, 5, v{vPCw}"); g(f"v_lshl_add_u32 v{vQKw}, v{vTmp}, 3, v{vQKw}"); g(f"s_lshl_b32 s3, s{sW}, 10"); g(f"v_add_u32 v{vQKw}, s3, v{vQKw}")
    g(f"v_lshlrev_b32 v{vPCw}, 4, v{vPCw}"); g(f"v_lshl_add_u32 v{vPCw}, v{vTmp}, 12, v{vPCw}")
    g(f"v_lshlrev_b32 v{vTr}, 3, v0"); g(f"v_add_u32 v{vTrw}, s3, v{vTr}")
    g(f"s_lshl_b32 s3, s{sW}, 11"); g(f"v_add_u32 v{vVS}, s3, v{vL16}")
    g(f"s_lshr_b32 s3, s{sW}, 1"); g("s_lshl_b32 s3, s3, 10"); g(f"s_and_b32 s{sB}, s{sW}, 1"); g(f"s_lshl_b32 s{sB}, s{sB}, 5"); g(f"s_add_u32 s3, s3, s{sB}"); g(f"v_add_u32 v{vOa}, s3, v{vL16}")
    g(f"v_lshlrev_b32 v{vXw}, 6, v{vTmp}"); g(f"v_bfe_u32 v{vGo}, v0, 2, 1"); g(f"v_lshl_add_u32 v{vXw}, v{vGo}, 5, v{vXw}")
    g(f"v_and_b32 v{vZ2}, 1, v0"); g(f"v_lshl_add_u32 v{vXw}, v{vZ2}, 4, v{vXw}")
    g(f"s_lshl_b32 s3, s{sU}, 8"); g(f"s_cmp_ge_u32 s{sU}, 20"); g(f"s_cselect_b32 s{sB}, {16384-5120}, 0"); g(f"s_add_u32 s3, s3, s{sB}")
    g(f"s_and_b32 s{sB}, s{sX}, 1"); g(f"s_lshl_b32 s{sB}, s{sB}, 15"); g(f"s_add_u32 s3, s3, s{sB}")
    g(f"s_cmp_eq_u32 s{sRed}, 0"); g(f"s_cselect_b32 s3, {OOB}, s3"); g(f"v_add_u32 v{vXw}, s3, v{vXw}")
    srd(g, 8, 18, 8*1280)
    g(f"v_mul_u32_u24 v{vZ2}, 1280, v{vZ2}"); g(f"v_lshl_add_u32 v{vZ2}, v{vGo}, 6, v{vZ2}"); g(f"v_lshl_add_u32 v{vZ2}, v{vTmp}, 3, v{vZ2}")
    g(f"s_and_b32 s3, s{sU}, 3"); g("s_mul_i32 s3, s3, 2560"); g(f"s_lshr_b32 s{sA}, s{sU}, 2"); g(f"s_lshl_b32 s{sA}, s{sA}, 7"); g(f"s_add_u32 s3, s3, s{sA}"); g(f"s_add_u32 s3, s3, s{sB}")
    g(f"v_add_u32 v{vZ2}, s3, v{vZ2}")
    g(f"buffer_load_dwordx2 {q2('v',vSelR)}, v{vZ2}, {WT}, 0 offen"); g(f"buffer_load_dwordx2 {q2('v',vSelR+2)}, v{vZ2}, {WT}, 0 offen offset:32")
    g(f"buffer_load_dword v{vTmp}, off, {WS}, s{sFl} sc1")
    g(f"s_mov_b32 s{mO}, 0x33333333"); g(f"s_mov_b32 s{mO+1}, 0x33333333"); g(f"s_mov_b32 s{mX}, 0x00330033"); g(f"s_mov_b32 s{mX+1}, 0x00330033")
    g(f"s_mov_b32 s{sC1}, {hex(f32bits(128**-0.5*math.log2(math.e)))}")
    bulk.hblk(g,sKV,sH); g(f"s_lshr_b32 s3, s{sX}, 1"); g(f"s_mul_i32 s3, s3, {LST}"); g(f"s_add_u32 s{sKV}, s{sKV}, s3"); g(f"s_add_u32 s{sKV}, s{sKV}, {KQ}")
    g("s_waitcnt vmcnt(0) lgkmcnt(0)")
    g(f"s_mov_b64 exec, s[{mX}:{mX+1}]")
    g(f"buffer_store_dwordx4 {q4('v',vSelR)}, v{vXw}, {WS}, s{sXM} offen sc1")
    g("s_mov_b64 exec, -1")
    for i in range(4): g(f"v_mov_b32 v{vSent+i}, -1"); g(f"v_mov_b32 v{vOne+i}, 0x3f803f80"); g(f"v_mov_b32 v{vPm+i}, 0")
    for i in range(16): g(f"v_mov_b32 v{vAc+i}, 0")
    sel_regs(g,vSelT,vZ2,vGo,True)
    g("s_waitcnt vmcnt(0)")
    sel_regs(g,vSelR,vZ2,vGo,False)
    g(f"v_mov_b32 v{vZ2}, 0"); g(f"v_mov_b32 v{vZ2+1}, 0"); g(f"v_and_b32 v{vAr}, -33, v{vL16}"); g(f"v_mov_b32 v{vGo}, 1")
    tl(g,opt.get("trace"),DBG3+16384,101,2,R1)
    g(f"s_mov_b32 s{sT}, -1"); g(f"s_mov_b32 s{sTO}, 0")
    def kvfetch(gap):
        lf=g.uniq("fl"); lfd=g.uniq("fld")
        g(f"s_add_u32 s{sA}, s{sT}, 1")
        g.label(lf)
        g(f"v_cmp_ge_u32 vcc, s{sA}, v{vTmp}")
        g(f"s_cbranch_vccz {lfd}")
        g(f"buffer_load_dword v{vTmp}, off, {WS}, s{sFl} sc1")
        g("s_waitcnt vmcnt(0)")
        timeout(g, lf)
        g.label(lfd)
        bulk.blk(g,sKVc,sA,sKV,0)
        for i in range(16):
            if i==8: g(f"s_add_u32 s{sKVc}, s{sKVc}, {VO-KQ}")
            if i%4==0: g(f"s_mov_b32 m0, {L_KV+(i//4)*4096}"); g("s_nop 0")
            g(f"buffer_load_dwordx4 v{vL16 if (i//4)%2==0 else vL16b}, {WS}, s{sKVc} offen offset:{1024*(i%4)} sc1 lds")
            if gap: g(f"s_nop {gap-1}")
    l=g.uniq("k0"); g(f"s_cmp_lg_u32 s{sW}, 0"); g(f"s_cbranch_scc1 {l}")
    kvfetch(0)
    g.label(l)
    tl(g,opt.get("trace"),DBG3+16384,101,3,R1)
    g(f"s_mov_b32 s{sT}, 0")
    g(f"s_cmp_lg_u32 s{bulk.sSlow}, 0"); g(f"s_cbranch_scc1 L_{N}_loops")
    for LS,LN in (("","f"),(" sc1","s")):
        g.raw(".p2align 8")
        g.label(f"L_{N}_loop{LN}")
        for U in range(4):
            s2=U&1; ph=1-((U>>1)&1)
            if U: g.raw(".p2align 3")
            g(f"s_mov_b32 s{sTO}, 0")
            if opt.get("ldiag") and U==0:
                for tv,sr_ in ((8,84),(60,88)):
                    l=g.uniq("lt"); g(f"s_cmp_lg_u32 s{sT}, {tv}"); g(f"s_cbranch_scc1 {l}")
                    g(f"s_memrealtime s[{sr_}:{sr_+1}]"); g(f"s_memtime s[{sr_+2}:{sr_+3}]"); g("s_waitcnt lgkmcnt(0)"); g.label(l)
            xm_phase(c,sXM+U,vXa,vXb,vLa,vLb,vSelT,vTmp,R1)
            if diag: g(f"s_mov_b32 s12, s{sTO}")
            stamp("b1")
            fill=[(0,f"ds_read_b128 {q4('v',R1+4*i)}, v{vL16} offset:{L_KV+1024*i}") for i in range(8)]
            fill+=[(0,f"ds_read_b128 {q4('v',vVX+4*i)}, v{vVS} offset:{L_KV+8192+1024*i}") for i in range(2)]
            fill+=[(4,x) for n in range(4) for x in wrd(WREG[n],WLDS[n])]
            rs=[f"s_mov_b64 exec, s[{mX}:{mX+1}]", f"buffer_store_dwordx4 {q4('v',vSent)}, v{vXw}, {WS}, s{sXM+(U+3)%4} offen sc1", "s_mov_b64 exec, -1",
                f"buffer_store_dwordx4 {q4('v',vSent)}, v{vL16}, {WS}, s{sEX+(U+2)%4} offen{LS}"]
            proj(g,vAc,[72,76,80,84,96,100,112,116],qk,vAr,vIdx,fill,opt.get("nr0",3),rs)
            stamp("qd")
            cv=lambda o,d: f"v_cvt_pk_bf16_f32 v{o}, v{d}, v{d+1}"
            g("s_nop 2"); g(cv(vLs,vAc)); g(cv(vLs+1,vAc+2))
            g(f"ds_write_b64 v{vQKw}, {q2('v',vLs)} offset:{L_QK}")
            g("s_nop 1"); g(cv(vLs+2,vAc+4)); g(cv(vLs+3,vAc+6))
            g(f"ds_write_b64 v{vQKw}, {q2('v',vLs+2)} offset:{L_QK+512}")
            vml=f"buffer_load_dwordx2 {q2('v',vVM)}, v{vL16}, {WS}, s{sEV+U} offen sc1"
            g("s_waitcnt lgkmcnt(0)"); g("s_barrier")
            for j in range(4):
                for e in range(2): g(f"ds_read_b64_tr_b16 {q2('v',vF+4*j+2*e)}, v{vTr} offset:{L_QK+1024*j+512*e}")
            for e in range(2): g(f"ds_read_b64_tr_b16 {q2('v',vO+2*e)}, v{vTrw} offset:{L_QK+512*e}")
            nf=0
            stamp("b2")
            VAT=opt.get("v_at",6)
            for j in range(4):
                g(f"s_waitcnt lgkmcnt({8-2*j+nf})")
                for i,(d,a) in enumerate(((vS+4,R1+4*j),(vS+8,R1+16+4*j),(vS,vF+4*j))):
                    g(f"{MF} {q4('v',d)}, {q4('v',a)}, {q4('v',vF+4*j)}, {'0' if j==0 else q4('v',d)}")
                    if 3*j+i==VAT: g(vml)
                if j==2:
                    g(f"s_waitcnt lgkmcnt({nf})")
                    g(f"buffer_store_dwordx4 {q4('v',vO)}, v{vL16}, {WS}, s{sEX+U} offen{LS}")
            if U==3:
                g(f"s_cmp_eq_u32 s{sT}, 63"); g(f"s_cbranch_scc1 L_{N}_last")
            stamp("sc")
            def vat(k):
                if VAT==k: g(vml)
            g(f"v_mfma_f32_32x32x8_bf16 v[{R1}:{R1+15}], {q2('v',vZ2)}, {q2('v',vZ2)}, 0")
            g(f"v_max3_f32 v{t0}, v{vS+4}, v{vS+5}, v{vS+6}")
            vat(12)
            for x in wrd(WREG[4],WLDS[4]): g(x)
            g(f"v_max3_f32 v{t0}, v{t0}, v{vS+7}, v{vS+8}")
            g(f"v_max3_f32 v{t0}, v{t0}, v{vS+9}, v{vS+10}")
            g(f"v_max3_f32 v{t0}, v{t0}, v{vS+11}, v{vS+2}")
            g(f"v_max_f32 v{t0}, v{t0}, v{vS+3}")
            g(f"v_mov_b32 v{t1}, v{t0}"); g(f"v_mov_b64 {q2('v',R1+16)}, 0"); g(f"v_mov_b64 {q2('v',R1+18)}, 0")
            g(f"v_permlane16_swap_b32 v{t0}, v{t1}"); g(f"v_max_f32 v{t0}, v{t0}, v{t1}")
            g(f"v_mov_b32 v{t1}, v{t0}"); g("s_nop 1")
            g(f"v_permlane32_swap_b32 v{t0}, v{t1}"); g(f"v_max_f32 v{t0}, v{t0}, v{t1}")
            vat(13)
            g(f"v_mul_f32 v{t0}, s{sC1}, v{t0}")
            for i in range(4,12): g(f"v_fma_f32 v{vS+i}, v{vS+i}, s{sC1}, -v{t0}")
            vat(14)
            for i in range(4,12): g(f"v_exp_f32 v{vS+i}, v{vS+i}")
            g(f"v_fma_f32 v{vS+2}, v{vS+2}, s{sC1}, -v{t0}")
            for i in range(4): g(f"v_cvt_pk_bf16_f32 v{vP+i}, v{vS+4+2*i}, v{vS+5+2*i}")
            g(f"v_fma_f32 v{vS+3}, v{vS+3}, s{sC1}, -v{t0}")
            g(f"v_exp_f32 v{vS+2}, v{vS+2}")
            Ps=q4('v',vP)
            g(f"{MF} {q4('v',vLs)}, {q4('v',vOne)}, {Ps}, 0")
            g(f"v_exp_f32 v{vS+3}, v{vS+3}")
            g(f"{MF} {q4('v',vO)}, {q4('v',vVX)}, {Ps}, 0")
            g(f"v_cvt_pk_bf16_f32 v{vPm}, v{vS+2}, v{vS+3}"); g(f"v_cvt_pk_bf16_f32 v{vPm+3}, v{vS+2}, v{vS+3}")
            g(f"{MF} {q4('v',vO+4)}, {q4('v',vVX+4)}, {Ps}, 0")
            g("s_waitcnt vmcnt(0)")
            g(f"{MH} {q4('v',vLs)}, {q2('v',vOne)}, {q2('v',vPm)}, {q4('v',vLs)}")
            lp=g.uniq("pv"); g.label(lp)
            g(f"v_cmp_eq_u32 vcc, -1, v{vVM}")
            retry(lp,[vml,"s_waitcnt vmcnt(0)"])
            if diag: g(f"s_mov_b32 s13, s{sTO}")
            stamp("vok")
            g(f"{MH} {q4('v',vO)}, {q2('v',vVM)}, {q2('v',vPm)}, {q4('v',vO)}")
            g(f"{MH} {q4('v',vO+4)}, {q2('v',vVM)}, {q2('v',vPm+2)}, {q4('v',vO+4)}")
            g(f"v_rcp_f32 v{vLs}, v{vLs}")
            for x in wrd(WREG[13],WLDS[13])+wrd(WREG[14],WLDS[14]): g(x)
            g(f"s_mov_b64 exec, s[{mO}:{mO+1}]")
            for i in range(2):
                g(f"v_pk_mul_f32 {q2('v',vO+4*i)}, {q2('v',vO+4*i)}, {q2('v',vLs)} op_sel_hi:[1,0]")
                g(f"v_pk_mul_f32 {q2('v',vO+4*i+2)}, {q2('v',vO+4*i+2)}, {q2('v',vLs)} op_sel_hi:[1,0]")
                g(f"v_cvt_pk_bf16_f32 v{vO+2*i}, v{vO+4*i}, v{vO+4*i+1}")
                g(f"v_cvt_pk_bf16_f32 v{vO+2*i+1}, v{vO+4*i+2}, v{vO+4*i+3}")
            g(f"ds_write_b128 v{vOa}, {q4('v',vO)} offset:{L_O}")
            g("s_mov_b64 exec, -1")
            stamp("ow")
            g("s_waitcnt lgkmcnt(0)"); g("s_barrier")
            for f in range(4): g(f"ds_read_b128 {q4('v',vOf+4*f)}, v{vAr} offset:{L_O+1024*(f>>1)+32*(f&1)}")
            stamp("ostg")
            tag=(lambda r: f"v_or_b32 v{r}, 1, v{r}") if ph else (lambda r: f"v_and_b32 v{r}, -2, v{r}")
            def wout(P):
                for x in (cv(vOut+2*P,R1+4*P),cv(vOut+2*P+1,R1+4*P+2),tag(vOut+2*P)): g(x)
                if P in (1,3): g(f"buffer_store_dwordx4 {q4('v',vOut+2*P-2)}, v{vPCw}, {WS}, s{sPCw+3*s2+P//2} offen{LS}")
                if P==4: g(f"buffer_store_dwordx2 {q2('v',vOut+8)}, v{vPCw}, {WS}, s{sPCw+3*s2+2} offen{LS}")
            rl=[x for n in range(15,20) for x in wrd(WREG[n],WLDS[n])]
            for q,(P,f) in enumerate(WPF):
                if q<8 and q%2==0: g(f"s_waitcnt lgkmcnt({3-f+q})")
                if q>=15: g(f"s_waitcnt lgkmcnt({2*(19-q)})")
                g(f"{SM} {q4('v',R1+4*P)}, {q4('v',vOf+4*f)}, {q8('v',WREG[q])}, v{vIdx}")
                if q<10: g(rl[q])
                if q in (8,9): wout(q-8)
                if q in (16,17): wout(q-14)
            g("s_nop 7")
            wout(4)
            stamp("wo")
            for n in range(4):
                for x in wrd(SW+8*n,n): g(x)
            for i in range(0,8,2): g(f"v_mov_b64 {q2('v',vAc+i)}, 0")
            lnr=g.uniq("nr"); lj=g.uniq("rj")
            g(f"s_cmp_eq_u32 s{sRed}, 0"); g(f"s_cbranch_scc1 {lnr}")
            dly("dly_pc")
            stamp("pcld")
            lp=g.uniq("pp"); g.label(lp)
            d=R1+16
            for i in range(4): g(f"buffer_load_dwordx4 {q4('v',R1+4*i)}, v{vL16}, {WS}, s{sPCr+s2} offen offset:{1024*i} sc1")
            for i in range(4):
                g(f"s_waitcnt vmcnt({3-i})")
                g(f"{MF} {q4('v',d)}, {q4('v',R1+4*i)}, {q4('v',vSelR)}, {'0' if i==0 else q4('v',d)}")
                if i==0: g(f"{'v_and_b32' if ph else 'v_or_b32'} v{vTmp}, v{R1}, v{R1+2}")
                elif ph: g(f"v_bitop3_b32 v{vTmp}, v{vTmp}, v{R1+4*i}, v{R1+4*i+2} bitop3:0x80")
                else: g(f"v_or3_b32 v{vTmp}, v{vTmp}, v{R1+4*i}, v{R1+4*i+2}")
            g(f"v_and_b32 v{vTmp}, 1, v{vTmp}")
            g(f"v_cmp_ne_u32 vcc, {ph}, v{vTmp}")
            retry(lp)
            if diag: g(f"s_mov_b32 s14, s{sTO}")
            g("s_nop 2")
            g(f"v_cvt_pk_bf16_f32 v{d+4}, v{d}, v{d+1}"); g(f"v_cvt_pk_bf16_f32 v{d+5}, v{d+2}, v{d+3}")
            g("s_nop 0")
            g(f"v_mov_b32_dpp v{d+6}, v{d+4} quad_perm:[2,3,2,3] row_mask:0xf bank_mask:0xf")
            g(f"v_mov_b32_dpp v{d+7}, v{d+5} quad_perm:[2,3,2,3] row_mask:0xf bank_mask:0xf")
            g(f"s_mov_b64 exec, s[{mX}:{mX+1}]")
            g(f"buffer_store_dwordx4 {q4('v',d+4)}, v{vXw}, {WS}, s{sXM+(U+1)%4} offen sc1")
            g("s_mov_b64 exec, 1")
            g(f"buffer_store_dword v{vGo}, off, {WS}, s{sGo}{LS}")
            g("s_mov_b64 exec, -1")
            stamp("red")
            g("s_barrier")
            stamp("bx")
            c.dump(sT,R1+24)
            dly("dly_xm")
            g.label(lj)
            def nonred(lnr=lnr,lj=lj):
                g.label(lnr)
                if diag: g(f"s_mov_b32 s14, s{sTO}"); stamp("pcld"); stamp("red")
                li=g.uniq("id")
                g(f"s_cmp_lg_u32 s{sW}, 0"); g(f"s_cbranch_scc1 {li}")
                g(f"buffer_load_dword v{vTmp}, off, {WS}, s{sFl} sc1")
                g("s_waitcnt vmcnt(0)")
                g("s_barrier")
                stamp("bx")
                kvfetch(opt.get("kv_gap",0))
                c.dump(sT,R1+24)
                dly("dly_w0")
                g(f"s_branch {lj}")
                g.label(li)
                g("s_barrier")
                stamp("bx")
                c.dump(sT,R1+24)
                dly("dly_xm")
                g(f"s_branch {lj}")
            c.cold.append(nonred)
            g(f"v_add_u32 v{vGo}, 1, v{vGo}")
            g(f"s_add_u32 s{sT}, s{sT}, 1")
        g(f"s_branch L_{N}_loop{LN}")
        c.flush()
    g.label(f"L_{N}_last")
    if opt.get("ldiag"):
        g("s_sub_u32 s84, s88, s84"); g("s_sub_u32 s86, s90, s86")
        g(f"v_mov_b32 v{R1}, s84"); g(f"v_mov_b32 v{R1+1}, s86")
        g(f"s_lshl_b32 s3, s101, 3"); g(f"s_add_u32 s3, s3, {DBG3+32768}")
        g("s_mov_b64 exec, 1")
        g(f"buffer_store_dwordx2 {q2('v',R1)}, off, {WS}, s3")
        g("s_mov_b64 exec, -1")
    g("s_endpgm")

def vrole(g, opt):
    import bulk
    c=Ctx(g,opt,opt.get("vpts",["go","xld","xm","vst","sg","kok","ost","sig"])); stamp,dly,retry,diag=c.stamp,c.dly,c.retry,c.diag
    N="vr"
    sH,sT,sIn,sXM,sEX,sA,sB,sU,sSc,sL2e,sFO,sMq,sMk,sKo,sQo,sEv=52,53,54,56,60,76,77,64,65,66,67,68,69,70,71,72
    sFl,sGo,sLd,sRdy,sSg=32,17,16,33,34
    vL16,vXa,vXb,vLa,vLb,vL16b,vTmp,vIdx,vZ2,vT2,vSt,vSig,vWf,vQa,vKa,vMw,vMr,vEv,vVa=1,2,3,4,5,6,7,8,9,10,11,12,13,14,15,16,17,18,19
    m1,l1,tx,fa,vAr=20,21,22,28,23
    vSelT,vSent=24,32
    R1,vAc,vS,vB0,vP,vPm,vKM,vVM,vO=40,80,96,108,116,120,124,140,148
    VF=[R1+16+4*i for i in range(6)]+[180,184]
    L_VM,L_B=10240,16384
    wv=lambda n: q8('v',192+8*n) if n<8 else q8('a',8*(n-8))
    g.label(f"L_{N}")
    if diag: g.raw("; VPTS "+" ".join(c.pts))
    g(f"s_and_b32 s3, s{sX}, 1"); g("s_lshl_b32 s3, s3, 3"); g(f"s_add_u32 s{sH}, s3, s{sTK}"); g(f"s_sub_u32 s{sH}, s{sH}, 16"); g(f"s_lshl_b32 s{sH}, s{sH}, 1")
    g(f"s_lshr_b32 s3, s{sX}, 1"); g("s_lshl_b32 s3, s3, 5"); g(f"s_add_u32 s{sGo}, s3, s{sH}"); g(f"s_lshl_b32 s{sGo}, s{sGo}, 8"); g(f"s_add_u32 s{sGo}, s{sGo}, {FLW+128}")
    g(f"s_lshr_b32 s3, s{sW}, 1"); g(f"s_add_u32 s{sH}, s{sH}, s3")
    vD,vA,vB=2,20,24
    srd(g, 8, 24, 640*8192)
    w_voff(g,vD,vTmp,8192)
    g(f"s_and_b32 s3, s{sW}, 1"); g(f"s_mul_i32 s{sA}, s3, {32*8192}"); g(f"s_lshl_b32 s3, s{sH}, 8"); g(f"s_add_u32 s{sA}, s{sA}, s3")
    g(f"s_lshl_b32 s{sU}, s{sW}, 13")
    for cch in range(5): w_dma(g,vD,sA,sU,cch,8192,1,32*8192)
    w_raddr(g,vA,vTmp,False)
    g(f"s_and_b32 s3, s{sW}, 1"); g("s_lshl_b32 s3, s3, 7"); g(f"v_xor_b32 v{vA}, s3, v{vA}")
    g(f"s_lshr_b32 s3, s{sW}, 1"); g("s_lshl_b32 s3, s3, 14"); g(f"v_add_u32 v{vA}, s3, v{vA}")
    for t in range(1,4): g(f"v_xor_b32 v{vA+t}, {64*(t&1)+(8192+128)*(t>>1)}, v{vA}")
    for cch in range(10):
        g(f"s_waitcnt vmcnt({8*min(4,9-cch)})"); g("s_barrier")
        for t in range(4): g(f"v_add_u32 v{vB+t}, {(cch%5)*32768}, v{vA+t}")
        for t in range(4):
            k,r=wv(4*cch+t)[0],int(wv(4*cch+t)[2:].split(":")[0])
            for rho in range(4): g(f"ds_read_b64_tr_b16 {q2(k,r+2*rho)}, v{vB+t} offset:{512*rho}")
        g("s_waitcnt lgkmcnt(0)")
        if cch<5:
            g("s_barrier"); w_dma(g,vD,sA,sU,cch,8192,1,32*8192)
    tl(g,opt.get("trace"),DBG3+16384,101,1,vTmp)
    startup_checks(g,opt,8,sA,sB)
    g("s_barrier")
    g(f"v_lshlrev_b32 v{vL16}, 4, v0"); g(f"v_add_u32 v{vL16b}, 4096, v{vL16}")
    xm_bases(g,sXM,opt)
    xm_setup(g,vXa,vXb,vLa,vLb,vIdx,vL16,vTmp,sA,sB)
    g(f"s_lshr_b32 s3, s{sX}, 1"); g("s_lshl_b32 s3, s3, 5"); g(f"s_add_u32 s{sU}, s3, s{sH}")
    g(f"s_lshl_b32 s{sFl}, s{sU}, 8"); g(f"s_add_u32 s{sFl}, s{sFl}, {FLW}")
    g(f"s_mul_i32 s{sA}, s{sU}, {4*EXS}")
    for s_ in range(4): g(f"s_add_u32 s{sEX+s_}, s{sA}, {EX+s_*EXS}")
    g(f"s_and_b32 s{sB}, s{sW}, 1"); g(f"s_lshr_b32 s{sA}, s{sW}, 1")
    g(f"s_lshl_b32 s3, s{sB}, 10"); g(f"v_add_u32 v{vEv}, s3, v{vL16b}")
    g(f"s_lshl_b32 s3, s{sW}, 10"); g(f"v_add_u32 v{vMw}, s3, v{vL16}")
    g(f"s_lshl_b32 s3, s{sA}, 11"); g(f"v_add_u32 v{vMr}, s3, v{vL16}")
    g(f"s_mul_i32 s{sMk}, s{sA}, 24576"); g(f"s_add_u32 s{sMk}, s{sMk}, {L_B}"); g(f"v_add_u32 v{vKa}, s{sMk}, v{vL16}"); g(f"v_add_u32 v{vVa}, 16384, v{vKa}")
    g(f"s_lshl_b32 s{sQo}, s{sB}, 12"); g(f"s_add_u32 s{sMq}, s{sMk}, s{sQo}"); g(f"s_add_u32 s{sMq}, s{sMq}, 8192"); g(f"v_add_u32 v{vQa}, s{sMq}, v{vL16}")
    g(f"s_lshl_b32 s3, s{sB}, 14"); g(f"s_add_u32 s{sMk}, s{sMk}, s3")
    g(f"s_mul_i32 s{sKo}, s{sB}, {VO-KQ}")
    bulk.hblk(g,sIn,sH); g(f"s_lshr_b32 s3, s{sX}, 1"); g(f"s_mul_i32 s3, s3, {LST}"); g(f"s_add_u32 s{sIn}, s{sIn}, s3"); g(f"s_add_u32 s{sIn}, s{sIn}, {KQ}")
    bulk.near_setup(g,0,have=True)
    g(f"s_lshr_b32 s3, s{sX}, 1"); g(f"s_lshl_b32 s{sFO}, s3, 8"); g(f"s_add_u32 s{sFO}, s{sFO}, s{bulk.sN1}"); g(f"s_add_u32 s{sFO}, s{sFO}, {CO}")
    g(f"s_lshr_b32 s3, s{sH}, 2"); g(f"s_mul_i32 s3, s3, {5*512}"); g(f"v_lshl_add_u32 v{vSig}, v0, 9, s3"); bulk.spread_v(g,vSig,vTmp)
    g(f"v_lshrrev_b32 v{vTmp}, 4, v0"); g(f"v_lshlrev_b32 v{vSt}, 9, v{vTmp}"); g(f"v_and_b32 v{vT2}, 15, v0"); g(f"v_lshl_add_u32 v{vSt}, v{vT2}, 4, v{vSt}")
    g(f"s_lshl_b32 s3, s{sB}, 8"); g(f"v_add_u32 v{vSt}, s3, v{vSt}")
    g(f"s_lshl_b32 s3, s{sB}, 4"); g(f"v_add_u32 v{vT2}, s3, v{vT2}"); g(f"v_lshlrev_b32 v{vTmp}, 2, v{vTmp}"); g(f"v_mov_b32 v{vO}, 0xff61b1e6")
    for b in range(8):
        g(f"v_add_u32 v{vO+1}, {16*(b>>2)+(b&3)}, v{vTmp}")
        g(f"v_cmp_gt_u32 vcc, v{vO+1}, v{vT2}"); g("s_nop 1")
        g(f"v_cndmask_b32 v{vB0+b}, 0, v{vO}, vcc")
    for i in range(4): g(f"v_mov_b32 v{vSent+i}, -1"); g(f"v_mov_b32 v{vPm+i}, 0")
    for i in range(16): g(f"v_mov_b32 v{vAc+i}, 0")
    sel_regs(g,vSelT,vZ2,vT2,True)
    g(f"v_mov_b32 v{vZ2}, 0"); g(f"v_and_b32 v{vAr}, -33, v{vL16}")
    g(f"s_mov_b32 s{sSc}, {hex(f32bits(128**-0.5))}"); g(f"s_mov_b32 s{sL2e}, {hex(f32bits(math.log2(math.e)))}")
    NT=" nt" if opt.get("att_nt",1) else ""
    def fetch(par, defer=False):
        g(f"s_cselect_b32 s{sA}, s{sA}, {OOB>>19}")
        bulk.blk(g,sLd,sA,sIn,0)
        g(f"s_xor_b32 s{sEv}, s{sLd}, 8192"); g(f"s_add_u32 s{sEv}, s{sEv}, s{sQo}"); g(f"s_add_u32 s{sLd}, s{sLd}, s{sKo}")
        L=[]
        for i in range(8):
            L.append((f"s_add_u32 m0, s{sMk}, {par*49152+1024*i}\ns_nop 0\n" if i%4==0 else "")+f"buffer_load_dwordx4 v{vL16 if i<4 else vL16b}, {WS}, s{sLd} offen offset:{1024*(i%4)} sc1 lds")
        L+=[(f"s_add_u32 m0, s{sMq}, {par*49152}\ns_nop 0\n" if i==0 else "")+f"buffer_load_dwordx4 v{vL16}, {WS}, s{sEv} offen offset:{1024*i} sc1{NT} lds" for i in range(4)]
        if defer: return L
        for x in L: g(x)
    g(f"s_mov_b32 s{sT}, 0"); g(f"s_mov_b32 s{sA}, 0")
    bulk.poll_ge(g, vTmp, vZ2, f"s{sFl}", "1", mask="1", sleep=4)
    g("s_cmp_eq_u32 s3, s3"); fetch(0)
    tl(g,opt.get("trace"),DBG3+16384,101,3,R1)
    g(f"s_sub_u32 s{sFO}, s{sFO}, 4")
    g(f"s_cmp_lg_u32 s{bulk.sSlow}, 0"); g(f"s_cbranch_scc1 L_{N}_ents"); g(f"s_branch L_{N}_entf")
    rnd=lambda R: bulk.rnd_pairs(g,R,vTmp)
    def scale(R):
        rnd(R)
        for i in range(0,len(R),2): g(f"v_pk_mul_f32 {q2('v',R[i])}, {q2('v',R[i])}, s[{sSc-1}:{sSc}] op_sel:[0,1] op_sel_hi:[1,1]")
        rnd(R)
    for LS,LN in (("","f"),(" sc1","s")):
        g.raw(".p2align 6")
        g.label(f"L_{N}_loop{LN}")
        for U in range(4):
            par=U&1
            g(f"s_mov_b32 s{sTO}, 0")
            gl=f"buffer_load_dword v{vTmp}, off, {WS}, s{sGo} sc1"
            g(gl); g("s_waitcnt vmcnt(0)")
            lp=g.uniq("go"); g.label(lp)
            g(f"v_cmp_gt_u32 vcc, s{sT}, v{vTmp}")
            retry(lp,[f"s_nop {opt.get('go_gap',7)}",gl,"s_waitcnt vmcnt(0)"])
            bulk.signal(g, vT2, vSig, sSg, "31")
            if U==0: g.label(f"L_{N}_ent{LN}")
            stamp("go")
            g(f"s_mov_b32 s{sTO}, 0")
            dly("dly_v")
            xm_phase(c,sXM+U,vXa,vXb,vLa,vLb,vSelT,vTmp,R1)
            if diag: g(f"s_mov_b32 s12, s{sTO}")
            stamp("b1")
            fill=[(0,f"ds_read_b128 {q4('v',vO+4*i)}, v{vKa} offset:{par*49152+1024*i}") for i in range(8)]
            fill+=[(0,f"ds_read_b128 {q4('v',R1+4*i)}, v{vQa} offset:{par*49152+1024*i}") for i in range(4)]
            proj(g,vAc,VF,wv,vAr,vIdx,fill,3,[f"buffer_load_dword v{vWf}, off, {WS}, s{sFl} sc1"])
            g("s_nop 2")
            for t in range(4):
                if t==2: g("s_nop 2")
                g(f"v_cvt_pk_bf16_f32 v{vP+t}, v{vAc+2*t}, v{vAc+2*t+1}")
            g(f"buffer_store_dwordx4 {q4('v',vP)}, v{vEv}, {WS}, s{sEX+U} offen{LS}")
            g(f"ds_write_b128 v{vMw}, {q4('v',vP)} offset:{L_VM}")
            g(f"buffer_store_dwordx4 {q4('v',vSent)}, v{vEv}, {WS}, s{sEX+(U+3)%4} offen{LS}")
            stamp("vst")
            g("s_waitcnt vmcnt(2)"); g(f"v_readfirstlane_b32 s{sRdy}, v{vWf}"); g(f"s_add_u32 s{sA}, s{sT}, 1"); g("s_waitcnt lgkmcnt(1)")
            g(f"s_cmp_gt_u32 s{sRdy}, s{sA}"); g(f"s_cselect_b32 s{sRdy}, 1, 0")
            dm=fetch(1-par,True); n1=opt.get("dm_n1",4); dm2=dm[n1:]; dm=dm[:n1]
            n0=len(g.lines)
            zs=[f"v_mov_b32 v{vAc+i}, 0" for i in range(8)]
            vr_=[f"ds_read_b128 {q4('v',VF[i])}, v{vVa} offset:{par*49152+1024*i}" for i in range(8)]
            for j in range(4):
                for tk in range(2):
                    g(f"{MF} {q4('v',vS+4+4*tk)}, {q4('v',vO+16*tk+4*j)}, {q4('v',R1+4*j)}, {q4('v',vB0+4*tk) if j==0 else q4('v',vS+4+4*tk)}")
                    g(zs.pop(0)); g(vr_.pop(0))
            g("s_waitcnt lgkmcnt(8)"); g("s_barrier")
            for e in range(2): g(f"ds_read_b128 {q4('v',vVM+4*e)}, v{vMr} offset:{L_VM+1024*e}")
            g("s_nop 4")
            SG=[vS+4+i for i in range(8)]
            scale(SG)
            g(f"v_max3_f32 v{m1}, v{vS+4}, v{vS+5}, v{vS+6}"); g(f"v_max3_f32 v{m1}, v{m1}, v{vS+7}, v{vS+8}")
            g(f"v_max3_f32 v{m1}, v{m1}, v{vS+9}, v{vS+10}"); g(f"v_max_f32 v{m1}, v{m1}, v{vS+11}")
            bulk.xsum4(g,m1,tx,"v_max_f32")
            g(f"v_mul_f32 v{tx}, s{sL2e}, v{m1}")
            for r in SG: g(f"v_fma_f32 v{r}, v{r}, s{sL2e}, -v{tx}")
            for r in SG: g(f"v_exp_f32 v{r}, v{r}")
            blk_=g.lines[n0:]; del g.lines[n0:]
            ev=opt.get("dm_ev",5)
            for i,x in enumerate(blk_):
                g.lines.append(x)
                if i%ev==0 and dm and not x.strip().startswith(("v_mov_b32","s_nop")): g(dm.pop(0))
            for x in dm: g(x)
            dly("dly_k")
            kld=[f"buffer_load_dwordx4 {q4('v',vKM+4*i)}, v{vL16}, {WS}, s{sEX+U} offen offset:{1024*i} sc1" for i in range(4)]
            for x in kld+dm2: g(x)
            g(f"v_add_f32 v{l1}, v{SG[0]}, v{SG[1]}")
            for r in SG[2:]: g(f"v_add_f32 v{l1}, v{l1}, v{r}")
            stamp("sg")
            bulk.blk(g,sA,sT,sIn,1); g(f"s_add_u32 s{sA}, s{sA}, {VO-KQ}")
            g(f"s_add_u32 s{sT}, s{sT}, 1"); g(f"s_add_u32 s{sFO}, s{sFO}, 4")
            g(f"s_waitcnt vmcnt({len(dm2)})")
            lp=g.uniq("pk"); g.label(lp)
            g(f"v_max3_u32 v{vTmp}, v{vKM}, v{vKM+4}, v{vKM+8}"); g(f"v_max_u32 v{vTmp}, v{vTmp}, v{vKM+12}")
            g(f"v_cmp_eq_u32 vcc, -1, v{vTmp}")
            retry(lp,[f"s_nop {opt.get('k_gap',7)}"]+kld+["s_waitcnt vmcnt(0)"])
            if diag: g(f"s_mov_b32 s13, s{sTO}")
            stamp("kok")
            for j in range(4): g(f"{MF} {q4('v',vS)}, {q4('v',vKM+4*j)}, {q4('v',R1+4*j)}, {'0' if j==0 else q4('v',vS)}")
            g("s_nop 7")
            scale([vS+2,vS+3])
            g(f"v_max3_f32 v{vS}, v{vS+2}, v{vS+3}, v{m1}")
            bulk.xsum4(g,vS,tx,"v_max_f32")
            g(f"v_mul_f32 v{vS}, s{sL2e}, v{vS}")
            g(f"v_fma_f32 v{fa}, v{m1}, s{sL2e}, -v{vS}")
            for i in (2,3): g(f"v_fma_f32 v{vS+i}, v{vS+i}, s{sL2e}, -v{vS}")
            g(f"v_exp_f32 v{fa}, v{fa}")
            for i in (2,3): g(f"v_exp_f32 v{vS+i}, v{vS+i}")
            g("s_nop 0")
            g(f"v_fma_f32 v{l1}, v{l1}, v{fa}, v{vS+2}"); g(f"v_add_f32 v{l1}, v{l1}, v{vS+3}")
            bulk.xsum4(g,l1,tx,"v_add_f32")
            g(f"v_rcp_f32 v{l1}, v{l1}"); g("s_nop 0")
            g(f"v_mul_f32 v{fa}, v{fa}, v{l1}")
            for i in range(0,8,2):
                g(f"v_pk_mul_f32 {q2('v',SG[i])}, {q2('v',SG[i])}, {q2('v',fa)} op_sel_hi:[1,0]"); g(f"v_cvt_pk_bf16_f32 v{vP+i//2}, v{SG[i]}, v{SG[i]+1}")
            g(f"v_pk_mul_f32 {q2('v',vS+2)}, {q2('v',vS+2)}, {q2('v',l1-1)} op_sel:[0,1] op_sel_hi:[1,1]")
            g("s_waitcnt lgkmcnt(0)")
            g(f"v_cvt_pk_bf16_f32 v{vPm}, v{vS+2}, v{vS+3}"); g(f"v_cvt_pk_bf16_f32 v{vPm+3}, v{vS+2}, v{vS+3}")
            def outs(j):
                for k in range(4*j,4*j+4): g(f"v_cvt_pk_bf16_f32 v{R1+k}, v{vO+2*k}, v{vO+2*k+1}")
                g(f"buffer_store_dwordx4 {q4('v',R1+4*j)}, v{vSt}, {WS}, s{sA} offen offset:{2048*(j&1)} sc1")
                if j==1: g(f"s_add_u32 s{sA}, s{sA}, 4096")
            for i in range(9):
                if i<8: g(f"{MF} {q4('v',vO+4*i)}, {q4('v',VF[i])}, {q4('v',vP)}, 0")
                if i>0: g(f"{MH} {q4('v',vO+4*i-4)}, {q2('v',vVM+2*((i-1)>>1))}, {q2('v',vPm+2*((i-1)&1))}, {q4('v',vO+4*i-4)}")
                if i in (4,6,8): outs((i-4)//2)
            g(f"v_mov_b32 v{vTmp}, s{sT}")
            g("s_nop 2")
            outs(3)
            g("s_mov_b64 exec, 1")
            g(f"buffer_store_dword v{vTmp}, off, {WS}, s{sFl} offset:8{LS}")
            g("s_mov_b64 exec, -1")
            stamp("ost")
            g(f"s_mov_b32 s{sA}, s{sT}")
            if U==3:
                g(f"s_cmp_eq_u32 s{sT}, 64"); g(f"s_cbranch_scc1 L_{N}_last")
            lw=g.uniq("nw"); lj=g.uniq("nj")
            g(f"s_mov_b32 s{sSg}, s{sFO}")
            g(f"s_cmp_eq_u32 s{sRdy}, 0"); g(f"s_cbranch_scc1 {lw}")
            g.label(lj)
            stamp("sig")
            if diag:
                g(f"s_xor_b32 s14, s{sRdy}, 1"); g(f"s_add_u32 s14, s14, s13"); g(f"s_sub_u32 s{sA}, s{sT}, 1"); c.dump(sA,vS)
            def late(lw=lw,lj=lj,par=par):
                g.label(lw)
                g("s_waitcnt vmcnt(0)")
                bulk.signal(g, vT2, vSig, sFO, "31")
                g(f"s_mov_b32 s{sSg}, {OOB}")
                g(f"s_add_u32 s{sB}, s{sT}, 1")
                bulk.poll_ge(g, vTmp, vZ2, f"s{sFl}", f"s{sB}", mask="1", sleep=1)
                g("s_cmp_eq_u32 s3, s3"); fetch(1-par)
                g(f"s_branch {lj}")
            c.cold.append(late)
        g(f"s_branch L_{N}_loop{LN}")
        c.flush()
    g.label(f"L_{N}_last")
    g("s_waitcnt vmcnt(0)")
    bulk.signal(g, vT2, vSig, sFO, "31")
    g("s_endpgm")
```

```python
import os
S=2048; D=640; H=32; DH=128; NSEG=64; M=8
WL=int(os.environ.get('WL','13'))
AHEAD=int(os.environ.get('AHEAD','10'))
WS_BYTES=268435456
def al(x,a=4096): return (x+a-1)//a*a
_o=0
def alloc(n):
    global _o
    r=_o; _o=al(_o+n); return r
FLW    = alloc(64*256)
CQKV   = alloc(32*256)
_o=al(_o,16384)
CQKV1  = alloc(2*32*256)
CO     = alloc(3*16384)
CPBS=2*32*512; CXNS=2*96*256
CPB    = alloc(4*CPBS)
CXN    = alloc(4*CXNS)
PCX    = 40*4096
PC     = alloc(2*4*PCX)
ZERO_END=_o
EXS    = 6144
EX     = alloc(64*4*EXS)
SENT_END=_o
_o=al(_o,1<<21)
XM     = alloc(4<<21)
_o=al(_o,16384)
PROBE  = alloc(8*16384)
_o=al(_o,1<<22)
KQ     = alloc(2*64*32*16384)
VO     = alloc(2*64*32*16384)
LST    = 64*32*16384
PB     = alloc(2*64*8*40960)
XN     = alloc(2*64*40960)
KVT    = alloc(640*4096)
YT     = alloc(32*81920)
DBG    = alloc(4<<20)
DBG2   = alloc(1024*80*32)
DBG3   = alloc(65536)
assert _o<=WS_BYTES, _o
OOB = WS_BYTES
CLEARS=[(0,ZERO_END,0),(ZERO_END,SENT_END,-1)]+[(XM+(s<<21),XM+(s<<21)+4*32768,-1) for s in range(4)]
```

```python
from asmlib import *
from layout import *
import chain as ch
import bulk as bk
from chain import WS,WT,MF,q4,sX,sTK,sW,sTO,sPAR,timeout
W2="s[12:15]"; DB="s[96:99]"
sHI,sRole=82,83
CH_LDS=13312
KVO,EO,OO=0,4608,4608+4160
NH=88; NHW=4*NH
BA,BB,BY1,BC1,BC2,BY2=(4,88),(68,40),(8,160),(72,8),(12,64),(76,128)
BB2=(80,40)
ROW1,ROW2=352,544
def dbsrd(g): srd(g, 96, 44, 256)

def arrive_w(g, bar, v):
    off,n=bar
    dbsrd(g)
    l=g.uniq("aw")
    g(f"v_mov_b32 v{v}, 1"); g("s_mov_b64 exec, 1")
    g(f"buffer_atomic_add v{v}, off, {DB}, 0 offset:{off} sc0")
    g("s_waitcnt vmcnt(0)")
    g(f"v_cmp_eq_u32 vcc, {n-1}, v{v}"); g(f"s_cbranch_vccz {l}")
    g(f"buffer_store_dword v{v}, off, {DB}, 0 offset:{off+128} sc1")
    g.label(l)
    g("s_mov_b64 exec, -1")

def arrive(g, bar):
    g("s_waitcnt vmcnt(0)"); g("s_barrier")
    l=g.uniq("ar")
    g(f"s_cmp_lg_u32 s{sW}, 3"); g(f"s_cbranch_scc1 {l}")
    arrive_w(g,bar,1)
    g.label(l)

def wait_bar(g, off, n, v, par=False, sleep=2):
    dbsrd(g)
    g(f"v_mov_b32 v{v}, {off+128}")
    if par: g("s_mov_b32 s3, 144"); g(f"v_writelane_b32 v{v}, s3, 1")
    lp=g.uniq("wb"); ld=g.uniq("wbd")
    g(f"s_mov_b32 s{sTO}, 0"); g(f"s_mov_b64 exec, {3 if par else 1}")
    g.label(lp)
    g(f"buffer_load_dword v{v+1}, v{v}, {DB}, 0 offen sc1")
    g("s_waitcnt vmcnt(0)")
    g(f"v_cmp_eq_u32 vcc, 0, v{v+1}")
    g(f"s_cbranch_vccz {ld}")
    g(f"s_sleep {sleep}")
    timeout(g, lp)
    g.label(ld)
    g("s_mov_b64 exec, -1")
    if par:
        g(f"v_readlane_b32 s{sPAR}, v{v+1}, 1"); g("s_nop 3"); g(f"s_sub_u32 s{sPAR}, s{sPAR}, 1")

def wait_wg(g, off, n, v, par=False):
    l=g.uniq("ww")
    g(f"s_cmp_lg_u32 s{sW}, 0"); g(f"s_cbranch_scc1 {l}")
    wait_bar(g,off,n,v,par)
    g.label(l)
    g("s_barrier")
    if par: wait_bar(g,off,n,v,par)

def probe(g):
    g("s_mov_b32 s64, 0xffff"); g("s_mov_b32 s65, 0xffff"); g("s_mov_b32 s62, 0")
    g("s_getreg_b32 s70, hwreg(HW_REG_XCC_ID, 2, 1)"); g("s_lshl_b32 s70, s70, 13")
    g("v_lshlrev_b32 v1, 8, v0"); g("v_mov_b32 v2, 0")
    dbsrd(g)
    g.label("L_probe0")
    g(f"s_sub_u32 s61, s{sHI}, 80"); g("s_lshl_b32 s61, s61, 14"); g(f"s_add_u32 s61, s61, {PROBE}"); g("s_add_u32 s63, s61, 8192")
    g("s_mov_b64 exec, -1")
    g(f"buffer_store_dword v2, v1, {WS}, s61 offen sc1")
    g("s_waitcnt vmcnt(0)")
    g("s_mov_b64 exec, 1")
    g.label("L_probe")
    for half in range(2):
        g(f"s_add_u32 s60, s61, {half*8192}"); g("s_xor_b32 s60, s60, s70")
        g("s_memtime s[66:67]"); g("s_waitcnt lgkmcnt(0)")
        g(f"buffer_load_dword v3, off, {WS}, s60 sc1")
        g("s_waitcnt vmcnt(0)")
        g("s_memtime s[68:69]"); g("s_waitcnt lgkmcnt(0)")
        g("s_sub_u32 s68, s68, s66"); g(f"s_min_u32 s{64+half}, s{64+half}, s68")
    g("s_add_u32 s61, s61, 2048")
    g("s_cmp_lt_u32 s61, s63"); g("s_cbranch_scc1 L_probe")
    g("s_cmp_lg_u32 s62, 0"); g("s_cbranch_scc1 L_probe_dec")
    g("s_sub_u32 s66, 0x10000, s64"); g("s_sub_u32 s67, 0x10000, s65")
    g("v_mov_b32 v4, s66"); g("v_mov_b32 v5, s67"); g("v_mov_b32 v3, 1")
    g(f"buffer_atomic_umax v4, off, {DB}, 0 offset:24"); g(f"buffer_atomic_umax v5, off, {DB}, 0 offset:28")
    g("s_waitcnt vmcnt(0)")
    g(f"buffer_atomic_add v3, off, {DB}, 0 offset:16 sc0")
    g("s_waitcnt vmcnt(0)")
    g("v_cmp_eq_u32 vcc, 7, v3"); g("s_cbranch_vccz L_probe_done")
    g(f"buffer_atomic_umax v4, off, {DB}, 0 offset:24 sc0"); g(f"buffer_atomic_umax v5, off, {DB}, 0 offset:28 sc0")
    g("s_waitcnt vmcnt(0)")
    g("v_readfirstlane_b32 s66, v4"); g("v_readfirstlane_b32 s67, v5"); g("s_nop 3")
    g("s_sub_u32 s64, 0x10000, s66"); g("s_sub_u32 s65, 0x10000, s67")
    g.label("L_probe_dec")
    g("s_add_u32 s62, s62, 1")
    g("s_absdiff_i32 s60, s64, s65")
    g("s_cmp_ge_u32 s62, 5"); g("s_cselect_b32 s60, 0xffff, s60")
    g("s_cmp_lt_u32 s60, 112"); g("s_cbranch_scc1 L_probe0")
    g("s_cmp_gt_u32 s64, s65"); g("s_cselect_b32 s60, 2, 1"); g("v_mov_b32 v3, s60")
    g(f"buffer_store_dword v3, off, {DB}, 0 offset:144 sc1")
    g("v_mov_b32 v4, s62"); g(f"buffer_store_dword v4, off, {DB}, 0 offset:60 sc1")
    g.label("L_probe_done")
    g("s_mov_b64 exec, -1")

sHW,sA,sB,sInv,sEps,sRow,sCh,sLB,sN=60,73,74,63,68,69,70,71,72
P=lambda r: f"v[{r}:{r+1}]"

def ln_rows(g, stride, end, between=None):
    srd(g, 8, 16, 2048*1280)
    g("v_lshlrev_b32 v1, 4, v0"); g("v_lshlrev_b32 v2, 3, v0")
    g("v_cmp_lt_u32 vcc, 31, v0"); g(f"v_mov_b32 v3, {OOB}"); g("s_nop 1"); g("v_cndmask_b32 v7, v2, v3, vcc")
    g(f"s_mov_b32 s{sInv}, {hex(ch.f32bits(1/640))}"); g(f"s_mov_b32 s{sEps}, {hex(ch.f32bits(1e-5))}")
    def rowload(add):
        g(f"s_add_u32 s3, s{sN}, {add}"); g("s_mul_i32 s3, s3, 1280")
        for i in range(3): g(f"buffer_load_dwordx2 v[{48+2*i}:{48+2*i+1}], v{2 if i<2 else 7}, {WT}, s3 offen offset:{512*i}")
    rowload(0)
    if between: between()
    else: g("s_waitcnt vmcnt(0)")
    l=g.uniq("ln")
    g.label(l)
    bk.unpack6(g,12,48)
    if not between: rowload(stride)
    g(f"s_and_b32 s3, s{sN}, 15")
    bk.xn_addr(g, 4, 9, 3)
    g("v_cndmask_b32 v8, v4, v3, vcc")
    bk.layernorm(g,12,36,10,11,9,sInv,sEps,packed=24)
    g(f"s_mul_i32 s3, s{sN}, 1280"); g(f"s_add_u32 s3, s3, {XN}")
    for i in range(3): g(f"buffer_store_dwordx2 v[{24+2*i}:{24+2*i+1}], v{4 if i<2 else 8}, {WS}, s3 offen offset:{512*i} sc1")
    if not between:
        g(f"s_add_u32 s{sN}, s{sN}, {stride}")
        g("s_waitcnt vmcnt(3)")
        g(f"s_cmp_lt_u32 s{sN}, {end}"); g(f"s_cbranch_scc1 {l}")

def conv_loads(g, hi, h=True, k=True):
    nK = 4 if hi else 2; vH=96; vKv = 240 if hi else vH+8
    if h:
        g(f"s_lshl_b32 s{sA}, s{sCh}, 12"); g(f"s_add_u32 s{sB}, s{sA}, 2")
        for i in range(nK): g(f"buffer_load_dwordx4 {q4('v',vH+4*i)}, v130, {WT}, s{sA} offen offset:{1024*i}")
        for i in range(nK): g(f"buffer_load_dwordx4 {q4('v',vH+16+4*i)}, v130, {WT}, s{sB} offen offset:{1024*i}")
        g(f"s_lshl_b32 s3, s{sCh}, 1")
        g(f"buffer_load_ushort v{vH+32}, off, {W2}, s3")
    if k:
        g(f"s_lshl_b32 s3, s{sCh}, 12"); g(f"s_add_u32 s3, s3, {KVT}")
        for i in range(nK): g(f"buffer_load_dwordx4 {q4('v',vKv+4*i)}, v130, {WS}, s3 offen offset:{1024*i} sc1")
def conv_pref(g, hi):
    srd(g, 8, 38, 640*4096); srd(g, 12, 40, 1280)
    g("v_lshlrev_b32 v130, 4, v0")
    conv_loads(g, hi, True, bool(hi))

def conv(g, hi, step, pre_wait=None):
    nK = 4 if hi else 2
    nX = 8 if hi else 4
    srd(g, 8, 38, 640*4096); srd(g, 12, 40, 1280)
    g("v_lshlrev_b32 v130, 4, v0")
    g(f"v_add_u32 v7, s{sLB}, v130")
    for i in range(4): g(f"v_mov_b32 v{8+i}, 0")
    g("s_mov_b32 exec_hi, 0"); g(f"ds_write_b128 v7, v[8:11] offset:{KVO}")
    g("s_mov_b32 exec_lo, 3"); g(f"ds_write_b128 v7, v[8:11] offset:{EO}"); g(f"ds_write_b128 v7, v[8:11] offset:{OO}")
    g("s_mov_b64 exec, -1")
    vAa,vBa,vKa,vYa,vDd=14,16,15,13,12
    vFA,vFB,vD,vH=32,64,144,96
    g("v_and_b32 v8, 15, v0"); g("v_lshrrev_b32 v9, 5, v0"); g("v_sub_u32 v10, v8, v9"); g("v_lshlrev_b32 v10, 5, v10")
    g("v_and_b32 v11, 16, v0"); g("v_add_u32 v10, v10, v11")
    g(f"s_add_u32 s3, s{sLB}, {KVO+512-32*14}"); g(f"v_add_u32 v{vAa}, s3, v10")
    g("v_lshlrev_b32 v10, 5, v9"); g("v_lshl_add_u32 v10, v8, 1, v10"); g("v_sub_u32 v10, v10, v11")
    g("v_and_b32 v11, 1, v0"); g("v_cmp_eq_u32 vcc, 1, v11")
    g(f"v_mov_b32 v12, {OO+16}"); g(f"v_mov_b32 v11, {EO+18}"); g("s_nop 0"); g("v_cndmask_b32 v11, v12, v11, vcc")
    g(f"v_add3_u32 v{vBa}, v10, v11, s{sLB}")
    for m in range(1,nX): g(f"v_add_u32 v{vBa+m}, {512*m}, v{vBa}")
    g("v_lshlrev_b32 v10, 5, v8"); g("v_lshl_add_u32 v10, v9, 4, v10"); g("v_and_b32 v11, 16, v0"); g("v_lshrrev_b32 v11, 1, v11"); g("v_xor_b32 v11, 8, v11")
    g(f"s_add_u32 s3, s{sLB}, {KVO+512}"); g(f"v_add3_u32 v{vKa}, v10, v11, s3")
    g("v_and_b32 v10, 1, v0"); g("v_lshlrev_b32 v10, 4, v10"); g("v_lshrrev_b32 v11, 4, v0"); g("v_lshl_add_u32 v10, v11, 2, v10")
    g("s_mov_b32 s3, 40960"); g(f"v_mul_lo_u32 v{vYa}, v10, s3"); g("v_lshrrev_b32 v11, 1, v8"); g(f"v_lshl_add_u32 v{vYa}, v11, 3, v{vYa}")
    vKv = 240 if hi else vH+8
    if pre_wait:
        pre_wait(); conv_loads(g,hi,False,True)
    g("s_waitcnt vmcnt(0)")
    lt=g.uniq("cv")
    g.label(lt)
    g("s_waitcnt vmcnt(4)")
    for i in range(nK):
        g(f"ds_write_b128 v7, {q4('v',vKv+4*i)} offset:{KVO+512+1024*i}")
        g(f"ds_write_b128 v7, {q4('v',vH+4*i)} offset:{EO+32+1024*i}")
        g(f"ds_write_b128 v7, {q4('v',vH+16+4*i)} offset:{OO+32+1024*i}")
    g(f"v_lshlrev_b32 v8, 16, v{vH}"); g(f"v_lshlrev_b32 v{vDd}, 16, v{vH+32}")
    g("s_mov_b64 exec, 1"); g(f"ds_write_b32 v7, v8 offset:{OO+28}"); g("s_mov_b64 exec, -1")
    g(f"s_lshl_b32 s{sN}, s{sCh}, 6"); g(f"s_add_u32 s{sN}, s{sN}, {YT+hi*32*40960}")
    g(f"s_add_u32 s{sCh}, s{sCh}, s{step}")
    g("s_waitcnt lgkmcnt(0)")
    conv_loads(g,hi)
    def loads(ci):
        c0=2*ci; o=144*(ci&1); L=[]
        for x in range(nX):
            L.append(f"ds_read_b128 {q4('v',vFA+o+4*x)}, v{vAa} offset:{32*(14-c0)+512*x}")
            L.append(f"ds_read2_b32 v[{vFB+o+4*x}:{vFB+o+4*x+1}], v{vBa+x} offset0:{8*c0} offset1:{8*c0+1}")
            L.append(f"ds_read2_b32 v[{vFB+o+4*x+2}:{vFB+o+4*x+3}], v{vBa+x} offset0:{8*c0+2} offset1:{8*c0+3}")
        return L
    for x in loads(0): g(x)
    for ci in range(8):
        o=144*(ci&1)
        g("s_waitcnt lgkmcnt(0)")
        mf=[]
        for m in range(nX):
            for d in range(nX-m):
                i=m+d
                if i<4*hi: continue
                mf.append(f"{MF} {q4('v',vD+4*(i&3))}, {q4('v',vFB+o+4*m)}, {q4('v',vFA+o+4*d)}, {'0' if (ci==0 and m==0) else q4('v',vD+4*(i&3))}")
        interleave(g, mf, loads(ci+1) if ci<7 else [f"ds_read_b64 v[{vFA+2*i}:{vFA+2*i+1}], v{vKa} offset:{512*(i+4*hi)}" for i in range(4)], per=1 if hi else 2)
    g("s_waitcnt lgkmcnt(0)")
    for i in range(4):
        b=vFB+4*i
        g(f"v_and_b32 v{b}, 0xffff0000, v{vFA+2*i+1}"); g(f"v_lshlrev_b32 v{b+1}, 16, v{vFA+2*i+1}")
        g(f"v_and_b32 v{b+2}, 0xffff0000, v{vFA+2*i}"); g(f"v_lshlrev_b32 v{b+3}, 16, v{vFA+2*i}")
        for r in range(4): g(f"v_mul_f32 v{b+r}, v{b+r}, v{vDd}")
    bk.rnd_pairs(g,[vFB+i for i in range(16)],8)
    bk.rnd_pairs(g,[vD+i for i in range(16)],8)
    for i in range(0,16,2): g(f"v_pk_add_f32 {P(vD+i)}, {P(vD+i)}, {P(vFB+i)}")
    for rr in range(4):
        for q in range(2): g(f"v_cvt_pk_bf16_f32 v{160+2*rr+q}, v{vD+8*q+rr}, v{vD+8*q+4+rr}")
        g(f"buffer_store_dwordx2 {P(160+2*rr)}, v{vYa}, {WS}, s{sN} offen sc1")
        g(f"s_add_u32 s{sN}, s{sN}, 40960")
    g(f"s_cmp_lt_u32 s{sCh}, 640"); g(f"s_cbranch_scc1 {lt}")

def helper(g):
    T=bk.TRACE[0]
    g.label("L_helper")
    l=g.uniq("np"); l2=g.uniq("np")
    g(f"s_and_b32 s3, s{sHI}, 0x78"); g("s_cmp_lg_u32 s3, 80"); g(f"s_cbranch_scc1 {l2}")
    g(f"s_cmp_lg_u32 s{sW}, 0"); g(f"s_cbranch_scc1 {l}")
    probe(g)
    tl(g,T,DBG3,sHI,2)
    g.label(l)
    g("s_barrier")
    g(f"s_lshl_b32 s{sN}, s{sHI}, 2"); g(f"s_add_u32 s{sN}, s{sN}, s{sW}"); g(f"s_add_u32 s{sN}, s{sN}, {ROW1-320}")
    ln_rows(g,32,ROW2)
    arrive(g,BC1)
    tl(g,T,DBG3,sHI,1)
    g("s_branch L_help_done")
    g.label(l2)
    g(f"s_lshl_b32 s{sHW}, s{sHI}, 2"); g(f"s_add_u32 s{sHW}, s{sHW}, s{sW}")
    g(f"s_sub_u32 s3, s{sHW}, 32"); g(f"s_cmp_ge_u32 s{sHW}, 320"); g(f"s_cselect_b32 s{sHW}, s3, s{sHW}")
    def clears():
        for (lo,hi,val) in CLEARS:
            l=g.uniq("cl"); le=g.uniq("cle")
            for i in range(4): g(f"v_mov_b32 v{12+i}, {val}")
            g(f"s_lshl_b32 s{sA}, s{sHW}, 10"); g(f"s_add_u32 s{sA}, s{sA}, {lo}")
            g.label(l)
            g(f"s_cmp_ge_u32 s{sA}, {hi}"); g(f"s_cbranch_scc1 {le}")
            g(f"buffer_store_dwordx4 v[12:15], v1, {WS}, s{sA} offen sc1")
            g(f"s_add_u32 s{sA}, s{sA}, {NHW*1024}")
            g(f"s_branch {l}")
            g.label(le)
            g("s_nop 1")
        g(f"s_waitcnt vmcnt({sum((hi-lo)//1024//NHW for lo,hi,_ in CLEARS)})")
    g(f"s_mov_b32 s{sN}, s{sHW}")
    ln_rows(g,0,0,clears)
    arrive(g,BA)
    tl(g,T,DBG3,sHI,0)
    g(f"s_cmp_eq_u32 s{sRole}, 3"); g("s_cbranch_scc1 L_help_done")
    l=g.uniq("k2")
    g(f"s_sub_u32 s{sHW}, s{sHW}, 128")
    g(f"s_cmp_eq_u32 s{sRole}, 1"); g(f"s_cbranch_scc1 {l}")
    g(f"s_add_u32 s3, s{sHW}, 288"); g(f"s_add_u32 s{sHW}, s{sHW}, 128"); g(f"s_cmp_lt_u32 s{sHI}, 32"); g(f"s_cselect_b32 s{sHW}, s3, s{sHW}")
    if bk.OPT.get("kvdefer",0): wait_wg(g,*BB,24)
    g.label(l)
    vK,vV,vWt=100,144,176
    srd(g, 8, 32, 2048*1280); srd(g, 12, 34, 2048*1280)
    g(f"s_mul_i32 s{sA}, s{sHW}, 6554"); g(f"s_lshr_b32 s{sA}, s{sA}, 16"); g(f"s_mul_i32 s3, s{sA}, 10"); g(f"s_sub_u32 s{sB}, s{sHW}, s3")
    g(f"s_mul_i32 s{sRow}, s{sA}, {64*1280}"); g(f"s_lshl_b32 s3, s{sB}, 7"); g(f"s_add_u32 s{sRow}, s{sRow}, s3")
    g("v_lshrrev_b32 v90, 3, v0"); g("s_mov_b32 s3, 10240"); g("v_mul_lo_u32 v91, v90, s3"); g("v_and_b32 v92, 7, v0"); g("v_lshl_add_u32 v91, v92, 4, v91")
    g(f"v_add_u32 v91, s{sRow}, v91")
    g("v_subrev_u32 v93, 3840, v91"); g("v_cmp_gt_i32 vcc, 0, v93"); g("s_nop 1"); g("v_cndmask_b32 v93, v93, v3, vcc")
    for r in range(3): g(f"buffer_load_dwordx4 {q4('v',vK+4*r)}, v93, {WT}, 0 offen offset:{1280*r}")
    for r in range(8):
        g(f"s_mov_b32 s3, {1280*r}")
        g(f"buffer_load_dwordx4 {q4('v',vK+12+4*r)}, v91, {WT}, s3 offen")
        g(f"buffer_load_dwordx4 {q4('v',vV+4*r)}, v91, {W2}, s3 offen")
    srd(g, 8, 36, 640*8)
    g("v_lshlrev_b32 v93, 6, v92"); g(f"s_lshl_b32 s3, s{sB}, 9")
    for i in range(4): g(f"buffer_load_dwordx4 {q4('v',vWt+4*i)}, v93, {WT}, s3 offen offset:{16*i}")
    vU,vA,vP,vW,vO,vT=12,36,52,68,76,84
    g("v_lshlrev_b32 v94, 15, v92"); g("v_lshl_add_u32 v94, v90, 4, v94")
    g(f"s_lshl_b32 s{sCh}, s{sB}, 18"); g(f"s_lshl_b32 s3, s{sA}, 7"); g(f"s_add_u32 s{sCh}, s{sCh}, s3"); g(f"s_add_u32 s{sCh}, s{sCh}, {KVT}")
    g("s_waitcnt vmcnt(0)")
    tl(g,T,DBG3,sHI,7)
    def rnd(D):
        for r in range(8):
            g(f"v_cvt_pk_bf16_f32 v{vT}, v{D+2*r}, v{D+2*r+1}"); g(f"v_lshlrev_b32 v{D+2*r}, 16, v{vT}"); g(f"v_and_b32 v{D+2*r+1}, 0xffff0000, v{vT}")
    for c in range(4):
        for r in range(11):
            g(f"v_lshlrev_b32 v{vU+2*r}, 16, v{vK+4*r+c}"); g(f"v_and_b32 v{vU+2*r+1}, 0xffff0000, v{vK+4*r+c}")
        for j in range(4):
            for h in range(2):
                src=vWt+4*c+2*h+j//2
                g(f"v_lshlrev_b32 v{vW+2*j+h}, 16, v{src}" if j%2==0 else f"v_and_b32 v{vW+2*j+h}, 0xffff0000, v{src}")
        for j in range(4):
            D=vA if j==0 else vP
            for r in range(8): g(f"v_pk_mul_f32 {P(D+2*r)}, {P(vU+2*(r+j))}, {P(vW+2*(3-j))}")
            rnd(D)
            if j>0:
                for r in range(8): g(f"v_pk_add_f32 {P(vA+2*r)}, {P(vA+2*r)}, {P(vP+2*r)}")
                rnd(vA)
        for r in range(8):
            g(f"v_lshlrev_b32 v{vU+2*r}, 16, v{vV+4*r+c}"); g(f"v_and_b32 v{vU+2*r+1}, 0xffff0000, v{vV+4*r+c}")
        for r in range(8): g(f"v_pk_mul_f32 {P(vA+2*r)}, {P(vA+2*r)}, {P(vU+2*r)}")
        for h in range(2):
            for q in range(4): g(f"v_cvt_pk_bf16_f32 v{vO+4*h+q}, v{vA+2*(7-2*q)+h}, v{vA+2*(6-2*q)+h}")
            g(f"s_add_u32 s3, s{sCh}, {(2*c+h)*4096}")
            g(f"buffer_store_dwordx4 {q4('v',vO+4*h)}, v94, {WS}, s3 offen sc1")
    l=g.uniq("k3")
    g(f"s_cmp_eq_u32 s{sRole}, 1"); g(f"s_cbranch_scc1 {l}")
    arrive(g,BB2)
    tl(g,T,DBG3,sHI,1)
    g("s_branch L_help_conv")
    g.label(l)
    arrive(g,BB)
    tl(g,T,DBG3,sHI,1)
    bk.wo_weights(g,0); bk.wo_weights(g,1)
    g.label("L_help_conv")
    g(f"s_cmp_ge_u32 s{sHI}, 64"); g("s_cbranch_scc1 L_help_done")
    g(f"s_lshl_b32 s{sCh}, s{sHI}, 2"); g(f"s_add_u32 s{sCh}, s{sCh}, s{sW}"); g(f"s_add_u32 s{sCh}, s{sCh}, 384")
    g(f"s_mul_i32 s{sLB}, s{sW}, {CH_LDS}"); g(f"s_mov_b32 s{sRow}, 640")
    conv_pref(g,0)
    call(g,"L_conv0")
    arrive(g,BY1)
    tl(g,T,DBG3,sHI,3)
    g.label("L_help_done")
    wait_wg(g,*BA,1)
    g(f"s_cmp_eq_u32 s{sRole}, 0"); g("s_cbranch_scc1 L_t4")
    g(f"s_cmp_eq_u32 s{sRole}, 1"); g("s_cbranch_scc1 L_wo")
    g(f"s_cmp_eq_u32 s{sRole}, 2"); g("s_cbranch_scc1 L_vr_far")
    g(f"s_cmp_eq_u32 s{sRole}, 4"); g("s_cbranch_scc1 L_ch_far")
    g("s_branch L_wm")

def late(g):
    g.label("L_late")
    g(f"s_lshl_b32 s{sHW}, s{sHI}, 2"); g(f"s_add_u32 s{sHW}, s{sHW}, s{sW}")
    g(f"s_mul_i32 s{sLB}, s{sW}, {CH_LDS}")
    g(f"s_add_u32 s{sN}, s{sHW}, {ROW2}")
    ln_rows(g,64,2048)
    g("s_waitcnt vmcnt(0)"); arrive_w(g,BC2,1)
    g("s_branch L_ch_far")

def t4_late(g, sR, sRs):
    g(f"s_mul_i32 s{sLB}, s{sRs}, {CH_LDS}"); g(f"s_add_u32 s{sLB}, s{sLB}, {81920+49152}")
    g(f"s_add_u32 s{sCh}, s{sR}, 384"); g(f"s_mov_b32 s{sRow}, 32")
    wait_bar(g,*BB2,1)
    conv_pref(g,1)
    call(g,"L_conv1")
    g("s_waitcnt vmcnt(0)"); arrive_w(g,BY2,1)
    wait_bar(g,*BY2,1,sleep=16)

def conv_subs(g):
    for hi in range(2):
        g.label(f"L_conv{hi}")
        conv(g,hi,sRow,(lambda: wait_wg(g,*BB,24)) if hi==0 else None)
        g("s_setpc_b64 s[76:77]")
def call(g, label):
    l=g.uniq("ca")
    g("s_getpc_b64 s[76:77]"); g.label(l)
    g(f"s_add_u32 s76, s76, {label}-{l}"); g("s_addc_u32 s77, s77, -1")
    g("s_swappc_b64 s[76:77], s[76:77]")
def qkv_conv(g, hi):
    g(f"s_mul_i32 s{sLB}, s{sW}, {CH_LDS}"); g(f"s_add_u32 s{sLB}, s{sLB}, 81920")
    g(f"s_mov_b32 s{sCh}, s75"); g(f"s_mov_b32 s{sRow}, 640")
    call(g,f"L_conv{hi}")
    arrive(g,BY2 if hi else BY1)
    tl(g,bk.TRACE[0],DBG3+16384,101,4+hi,131)
    if not hi:
        wait_wg(g,*BB2,24)
        g(f"s_mov_b32 s{sCh}, s75"); conv_pref(g,1)
```

```python
from asmlib import *
from layout import *
from chain import WS,WT,sX,sTK,sW,sTO,sPAR,timeout,dma_rows64,dma_voff,fl_voff,fl_dma,MF,q4,f32bits
import math
MF32="v_mfma_f32_32x32x16_bf16"
W2="s[12:15]"
TRACE=[False]
OPT={}
def trace(g, sItem, ev, vT):
    if not TRACE[0]: return
    g(f"s_memrealtime s[{84+2*ev}:{85+2*ev}]")
    g("s_waitcnt lgkmcnt(0)")
def tflush(g, sItem, v8):
    if not TRACE[0]: return
    g(f"s_lshl_b32 s96, s{sX}, 5"); g(f"s_add_u32 s96, s96, s{sTK}"); g("s_lshl_b32 s96, s96, 2"); g(f"s_add_u32 s96, s96, s{sW}")
    g("s_mul_i32 s96, s96, 80"); g(f"s_add_u32 s96, s96, s{sItem}"); g("s_lshl_b32 s96, s96, 5"); g(f"s_add_u32 s96, s96, {DBG2}")
    for i in range(6): g(f"v_mov_b32 v{v8+i}, s{84+2*i}")
    g("s_mov_b64 exec, 1")
    g(f"buffer_store_dwordx4 v[{v8}:{v8+3}], off, {WS}, s96")
    g(f"buffer_store_dwordx2 v[{v8+4}:{v8+5}], off, {WS}, s96 offset:16")
    g("s_mov_b64 exec, -1")

def tr32_addr(g, vD, vT):
    g(f"v_lshrrev_b32 v{vD}, 5, v0")
    g(f"v_lshlrev_b32 v{vD}, 8, v{vD}")
    g(f"v_and_b32 v{vT}, 12, v0")
    g(f"v_lshl_add_u32 v{vD}, v{vT}, 4, v{vD}")
    g(f"v_and_b32 v{vT}, 3, v0")
    g(f"v_lshl_add_u32 v{vD}, v{vT}, 3, v{vD}")
    g(f"v_lshrrev_b32 v{vT}, 1, v0")
    g(f"v_xor_b32 v{vT}, v{vT}, v0")
    g(f"v_and_b32 v{vT}, 16, v{vT}")
    g(f"v_lshl_add_u32 v{vD}, v{vT}, 1, v{vD}")

def load_w32(g, nst, row_stride, sA, sLB, vOff, vA, vT, sRot, phase=None):
    if phase!=1:
        fl_voff(g, vOff, vT, row_stride, 256)
        g(f"s_lshl_b32 s{sLB}, s{sW}, 13")
        g(f"s_mul_i32 s3, s{sW}, {32*row_stride}"); g(f"s_add_u32 s{sA}, s{sA}, s3")
        for B in range(nst):
            g(f"s_mul_i32 s{sTO}, s{sRot+B}, {128*row_stride}"); g(f"s_add_u32 s{sTO}, s{sTO}, s{sA}")
            fl_dma(g, vOff, sTO, 8, 4*row_stride, sLB, B*32768, two=True)
    if phase==0: return
    g(f"v_lshrrev_b32 v{vA}, 3, v0"); g(f"v_and_b32 v{vA}, 4, v{vA}"); g(f"v_bfe_u32 v{vT}, v0, 2, 2"); g(f"v_or_b32 v{vA}, v{vA}, v{vT}")
    g(f"v_bfe_u32 v{vT}, v0, 4, 1"); g(f"v_xor_b32 v{vT}, v{vT}, v{vA}"); g(f"s_lshl_b32 s3, s{sW}, 1"); g(f"v_xor_b32 v{vT}, s3, v{vT}")
    g(f"v_lshlrev_b32 v{vA}, 8, v{vA}"); g(f"v_lshl_add_u32 v{vA}, v{vT}, 5, v{vA}")
    g(f"v_and_b32 v{vT}, 3, v0"); g(f"v_lshl_add_u32 v{vA}, v{vT}, 3, v{vA}")
    for B in range(nst):
        g(f"s_waitcnt vmcnt({8*(nst-1-B)})"); g("s_barrier")
        for f in range(4):
            for gp in range(2):
                r=32*B+8*f+4*gp
                g(f"ds_read_b64_tr_b16 a[{r}:{r+1}], v{vA} offset:{f*8192+gp*2048}")
                g(f"ds_read_b64_tr_b16 a[{r+2}:{r+3}], v{vA} offset:{f*8192+gp*2048+4096}")
        g(f"v_add_u32 v{vA}, 0x8000, v{vA}")
    g("s_waitcnt lgkmcnt(0)")
    g("s_barrier")
    tl(g,TRACE[0],DBG3+16384,101,1)

def rot_table(g, sRot, sSrc, nst):
    for B in range(nst):
        g(f"s_add_u32 s{sRot+B}, s{sSrc}, {B}")
        g(f"s_sub_u32 s3, s{sRot+B}, {nst}")
        g(f"s_cmp_ge_u32 s{sRot+B}, {nst}"); g(f"s_cselect_b32 s{sRot+B}, s3, s{sRot+B}")

def gemm_stream(g, nst, Rd, Mf, staged, hooks={}, extra=(), every=3):
    K=8*nst; LA=4; extra=list(extra); n=[0]
    def Wt(B):
        if staged:
            g(f"s_waitcnt vmcnt({2*(nst-1-B)+n[0]})"); g("s_barrier")
    Wt(0)
    for k in range(LA): g(Rd(k))
    for k in range(K):
        if k in hooks: hooks[k]()
        g(f"s_waitcnt lgkmcnt({min(LA,K-k)-1})")
        if OPT.get("nomf")==2 and k>0:
            import re
            m=re.match(r"\S+ v\[(\d+):\d+\], (\S+), (\S+), .*",Mf(k)); c=int(m.group(1))+8*(k&1)
            g(f"{MF} {q4('v',c)}, {m.group(2)}, {m.group(3)}, {q4('v',c)}"); g(f"{MF} {q4('v',c+4)}, {m.group(3)}, {m.group(2)}, {q4('v',c+4)}")
        else: g("s_nop 6" if (OPT.get("nomf") and k>0) else Mf(k))
        if OPT.get("slow") and not staged: g(f"s_nop {OPT['slow']}")
        r=k+LA
        if r<K:
            if r%8==0: Wt(r//8)
            g(Rd(r))
        if extra and (k in every if isinstance(every,list) else k%every==0):
            g(extra.pop(0)); n[0]+=1
    assert not extra

L_FLAG=163840-64

def flag_store(g, vT, sAddr, sVal, fl=" sc1"):
    g(f"v_mov_b32 v{vT}, s{sVal}")
    g("s_mov_b64 exec, 1")
    g(f"buffer_store_dword v{vT}, off, {WS}, s{sAddr}{fl}")
    g("s_mov_b64 exec, -1")

sSlow=80
def lflag_store(g, vT, sAddr, sVal):
    l1=g.uniq("lf"); l2=g.uniq("lf")
    g(f"s_cmp_lg_u32 s{sSlow}, 0"); g(f"s_cbranch_scc1 {l1}")
    flag_store(g,vT,sAddr,sVal,""); g(f"s_branch {l2}")
    g.label(l1); flag_store(g,vT,sAddr,sVal," sc1"); g.label(l2)

def group_local(g, v):
    import pre
    pre.dbsrd(g)
    lp=g.uniq("gl"); ld=g.uniq("gld")
    g(f"v_lshlrev_b32 v{v}, 5, v0"); g(f"s_mov_b32 s{sTO}, 0")
    g.label(lp)
    g(f"buffer_load_dword v{v+1}, v{v}, {pre.DB}, 0 offen sc1")
    g("s_waitcnt vmcnt(0)")
    g(f"v_readlane_b32 s3, v{v+1}, s{sX}"); g(f"s_mov_b32 s{sSlow}, {1 if OPT.get('force_slow') else 0}"); g("s_nop 2")
    g("s_cmp_ge_u32 s3, 32"); g(f"s_cbranch_scc1 {ld}")
    g(f"s_mov_b32 s{sSlow}, 0")
    for i in range(8):
        g(f"v_readlane_b32 s3, v{v+1}, {i}"); g("s_nop 3"); g(f"s_add_u32 s{sSlow}, s{sSlow}, s3")
    g(f"s_cmp_ge_u32 s{sSlow}, 256"); g(f"s_cbranch_scc1 {ld}")
    g("s_sleep 4")
    timeout(g, lp)
    g.label(ld)

sN0,sN1=78,79
def near_setup(g, v, have=False):
    import pre
    if not have: pre.wait_bar(g,*pre.BA,v,par=True)
    g(f"s_xor_b32 s{sN0}, s{sPAR}, {((PROBE>>21)^OPT.get('cfar',0))&1}"); g(f"s_lshl_b32 s{sN0}, s{sN0}, 13"); g(f"s_xor_b32 s{sN1}, s{sN0}, 8192")
def blk(g, sD, sSeg, sBase, far, sN=None):
    g(f"s_lshl_b32 s{sD}, s{sSeg}, 19"); g(f"s_add_u32 s{sD}, s{sD}, s{sBase}")
    if sN is not None: g(f"s_xor_b32 s{sD}, s{sD}, s{sN}")
    elif far: g(f"s_xor_b32 s{sD}, s{sD}, 8192")
def hblk(g, sD, sH):
    g(f"s_and_b32 s100, s{sH}, 1"); g("s_lshl_b32 s100, s100, 13"); g(f"s_lshl_b32 s{sD}, s{sH}, 14"); g(f"s_add_u32 s{sD}, s{sD}, s100")
def spread_s(g, s):
    g(f"s_lshr_b32 s100, s{s}, 13"); g("s_lshl_b32 s100, s100, 13"); g(f"s_add_u32 s{s}, s{s}, s100")
def spread_v(g, v, t):
    g(f"v_and_b32 v{t}, 0xffffe000, v{v}"); g(f"v_add_u32 v{v}, v{v}, v{t}")

def poll_ge(g, vD, vAddr, sOff, need, mask=None, sleep=2):
    lp=g.uniq("pl"); ld=g.uniq("pld")
    g(f"s_mov_b32 s{sTO}, 0")
    if mask: g(f"s_mov_b64 exec, {mask}")
    g.label(lp)
    g(f"buffer_load_dword v{vD}, v{vAddr}, {WS}, {sOff} offen sc1")
    g("s_waitcnt vmcnt(0)")
    g(f"v_cmp_gt_u32 vcc, {need}, v{vD}")
    g(f"s_cbranch_vccz {ld}")
    if sleep: g(f"s_sleep {sleep}")
    timeout(g, lp)
    g.label(ld)
    if mask: g("s_mov_b64 exec, -1")

def signal(g, vOne, vAddr, sOff, mask, off=0):
    g(f"v_mov_b32 v{vOne}, 1")
    g("s_mov_b32 exec_hi, 0" if mask=="lo32" else f"s_mov_b64 exec, {mask}")
    g(f"buffer_atomic_add v{vOne}, v{vAddr}, {WS}, s{sOff} offen" + (f" offset:{off}" if off else ""))
    g("s_mov_b64 exec, -1")

def wait_cnt(g, vD, vAddr, sOff, need, mask="1", sleep=1, v2=None):
    lp=g.uniq("wc"); ld=g.uniq("wcd")
    g(f"s_mov_b32 s{sTO}, 0")
    g(f"s_mov_b64 exec, {mask}")
    poll=lambda v: (g(f"v_mov_b32 v{v}, 0"), g(f"buffer_atomic_add v{v}, v{vAddr}, {WS}, {sOff} offen sc0"))
    if v2 is not None and OPT.get("pipe",1):
        poll(vD); g(f"s_sleep {OPT.get('pipe_gap',5)}")
        g.label(lp)
        for a,c in ((v2,vD),(vD,v2)):
            poll(a)
            g("s_waitcnt vmcnt(1)")
            g(f"v_cmp_gt_u32 vcc, {need}, v{c}")
            g(f"s_cbranch_vccz {ld}")
    else:
        g.label(lp)
        poll(vD)
        g("s_waitcnt vmcnt(0)")
        g(f"v_cmp_gt_u32 vcc, {need}, v{vD}")
        g(f"s_cbranch_vccz {ld}")
        if sleep: g(f"s_sleep {sleep}")
    timeout(g, lp)
    g.label(ld)
    g("s_mov_b64 exec, -1")

def qkv(g, isv):
    N="qkv"+("v" if isv else "q")
    sH,sTy,sI,sA,sB,sLB,sOut,sFl,sSeg,sP1,sFx,sRot=52,53,54,55,56,57,58,59,60,61,62,64
    sFl1,sHf=63,82
    vOff,vA,vT,vSt,vFa,vPl,vLf=1,2,3,4,5,6,7
    vAd=8
    vF=32
    vC=64
    vPk=80
    g.label(f"L_{N}")
    g(f"s_mul_i32 s{sLB}, s{sW}, 40960")
    g(f"s_mul_i32 s{sFx}, s{sH}, 3"); g(f"s_add_u32 s{sFx}, s{sFx}, s{sTy}")
    g(f"s_mul_i32 s3, s{sFx}, 13108"); g("s_lshr_b32 s3, s3, 16"); g("s_mul_i32 s3, s3, 5"); g(f"s_sub_u32 s{sA}, s{sFx}, s3")
    rot_table(g, sRot, sA, 5)
    g(f"s_lshl_b32 s{sA}, s{sH}, 8")
    import pre
    load_w32(g, 5, 8192, sA, sLB, 4, vA, vT, sRot, 0)
    pre.dbsrd(g)
    g(f"buffer_load_dword v30, off, {pre.DB}, 0 offset:{pre.BA[0]+128} sc1")
    load_w32(g, 5, 8192, sA, sLB, 4, vA, vT, sRot, 1)
    lA=g.uniq("qa")
    g("v_cmp_eq_u32 vcc, 0, v30"); g(f"s_cbranch_vccz {lA}")
    pre.wait_bar(g,*pre.BA,1)
    g.label(lA)
    for B in range(5): g(f"s_lshl_b32 s{sRot+B}, s{sRot+B}, 8")
    vOff2=24
    def vsetup():
        g(f"v_lshrrev_b32 v{vOff}, 4, v0"); g("s_mov_b32 s3, 1280"); g(f"v_mul_lo_u32 v{vOff}, v{vOff}, s3")
        g(f"v_and_b32 v{vT}, 15, v0"); g(f"v_lshl_add_u32 v{vOff}, v{vT}, 4, v{vOff}")
        g(f"v_add_u32 v{vPl}, {4*1280}, v{vOff}")
        g(f"v_mov_b32 v{vOff2}, v{vPl}")
        g(f"v_and_b32 v{vA}, 31, v0"); g(f"v_lshlrev_b32 v{vA}, 8, v{vA}")
        g(f"v_lshrrev_b32 v{vSt}, 5, v0"); g(f"v_xor_b32 v{vSt}, v{vSt}, v{vT}")
        for j in range(8):
            g(f"v_xor_b32 v{vAd+j}, {2*j}, v{vSt}")
            g(f"v_lshl_add_u32 v{vAd+j}, v{vAd+j}, 4, v{vA}")
            g(f"v_add_u32 v{vAd+8+j}, 40960, v{vAd+j}")
        g(f"v_lshrrev_b32 v{vSt}, 5, v0"); g(f"v_lshlrev_b32 v{vSt}, 8, v{vSt}")
        g(f"v_lshl_add_u32 v{vSt}, v{vT}, 4, v{vSt}")
        g(f"v_and_b32 v{vA}, 16, v0"); g(f"v_lshl_add_u32 v{vSt}, v{vA}, {6 if isv else 8}, v{vSt}")
        g(f"s_lshl_b32 s3, s{sW}, {11 if isv else 10}"); g(f"v_add_u32 v{vSt}, s3, v{vSt}")
        g(f"v_mul_u32_u24 v{vFa}, {CXNS}, v0"); g(f"v_mov_b32 v{vLf}, {L_FLAG}")
    vsetup()
    g(f"s_lshl_b32 s75, s{sFx}, 2"); g(f"s_add_u32 s75, s75, s{sW}")
    hblk(g,sOut,sH); g(f"s_add_u32 s{sOut}, s{sOut}, {VO if isv else KQ}")
    g(f"s_cmp_eq_u32 s{sTy}, 0"); g(f"s_cselect_b32 s{sHf}, 8192, 0")
    g(f"s_lshl_b32 s{sFl}, s{sH}, 8"); g(f"s_add_u32 s{sFl}, s{sFl}, {CQKV}")
    g(f"s_lshl_b32 s{sB}, s{sW}, 11")
    g(f"s_mov_b32 s{sI}, 0")
    g(f"s_mov_b32 s{sP1}, 0")
    def dma(layer, sS, defer=False, buf=None):
        buf=layer if buf is None else buf
        g(f"s_mul_i32 s{sA}, s{sS}, 40960"); g(f"s_mul_i32 s3, s{sW}, {8*1280}"); g(f"s_add_u32 s{sA}, s{sA}, s3"); g(f"s_add_u32 s{sA}, s{sA}, {XN+layer*64*40960}")
        L=[f"s_add_u32 m0, s{sB}, {buf*40960+B*8192+1024*e}\ns_add_u32 s3, s{sA}, s{sRot+B}\nbuffer_load_dwordx4 v{vOff2 if e else vOff}, {WS}, s3 offen sc1 lds" for B in range(5) for e in range(2)]
        if defer: return L
        for x in L: g(x)
    def compute(layer, staged, hooks={}, extra=(), buf=None):
        buf=layer if buf is None else buf
        Rd=lambda k: f"ds_read_b128 {q4('v',vF+4*(k%8))}, v{vAd+8*buf+k%8} offset:{(k//8)*8192}"
        def Mf(k):
            x=q4('v',vF+4*(k%8)); w=q4('a',4*k)
            return f"{MF32} v[{vC}:{vC+15}], {x if isv else w}, {w if isv else x}, {'0' if k==0 else f'v[{vC}:{vC+15}]'}"
        gemm_stream(g,5,Rd,Mf,staged,hooks,extra,3)
        blk(g,3,sSeg,sOut,0,sHf)
        if layer: g(f"s_add_u32 s3, s3, {LST}")
        g("s_nop 8")
        P=vPk+8*buf
        for c in range(2):
            for h in range(2):
                a=c+2*h
                g(f"v_cvt_pk_bf16_f32 v{P+4*c+2*h}, v{vC+4*a}, v{vC+4*a+1}")
                g(f"v_cvt_pk_bf16_f32 v{P+4*c+2*h+1}, v{vC+4*a+2}, v{vC+4*a+3}")
            g(f"buffer_store_dwordx4 {q4('v',P+4*c)}, v{vSt}, {WS}, s3 offen offset:{512*c} sc1")
    def pend_flag():
        l=g.uniq("pf")
        g(f"s_cmp_eq_u32 s{sP1}, 0"); g(f"s_cbranch_scc1 {l}")
        g(f"s_lshl_b32 s3, s{sP1}, 2"); g(f"s_add_u32 s3, s3, s{sFl}"); g("s_sub_u32 s3, s3, 4")
        signal(g, vT, vFa, 3, "1")
        g(f"s_mov_b32 s{sP1}, 0")
        g.label(l)
    def sig2():
        g(f"s_lshl_b32 s3, s{sI}, 2"); g(f"s_add_u32 s3, s3, s{sFl1}")
        signal(g, vT, vFa, 3, "1")
    assert AHEAD%2==0
    g(f"s_mov_b32 s{pre.sCh}, s75")
    dma(0, sI)
    g("s_waitcnt vmcnt(0)")
    g.label(f"L_{N}_pre")
    for bf in range(2):
        g("s_barrier")
        g(f"s_mov_b32 s{sSeg}, s{sI}"); g(f"s_add_u32 s{sI}, s{sI}, 1")
        def h_p():
            g(f"s_waitcnt vmcnt(7)"); pend_flag()
        compute(0, False, {20:h_p}, extra=dma(0, sI, True, 1-bf), buf=bf)
        g(f"s_mov_b32 s{sP1}, s{sI}")
        if bf==0:
            l1=g.uniq("f1")
            g(f"s_cmp_lg_u32 s{sI}, 1"); g(f"s_cbranch_scc1 {l1}")
            g("s_waitcnt vmcnt(0)"); pend_flag()
            tl(g,TRACE[0],DBG3+16384,101,2)
            pre.conv_pref(g,0)
            l2=g.uniq("f2"); g(f"s_branch {l2}")
            g.label(l1)
        g("s_waitcnt vmcnt(2)")
        if bf==0: g.label(l2)
    lcv=g.uniq("cv")
    g(f"s_cmp_lg_u32 s{sI}, {OPT.get('conv_at',4)}"); g(f"s_cbranch_scc1 {lcv}")
    g("s_waitcnt vmcnt(0)"); pend_flag()
    pre.qkv_conv(g,0); vsetup()
    g.label(lcv)
    g(f"s_cmp_lt_u32 s{sI}, {AHEAD}"); g(f"s_cbranch_scc1 L_{N}_pre")
    g("s_waitcnt vmcnt(0)"); pend_flag()
    pre.qkv_conv(g,1); vsetup()
    pre.wait_wg(g,*pre.BC1,25)
    near_setup(g,25)
    g(f"s_cmp_lt_u32 s{sFx}, {56 if OPT.get('place',1)==1 else 96}"); g(f"s_cselect_b32 s3, s{sN1}, s{sN0}")
    g(f"s_lshl_b32 s{sFx}, s{sFx}, 8"); spread_s(g,sFx); g(f"s_add_u32 s{sFx}, s{sFx}, s3"); g(f"s_add_u32 s{sFx}, s{sFx}, {CXN}")
    g(f"s_add_u32 s{sFl1}, s{sFl}, s{sN0}"); g(f"s_add_u32 s{sFl1}, s{sFl1}, {CQKV1-CQKV-4*AHEAD}")
    g("s_mov_b32 s72, 0")
    g.label(f"L_{N}_block")
    lw=g.uniq("w"); lw2=g.uniq("w")
    g(f"s_lshl_b32 s{sA}, s{sI}, 2"); g(f"s_add_u32 s{sA}, s{sA}, s{sFx}"); g(f"s_sub_u32 s{sA}, s{sA}, {4*AHEAD}")
    g(f"s_cmp_lg_u32 s{sW}, 0"); g(f"s_cselect_b32 s3, {OOB}, s{sA}")
    g(f"v_mov_b32 v{vPl}, 8"); g("s_mov_b64 exec, 15"); g(f"v_mov_b32 v{vPl}, 0")
    g(f"buffer_atomic_add v{vPl}, v{vFa}, {WS}, s3 offen sc0")
    g("s_mov_b64 exec, -1")
    g("s_waitcnt vmcnt(0)")
    pend_flag()
    g(f"s_cmp_lg_u32 s{sW}, 0"); g(f"s_cbranch_scc1 {lw}")
    g(f"v_cmp_gt_u32 vcc, 8, v{vPl}"); g(f"s_cbranch_vccz {lw}")
    wait_cnt(g, 28, vFa, f"s{sA}", "8", mask="15", v2=29)
    g.label(lw)
    g("s_barrier")
    g.label(f"L_{N}_loop")
    lc=g.uniq("c2")
    g(f"s_cmp_lg_u32 s{sI}, {pre.ROW2//32}"); g(f"s_cbranch_scc1 {lc}")
    pre.wait_wg(g,*pre.BC2,25)
    g.label(lc)
    trace(g,sI,0,vT)
    g(f"s_sub_u32 s{sSeg}, s{sI}, {AHEAD}")
    PF=OPT.get("qkv_pf",1); sPf=72
    if PF: lh=g.uniq("hv"); g(f"s_cmp_lg_u32 s{sPf}, 0"); g(f"s_cbranch_scc1 {lh}")
    dma(1, sSeg)
    if PF: g.label(lh); g(f"s_mov_b32 s{sPf}, 0")
    g(f"s_min_u32 s{sTO}, s{sI}, 63")
    def la_addr():
        g(f"s_lshl_b32 s{sA}, s{sI}, 2"); g(f"s_add_u32 s{sA}, s{sA}, s{sFx}"); g(f"s_sub_u32 s{sA}, s{sA}, {4*AHEAD-4}")
        g(f"s_cmp_lg_u32 s{sW}, 0"); g(f"s_cselect_b32 s{sA}, {OOB}, s{sA}")
        g(f"v_mov_b32 v{vPl}, 8")
    def h_poll():
        g("s_mov_b64 exec, 15"); g(f"v_mov_b32 v{vPl}, 0")
        g(f"buffer_atomic_add v{vPl}, v{vFa}, {WS}, s{sA} offen sc0")
        g("s_mov_b64 exec, -1")
    hk={0:lambda: trace(g,sI,4,vT)}
    if PF: hk[OPT.get('qkv_poll0',38)]=lambda: (la_addr(), h_poll())
    compute(1, True, hk, extra=dma(0, sTO, True))
    trace(g,sI,1,vT)
    l_no0=g.uniq("n0")
    g(f"s_cmp_ge_u32 s{sI}, 64"); g(f"s_cbranch_scc1 {l_no0}")
    g(f"s_waitcnt vmcnt({3 if PF else 2})")
    g("s_barrier")
    if not PF: la_addr()
    g(f"s_mov_b32 s{sSeg}, s{sI}")
    def h_sig():
        g("s_waitcnt vmcnt(0)")
        if PF:
            g(f"v_cmp_gt_u32 vcc, 8, v{vPl}"); g(f"s_cmp_lg_u32 s{sW}, 0"); g("s_nop 1"); g(f"v_mov_b32 v{vA}, vcc_lo"); g("s_cselect_b64 exec, 0, 1")
            g(f"ds_write_b32 v{vLf}, v{vA} offset:16"); g("s_mov_b64 exec, -1")
        sig2(); pend_flag()
        trace(g,sI,2,vT)
    def h_bar(): g("s_barrier"); g(f"ds_read_b32 v{vA}, v{vLf} offset:16")
    def h_pf():
        l=g.uniq("pf"); l2=g.uniq("pf")
        g(f"v_readfirstlane_b32 s3, v{vA}"); g("s_cmp_lg_u32 s3, 0"); g(f"s_cbranch_scc1 {l}")
        g(f"s_sub_u32 s{sPf}, s{sI}, {AHEAD-1}"); pfl.extend(dma(1,sPf,True)); g(pfl.pop(0)); g(f"s_branch {l2}")
        g.label(l); h_poll(); g.label(l2)
    pfl=[]
    def h_ld():
        l=g.uniq("pf"); g(f"s_cmp_eq_u32 s{sPf}, 0"); g(f"s_cbranch_scc1 {l}"); g(pfl.pop(0)); g.label(l)
    QS=OPT.get('qkv_sig',18)
    hk={QS:h_sig, QS+5:h_bar, QS+10:h_pf}
    for k in range(9): hk[QS+11+k]=h_ld
    compute(0, False, hk if PF else {QS:h_sig, OPT.get('qkv_poll',26):h_poll})
    trace(g,sI,3,vT)
    tflush(g,sI,100)
    g(f"s_add_u32 s{sI}, s{sI}, 1"); g(f"s_mov_b32 s{sP1}, s{sI}")
    if PF: g(f"s_cmp_lg_u32 s{sPf}, 0"); g(f"s_cbranch_scc1 L_{N}_loop")
    lw=g.uniq("w")
    g(f"s_cmp_lg_u32 s{sW}, 0"); g(f"s_cbranch_scc1 {lw}")
    g(f"s_waitcnt vmcnt({2+(2 if TRACE[0] else 0)})")
    g(f"v_cmp_gt_u32 vcc, 8, v{vPl}"); g("s_nop 1"); g(f"v_mov_b32 v{vT}, vcc_lo")
    g(f"ds_write_b32 v{vLf}, v{vT}")
    g("s_waitcnt lgkmcnt(0)")
    g.label(lw)
    g("s_barrier")
    g(f"ds_read_b32 v{vT}, v{vLf}")
    g("s_waitcnt lgkmcnt(0)")
    g(f"v_readfirstlane_b32 s3, v{vT}")
    g("s_cmp_eq_u32 s3, 0"); g(f"s_cbranch_scc1 L_{N}_loop")
    g(f"s_branch L_{N}_block")
    g.label(l_no0)
    g("s_waitcnt vmcnt(0)")
    sig2()
    tflush(g,sI,100)
    g(f"s_add_u32 s{sI}, s{sI}, 1")
    g(f"s_cmp_lt_u32 s{sI}, {64+AHEAD}"); g(f"s_cbranch_scc1 L_{N}_block")
    g("s_endpgm")

def xsum4(g, v, t, op):
    g(f"v_mov_b32 v{t}, v{v}"); g("s_nop 1")
    g(f"v_permlane16_swap_b32 v{v}, v{t}")
    g(f"{op} v{v}, v{v}, v{t}")
    g(f"v_mov_b32 v{t}, v{v}"); g("s_nop 1")
    g(f"v_permlane32_swap_b32 v{v}, v{t}")
    g(f"{op} v{v}, v{v}, v{t}")

def rnd_pairs(g, regs, tmp):
    for i in range(0,len(regs),2):
        a,b=regs[i],regs[i+1]
        g(f"v_cvt_pk_bf16_f32 v{tmp}, v{a}, v{b}")
        g(f"v_lshlrev_b32 v{a}, 16, v{tmp}")
        g(f"v_and_b32 v{b}, 0xffff0000, v{tmp}")

def warm(g):
    import chain
    N="wm"
    sH,sT,sA,sNeed,sFW,sIn,sB=52,53,54,55,56,57,58
    vO,vT,vFq,vZ,vC,vFl=1,2,3,4,5,6
    g.label(f"L_{N}")
    chain.startup_checks(g,OPT,1,sA,sB)
    near_setup(g,0,have=True)
    g(f"s_and_b32 s{sH}, s{sX}, 1"); g(f"s_lshl_b32 s{sH}, s{sH}, 1"); g(f"s_add_u32 s{sH}, s{sH}, s{sTK}"); g(f"s_sub_u32 s{sH}, s{sH}, 30")
    g(f"s_lshl_b32 s{sH}, s{sH}, 2"); g(f"s_add_u32 s{sH}, s{sH}, s{sW}"); g(f"s_lshl_b32 s{sH}, s{sH}, 1")
    g(f"v_lshlrev_b32 v{vO}, 7, v0"); g(f"v_lshlrev_b32 v{vFl}, 8, v0")
    g(f"s_add_u32 s{sA}, s{sN0}, {CQKV1}"); g(f"s_cmp_lt_u32 s{sX}, 2"); g(f"s_cselect_b32 s{sA}, {CQKV}, s{sA}")
    g(f"s_cselect_b32 s{sIn}, {KQ}, {KQ+LST+0}" if False else f"s_cselect_b32 s{sIn}, 0, {LST}"); g(f"s_cselect_b32 s{sFW}, 0, 8192")
    g(f"s_lshl_b32 s3, s{sH}, 8"); g(f"s_add_u32 s{sA}, s{sA}, s3"); g(f"v_add_u32 v{vFq}, s{sA}, v{vFl}")
    g(f"s_add_u32 s{sFW}, s{sFW}, s3"); g(f"s_add_u32 s{sFW}, s{sFW}, {FLW}")
    g(f"s_lshl_b32 s3, s{sH}, 14"); g(f"s_add_u32 s{sIn}, s{sIn}, s3"); g(f"s_add_u32 s{sIn}, s{sIn}, {KQ}")
    g(f"s_mov_b32 s{sT}, 0"); g(f"v_mov_b32 v{vZ}, 0"); g(f"v_mov_b32 v{vC}, 0"); g(f"v_mov_b32 v7, 0")
    g.label(f"L_{N}_loop")
    lg=g.uniq("wg"); lh=g.uniq("wh")
    g(f"s_sub_i32 s{sNeed}, s{sT}, {OPT.get('warm_ahead',2)}"); g(f"s_max_i32 s{sNeed}, s{sNeed}, 0")
    g(f"v_cmp_gt_u32 vcc, s{sNeed}, v7"); g(f"s_cbranch_vccz {lg}")
    g(f"s_add_u32 s{sA}, s{sFW}, 8")
    poll_ge(g, vT, vZ, f"s{sA}", f"s{sNeed}", mask="1", sleep=2)
    g.label(lg)
    g(f"s_lshl_b32 s{sA}, s{sT}, 2")
    trace(g,sT,0,vT)
    g(f"v_cmp_gt_u32 vcc, 12, v{vC}"); g("s_and_b32 s3, vcc_lo, 3"); g(f"s_cbranch_scc0 {lh}")
    if not OPT.get("nocnt"): wait_cnt(g, vC, vFq, f"s{sA}", "12", mask="3", sleep=OPT.get("warm_sleep",1))
    g.label(lh)
    trace(g,sT,2,vT)
    blk(g,sB,sT,sIn,0)
    for i,o in enumerate((0,24576,VO-KQ,VO-KQ+24576,8192,16384)[:6 if OPT.get("warmq") else 4]):
        g(f"s_add_u32 s3, s{sB}, {o}")
        g(f"buffer_load_dword v{8+i}, v{vO}, {WS}, s3 offen sc1")
    g(f"v_mov_b32 v{vC}, 0"); g("s_mov_b64 exec, 3")
    g(f"buffer_atomic_add v{vC}, v{vFq}, {WS}, s{sA} offen offset:4 sc0"); g("s_mov_b64 exec, -1")
    g(f"buffer_load_dword v7, off, {WS}, s{sFW} offset:8 sc1")
    g(f"s_add_u32 s{sNeed}, s{sT}, 1"); g(f"v_mov_b32 v{vT}, s{sNeed}")
    g("s_waitcnt vmcnt(2)")
    l1=g.uniq("lf"); l2=g.uniq("lf")
    g("s_mov_b64 exec, 3")
    g(f"s_cmp_lg_u32 s{sSlow}, 0"); g(f"s_cbranch_scc1 {l1}")
    g(f"buffer_store_dword v{vT}, v{vFl}, {WS}, s{sFW} offen"); g(f"s_branch {l2}")
    g.label(l1); g(f"buffer_store_dword v{vT}, v{vFl}, {WS}, s{sFW} offen sc1"); g.label(l2)
    g("s_mov_b64 exec, -1")
    trace(g,sT,1,vT); trace(g,sT,3,vT)
    g("s_waitcnt vmcnt(1)")
    tflush(g,sT,20)
    g(f"s_add_u32 s{sT}, s{sT}, 1")
    g(f"s_cmp_lt_u32 s{sT}, 64"); g(f"s_cbranch_scc1 L_{N}_loop")
    g("s_endpgm")

def wo_weights(g, phase):
    sG,sCC,sA,sLB,sRot=52,53,55,57,64
    if phase==0:
        srd(g, 8, 26, 4096*1280)
        g(f"s_mul_i32 s{sLB}, s{sW}, 40960")
        g(f"s_and_b32 s{sA}, s{sCC}, 3")
        rot_table(g, sRot, sA, 4)
        g(f"s_mul_i32 s{sA}, s{sG}, {512*1280}"); g(f"s_lshl_b32 s3, s{sCC}, 8"); g(f"s_add_u32 s{sA}, s{sA}, s3")
    load_w32(g, 4, 1280, sA, sLB, 4, 2, 3, sRot, phase)

def wo(g):
    N="wo"
    sG,sCC,sT,sA,sB,sLB,sOut,sSeg,sP1,sRot=52,53,54,55,56,57,58,60,61,64
    vOff,vA,vT,vSt,vFa,vNeed,vL16,vSig,vPl,vLf=1,2,3,4,5,6,7,8,9,10
    vF=32; vC=64
    g.label(f"L_{N}")
    for B in range(4): hblk(g,sRot+B,sRot+B); g(f"s_xor_b32 s{sRot+B}, s{sRot+B}, 8192")
    g(f"v_lshlrev_b32 v{vL16}, 4, v0")
    vTw,vTr=14,15
    g(f"s_lshl_b32 s3, s{sW}, 3"); g(f"v_lshrrev_b32 v{vSt}, 4, v0"); g(f"v_add_u32 v{vSt}, s3, v{vSt}"); g(f"v_mul_u32_u24 v{vTr}, 272, v{vSt}"); g(f"v_mul_u32_u24 v{vSt}, 1280, v{vSt}")
    g(f"v_and_b32 v{vT}, 15, v0"); g(f"v_lshl_add_u32 v{vSt}, v{vT}, 4, v{vSt}"); g(f"v_lshl_add_u32 v{vTr}, v{vT}, 4, v{vTr}")
    g(f"v_and_b32 v{vTw}, 31, v0"); g(f"v_mul_u32_u24 v{vTw}, 272, v{vTw}"); g(f"v_lshrrev_b32 v{vT}, 5, v0"); g(f"v_lshl_add_u32 v{vTw}, v{vT}, 3, v{vTw}")
    g(f"s_lshl_b32 s3, s{sW}, 6"); g("s_add_u32 s3, s3, 65536"); g(f"v_add_u32 v{vTw}, s3, v{vTw}"); g(f"v_add_u32 v{vTr}, 0x10000, v{vTr}")
    g(f"s_lshl_b32 s3, s{sCC}, 8"); g(f"v_add_u32 v{vSt}, s3, v{vSt}")
    g(f"s_mul_i32 s{sOut}, s{sG}, 40960"); g(f"s_add_u32 s{sOut}, s{sOut}, {PB}")
    near_setup(g,12)
    g(f"v_lshlrev_b32 v{vSig}, 9, v0"); spread_v(g,vSig,vT); g(f"v_add_u32 v{vSig}, s{sN0 if OPT.get('place',1)==0 else sN1}, v{vSig}")
    g(f"s_mul_i32 s3, s{sG}, 5"); g(f"s_add_u32 s3, s3, s{sCC}"); g(f"s_and_b32 s{sA}, s3, 3"); g(f"s_mul_i32 s{sA}, s{sA}, {CPBS}"); g(f"v_add_u32 v{vSig}, s{sA}, v{vSig}")
    g("s_lshl_b32 s3, s3, 9"); spread_s(g,3); g(f"s_add_u32 s3, s3, s{sN0 if OPT.get('place',1)==2 else sN1}"); g(f"s_add_u32 s3, s3, {CO}")
    g(f"v_lshlrev_b32 v{vFa}, 8, v0"); g(f"v_add_u32 v{vFa}, s3, v{vFa}")
    g(f"v_mov_b32 v{vNeed}, 0"); g(f"v_and_b32 v{vLf}, 1, v0"); g(f"v_lshlrev_b32 v{vLf}, 2, v{vLf}"); g(f"v_add_u32 v{vLf}, {L_FLAG}, v{vLf}")
    g(f"s_lshl_b32 s{sB}, s{sW}, 11")
    g(f"s_mov_b32 s{sT}, 0"); g(f"s_mov_b32 s{sP1}, -1")
    def dma(layer, sS, defer=False):
        g(f"s_lshl_b32 s3, s{sG}, 16"); g(f"s_add_u32 s3, s3, s{sB}"); g(f"s_add_u32 s3, s3, {VO+layer*LST}"); blk(g,sA,sS,3,0)
        g(f"s_cmp_lt_u32 s{sS}, 64"); g(f"s_cselect_b32 s{sA}, s{sA}, {OOB}")
        L=[f"s_add_u32 m0, s{sB}, {layer*32768+B*8192}\ns_add_u32 s3, s{sA}, s{sRot+B}\nbuffer_load_dwordx4 v{vL16}, {WS}, s3 offen offset:{1024*e} sc1 lds" for B in range(4) for e in range(2)]
        if defer: return L
        for x in L: g(x)
    sO=[62,63]
    g(f"s_mov_b32 s{sO[1]}, {OOB}")
    def stores(layer): return [f"s_add_u32 s3, s{sO[layer]}, {4*i*1280}\nbuffer_store_dwordx4 {q4('v',96+16*layer+4*i)}, v{vSt}, {WS}, s3 offen sc1" for i in range(2)]
    def tread(layer):
        for i in range(2): g(f"ds_read_b128 {q4('v',96+16*layer+4*i)}, v{vTr} offset:{layer*8704+4*272*i}")
    def compute(layer, staged, sS, hooks={}, extra=(), every=3):
        C=vC+16*layer; A=sO[layer]
        Rd=lambda k: f"ds_read_b128 {q4('v',vF+4*(k%8))}, v{vL16} offset:{layer*32768+k*1024}"
        Mf=lambda k: f"{MF32} v[{C}:{C+15}], {q4('a',4*k)}, {q4('v',vF+4*(k%8))}, {'0' if k==0 else f'v[{C}:{C+15}]'}"
        gemm_stream(g,4,Rd,Mf,staged,hooks,extra,every)
        g(f"s_mul_i32 s{A}, s{sS}, {8*40960}"); g(f"s_add_u32 s{A}, s{A}, s{sOut}")
        if layer: g(f"s_add_u32 s{A}, s{A}, {64*8*40960}")
        g(f"s_cmp_lt_u32 s{sS}, 64"); g(f"s_cselect_b32 s{A}, s{A}, {OOB}")
        g("s_nop 8")
        for a in range(4):
            g(f"v_cvt_pk_bf16_f32 v{C+4*a}, v{C+4*a}, v{C+4*a+1}"); g(f"v_cvt_pk_bf16_f32 v{C+4*a+1}, v{C+4*a+2}, v{C+4*a+3}")
            g(f"ds_write_b64 v{vTw}, v[{C+4*a}:{C+4*a+1}] offset:{layer*8704+16*a}")
    def sig(layer, sS, w=1):
        l=g.uniq("sg")
        g(f"s_cmp_lg_u32 s{sW}, {w}"); g(f"s_cbranch_scc1 {l}")
        g(f"s_cmp_ge_u32 s{sS}, 64"); g(f"s_cbranch_scc1 {l}")
        g(f"s_lshl_b32 s3, s{sS}, 2"); g(f"s_add_u32 s3, s3, {CPB+256*layer}")
        signal(g, vT, vSig, 3, "lo32")
        g.label(l)
    sP,sPo=59,68
    g(f"s_mov_b32 s{sP}, 0"); g(f"s_cmp_lg_u32 s{sW}, 0"); g(f"s_cselect_b32 s{sPo}, {OOB}, 0")
    def addr():
        g(f"v_mov_b32 v{vA}, s{sP}"); g(f"v_writelane_b32 v{vA}, s{sT}, 0"); g(f"v_lshl_add_u32 v{vA}, v{vA}, 2, v{vFa}")
        g(f"s_cmp_lt_u32 s{sT}, 64"); g("s_cselect_b32 s3, 8, 0"); g(f"v_writelane_b32 v{vNeed}, s3, 0")
        g(f"s_cselect_b32 s3, {WL}, 0"); g(f"s_add_u32 s3, s3, s{sP}"); g(f"s_cmp_ge_u32 s{sT}, s3"); g("s_cselect_b32 s3, 8, 0"); g(f"v_writelane_b32 v{vNeed}, s3, 1")
    def poll():
        addr()
        g(f"v_mov_b32 v{vPl}, 0")
        g("s_mov_b64 exec, 3")
        g(f"buffer_atomic_add v{vPl}, v{vA}, {WS}, s{sPo} offen sc0")
        g("s_mov_b64 exec, -1")
    def share(off):
        g(f"s_cmp_lg_u32 s{sW}, 0"); g("s_cselect_b64 exec, 0, 3")
        g(f"ds_write_b32 v{vLf}, v{vPl} offset:{off}"); g("s_mov_b64 exec, -1")
        g("s_waitcnt lgkmcnt(0)"); g("s_barrier")
        g(f"ds_read_b32 v{vPl}, v{vLf} offset:{off}")
    def wait(first):
        lw=g.uniq("w")
        g(f"s_cmp_lg_u32 s{sW}, 0"); g(f"s_cbranch_scc1 {lw}")
        if first:
            g("s_waitcnt vmcnt(0)")
            g(f"v_cmp_gt_u32 vcc, v{vNeed}, v{vPl}"); g(f"s_cbranch_vccz {lw}")
        g("v_mov_b32 v13, 0")
        wait_cnt(g, 12, vA, "0", f"v{vNeed}", mask="3", sleep=0, v2=13)
        g(f"v_max_u32 v{vPl}, v12, v13")
        g.label(lw)
    addr(); g("s_mov_b32 s72, 0")
    g.label(f"L_{N}_block")
    wait(False); share(8); g("s_waitcnt lgkmcnt(0)")
    g.label(f"L_{N}_loop")
    trace(g,sT,0,vT)
    PF=OPT.get("wo_pf",1); sPf=72
    if PF: g(f"s_cmp_lg_u32 s{sPf}, 0"); g(f"s_cbranch_scc1 L_{N}_have")
    dma(0,sT)
    g.label(f"L_{N}_have")
    g(f"v_readlane_b32 s3, v{vPl}, 1"); g("s_nop 3"); g("s_cmp_ge_u32 s3, 8"); g(f"s_cselect_b32 s{sSeg}, s{sP}, -1"); g(f"s_addc_u32 s{sP}, s{sP}, 0")
    g(f"s_mov_b32 s{sLB}, s{sT}"); g(f"s_add_u32 s{sT}, s{sT}, 1")
    hk={0:lambda: trace(g,sLB,4,vT),31:lambda: trace(g,sLB,5,vT)}
    if PF: hk[15]=poll
    compute(0,True,sLB,hk,extra=dma(1,sSeg,True)+stores(1),every=list(range(0,16,2))+[16,20])
    if PF: g("s_waitcnt vmcnt(2)"); share(16)
    else: g("s_waitcnt vmcnt(2) lgkmcnt(0)"); g("s_barrier")
    tread(0)
    trace(g,sLB,3,vT)
    def h_sig():
        if PF:
            l=g.uniq("pf"); g("s_waitcnt vmcnt(9)"); g(f"s_cmp_lg_u32 s{sPf}, 0"); g(f"s_cbranch_scc1 {l}"); g("s_waitcnt vmcnt(1)"); g.label(l)
        else: g("s_waitcnt vmcnt(1)")
        g("s_barrier")
        sig(0,sLB)
        trace(g,sLB,1,vT)
    hk={OPT.get("wo_poll",14):poll, OPT.get("wo_sig",20):h_sig}
    if PF:
        pfl=[]
        def h_pf():
            g(f"v_cmp_gt_u32 vcc, v{vNeed}, v{vPl}"); pfl.extend(dma(0,sT,True)); g("s_cmp_eq_u64 vcc, 0"); g(f"s_cselect_b32 s{sPf}, 1, 0")
        def h_ld():
            l=g.uniq("pf"); g(f"s_cmp_eq_u32 s{sPf}, 0"); g(f"s_cbranch_scc1 {l}"); g(pfl.pop(0)); g.label(l)
        hk[2]=h_pf
        for k in OPT.get("wo_pk",[3,4,6,7,9,10,12,13]): hk[k]=h_ld
    compute(1,False,sSeg,hk,extra=stores(0),every=[0,OPT.get("wo_sp",2)])
    l=g.uniq("w0"); g(f"s_cmp_lg_u32 s{sW}, 0"); g(f"s_cbranch_scc1 {l}"); g("s_waitcnt vmcnt(0)"); g.label(l)
    share(0); tread(1)
    sig(1,sP1,2)
    trace(g,sLB,2,vT)
    tflush(g,sLB,140)
    g(f"s_mov_b32 s{sP1}, s{sSeg}")
    g("s_waitcnt lgkmcnt(0)")
    g(f"v_cmp_gt_u32 vcc, v{vNeed}, v{vPl}")
    g(f"s_cmp_ge_u32 s{sT}, 64"); g(f"s_cbranch_scc1 L_{N}_tail")
    g(f"s_cbranch_vccz L_{N}_loop")
    g(f"s_branch L_{N}_block")
    g.label(f"L_{N}_tail")
    for x in stores(1): g(x)
    poll()
    g("s_waitcnt vmcnt(1)"); g("s_barrier")
    sig(1,sP1)
    g(f"s_cmp_ge_u32 s{sP}, 64"); g("s_cbranch_scc1 L_bail")
    wait(True); g("s_barrier")
    g(f"s_mov_b32 s{sP1}, s{sP}"); g(f"s_add_u32 s{sP}, s{sP}, 1")
    dma(1,sP1)
    compute(1,True,sP1)
    g("s_waitcnt lgkmcnt(0)"); g("s_barrier")
    tread(1)
    g("s_waitcnt lgkmcnt(0)")
    g(f"s_branch L_{N}_tail")

def wsum(g, v, t):
    for d in ("quad_perm:[1,0,3,2]","quad_perm:[2,3,0,1]","row_half_mirror","row_mirror"):
        g("s_nop 1")
        g(f"v_add_f32_dpp v{v}, v{v}, v{v} {d} row_mask:0xf bank_mask:0xf")
    xsum4(g,v,t,"v_add_f32")

def rnd1(g, v):
    g(f"v_cvt_pk_bf16_f32 v{v}, v{v}, v{v}")
    g(f"v_and_b32 v{v}, 0xffff0000, v{v}")

def layernorm(g, X, Y, t0,t1,t2, sInv, sEps, packed=None, mim=True):
    assert t1==t0+1 and t0%2==0
    PP=lambda r: f"v[{r}:{r+1}]"
    g(f"v_readfirstlane_b32 s3, v{X}")
    g("s_nop 1")
    for i in range(8): g(f"v_subrev_f32 v{Y+i}, s3, v{X+i}")
    for i in range(8,12): g(f"v_mov_b32 v{Y+i}, 0")
    g("s_mov_b32 exec_hi, 0")
    for i in range(8,12): g(f"v_subrev_f32 v{Y+i}, s3, v{X+i}")
    g("s_mov_b32 exec_hi, -1")
    g(f"v_pk_mul_f32 {PP(t0)}, {PP(Y)}, {PP(Y)}")
    for i in range(2,12,2): g(f"v_pk_fma_f32 {PP(t0)}, {PP(Y+i)}, {PP(Y+i)}, {PP(t0)}")
    for i in range(2,12,2): g(f"v_pk_add_f32 {PP(Y)}, {PP(Y)}, {PP(Y+i)}")
    g(f"v_add_f32 v{t1}, v{t0}, v{t1}"); g(f"v_add_f32 v{t0}, v{Y}, v{Y+1}")
    for d in ("quad_perm:[1,0,3,2]","quad_perm:[2,3,0,1]","row_half_mirror","row_mirror"):
        g("s_nop 0")
        g(f"v_add_f32_dpp v{t1}, v{t1}, v{t1} {d} row_mask:0xf bank_mask:0xf")
        g(f"v_add_f32_dpp v{t0}, v{t0}, v{t0} {d} row_mask:0xf bank_mask:0xf")
    for sw in ("v_permlane16_swap_b32","v_permlane32_swap_b32"):
        g(f"v_mov_b32 v{Y+1}, v{t1}"); g(f"v_mov_b32 v{Y}, v{t0}"); g("s_nop 0")
        g(f"{sw} v{t1}, v{Y+1}"); g(f"{sw} v{t0}, v{Y}")
        g(f"v_pk_add_f32 {PP(t0)}, {PP(t0)}, {PP(Y)}")
    g(f"v_mul_f32 v{t0}, s{sInv}, v{t0}"); g(f"v_mul_f32 v{t1}, s{sInv}, v{t1}")
    g(f"v_fma_f32 v{t1}, -v{t0}, v{t0}, v{t1}"); g(f"v_max_f32 v{t1}, 0, v{t1}")
    g(f"v_add_f32 v{t0}, s3, v{t0}")
    g(f"v_cvt_pk_bf16_f32 v{t2}, v{t0}, v{t1}"); g(f"v_lshlrev_b32 v{t0}, 16, v{t2}"); g(f"v_and_b32 v{t1}, 0xffff0000, v{t2}")
    g(f"v_add_f32 v{t1}, s{sEps}, v{t1}"); rnd1(g,t1)
    g(f"v_sqrt_f32 v{t1}, v{t1}"); g("s_nop 0")
    for i in range(0,12,2): g(f"v_pk_add_f32 {PP(Y+i)}, {PP(X+i)}, {PP(t0)} op_sel_hi:[1,0] neg_lo:[0,1] neg_hi:[0,1]")
    rnd1(g,t1)
    g(f"v_rcp_f32 v{t1}, v{t1}")
    if mim: rnd_pairs(g,[Y+i for i in range(12)],t2)
    else: g("s_nop 0")
    for i in range(0,12,2): g(f"v_pk_mul_f32 {PP(Y+i)}, {PP(Y+i)}, {PP(t0)} op_sel:[0,1] op_sel_hi:[1,1]")
    if packed is not None: pack6(g,packed,Y)
    elif mim: rnd_pairs(g,[Y+i for i in range(12)],t2)

def unpack6(g, D, Sx):
    for i in range(6):
        g(f"v_lshlrev_b32 v{D+2*i}, 16, v{Sx+i}")
        g(f"v_and_b32 v{D+2*i+1}, 0xffff0000, v{Sx+i}")
def pack6(g, D, Sx):
    for i in range(6): g(f"v_cvt_pk_bf16_f32 v{D+i}, v{Sx+2*i}, v{Sx+2*i+1}")

def xn_addr(g, vX, vT, rowexpr_s):
    g(f"v_lshrrev_b32 v{vX}, 3, v0"); g(f"v_lshlrev_b32 v{vX}, 2, v{vX}")
    g(f"v_and_b32 v{vT}, 3, v0"); g(f"v_add_u32 v{vX}, v{vX}, v{vT}")
    g(f"v_xor_b32 v{vX}, s{rowexpr_s}, v{vX}")
    g(f"v_lshlrev_b32 v{vX}, 4, v{vX}")
    g(f"v_and_b32 v{vT}, 4, v0"); g(f"v_lshl_add_u32 v{vX}, v{vT}, 1, v{vX}")

def t4(g):
    N="t4"
    sR,sLam,sS,sA,sB,sInv,sEps,sNeed,sRow=52,53,54,55,56,57,58,59,60
    vL16,vL8,vT,vXa,vFa,vL16c,vL8c,vXc=1,2,3,4,5,6,7,8
    t0,t1,t2=10,11,9
    vX,vY,vN,vA,vPk,vFl=12,24,36,48,60,68
    vP=80
    vYa,vPg,vYw=72,73,74
    import pre
    g.label(f"L_{N}")
    sRs=61
    g(f"s_lshr_b32 s{sLam}, s{sW}, 1")
    g(f"s_and_b32 s{sRs}, s{sW}, 1"); g(f"s_lshl_b32 s{sR}, s{sR}, 1"); g(f"s_add_u32 s{sR}, s{sR}, s{sRs}"); g(f"s_mov_b32 s{sS}, 0")
    g(f"v_lshlrev_b32 v{vL16}, 4, v0")
    g(f"v_mov_b32 v{vYa}, 0"); g(f"s_lshl_b32 s3, s{sW}, 2"); g(f"s_add_u32 s3, s3, {L_FLAG}"); g(f"v_mov_b32 v{vPg}, s3")
    g(f"ds_write_b32 v{vPg}, v{vYa}")
    pre.wait_wg(g,*pre.BY1,vX)
    g(f"s_mul_i32 s{sA}, s{sR}, 40960"); g(f"s_mul_i32 s{sB}, s{sLam}, 20480"); g(f"s_add_u32 s{sA}, s{sA}, s{sB}"); g(f"s_add_u32 s{sA}, s{sA}, {YT}")
    g(f"s_mul_i32 s{sNeed}, s{sRs}, 40960"); g(f"s_add_u32 s{sB}, s{sB}, s{sNeed}")
    def ysrc():
        g(f"v_and_b32 v{vN}, 48, v0"); g(f"v_xor_b32 v{vN}, v{vN}, v{vL16}")
        for e in range(1,4): g(f"v_xor_b32 v{vN+e}, {64*e}, v{vN}")
    ysrc()
    for i in range(5):
        g(f"s_add_u32 m0, s{sB}, {4096*i}"); g(f"s_add_u32 s3, s{sA}, {4096*i}")
        for e in range(4): g(f"buffer_load_dwordx4 v{vN+e}, {WS}, s3 offen offset:{1024*e} sc1 lds")
    g("s_waitcnt vmcnt(0) lgkmcnt(0)")
    g("s_barrier")
    tl(g,TRACE[0],DBG3+16384,101,1)
    le0=g.uniq("e0")
    g(f"s_cmp_eq_u32 s{sLam}, 0"); g(f"s_cbranch_scc1 {le0}")
    pre.t4_late(g,sR,sRs)
    g(f"v_lshlrev_b32 v{vL16}, 4, v0")
    ysrc()
    for i in range(10):
        g(f"s_add_u32 s3, s{sA}, {32*40960-20480+4096*i}")
        for e in range(4): g(f"buffer_load_dwordx4 {q4('a',16*i+4*e)}, v{vN+e}, {WS}, s3 offen offset:{1024*e} sc1")
    g("s_waitcnt vmcnt(0)")
    tl(g,TRACE[0],DBG3+16384,101,2)
    g.label(le0)
    g(f"v_add_u32 v{vYw}, s{sNeed}, v{vL16}")
    g(f"v_and_b32 v{vYa}, 0xf0, v{vL16}"); g(f"v_lshl_add_u32 v{vYa}, v0, 8, v{vYa}"); g(f"v_add_u32 v{vYa}, s{sNeed}, v{vYa}")
    g(f"s_lshl_b32 s3, s{sRs}, 2"); g(f"s_add_u32 s3, s3, {L_FLAG}"); g(f"v_mov_b32 v{vPg}, s3")
    srd(g, 8, 16, 2048*1280)
    srd(g, 12, 42, 2048*1280)
    g(f"v_lshlrev_b32 v{vL16}, 4, v0"); g(f"v_lshlrev_b32 v{vL8}, 3, v0")
    g(f"v_cmp_lt_u32 vcc, 31, v0"); g(f"v_mov_b32 v{vT}, {OOB}"); g("s_nop 1")
    g(f"v_cndmask_b32 v{vL16c}, v{vL16}, v{vT}, vcc"); g(f"v_cndmask_b32 v{vL8c}, v{vL8}, v{vT}, vcc")
    g(f"s_and_b32 s3, s{sR}, 15")
    xn_addr(g, vXa, t0, 3)
    g(f"v_cndmask_b32 v{vXc}, v{vXa}, v{vT}, vcc")
    near_setup(g,vX)
    g(f"s_lshl_b32 s3, s{sR}, 9"); spread_s(g,3); g(f"s_lshl_b32 s{sA}, s{sLam}, 8"); g(f"s_add_u32 s3, s3, s{sA}"); g(f"s_add_u32 s3, s3, s{sN0 if OPT.get('place',1)==0 else sN1}"); g(f"s_add_u32 s3, s3, {CPB}"); g(f"v_mul_u32_u24 v{vFa}, {CPBS}, v0"); g(f"v_add_u32 v{vFa}, s3, v{vFa}")
    g(f"v_lshlrev_b32 v{vFl}, 8, v0"); spread_v(g,vFl,t0); g(f"v_add_u32 v{vFl+1}, s{sN0 if OPT.get('place',1)==1 else sN1}, v{vFl}"); g(f"v_add_u32 v{vFl}, s{sN1}, v{vFl}")
    g(f"v_cmp_lt_u32 vcc, 55, v0"); g("s_nop 1"); g(f"v_cndmask_b32 v{vFl}, v{vFl}, v{vFl+1}, vcc")
    g(f"s_mov_b32 s{sInv}, {hex(f32bits(1/640))}"); g(f"s_mov_b32 s{sEps}, {hex(f32bits(1e-5))}")
    vXn,vPl=176,75
    def xload(add):
        g(f"s_add_u32 s3, s{sRow}, {add}"); g(f"s_cmp_eq_u32 s{sLam}, 0"); g(f"s_cselect_b32 s3, s3, {OOB}")
        for i in range(3): g(f"buffer_load_dwordx2 v[{vXn+2*i}:{vXn+2*i+1}], v{vL8 if i<2 else vL8c}, {WT}, s3 offen offset:{512*i}{OPT.get('xnt','')}")
    def poll(add):
        g(f"s_lshl_b32 s{sA}, s{sS}, 2"); g(f"v_mov_b32 v{vPl}, 0"); g("s_mov_b64 exec, 15")
        g(f"buffer_atomic_add v{vPl}, v{vFa}, {WS}, s{sA} offen offset:{4*add} sc0"); g("s_mov_b64 exec, -1")
    g("s_mov_b32 s62, 0x3f80"); g("s_mov_b32 s63, 0x3f800000")
    for i in range(12): g(f"v_mov_b32 v{vY+i}, 0")
    g(f"s_mul_i32 s{sRow}, s{sR}, 1280")
    xload(0); poll(0); g("s_waitcnt vmcnt(0)")
    g.label(f"L_{N}_loop")
    lp=g.uniq("tw"); ld=g.uniq("twd")
    g(f"s_mov_b32 s{sTO}, 0")
    g.label(lp)
    g(f"v_cmp_gt_u32 vcc, 10, v{vPl}")
    g("s_and_b32 s3, vcc_lo, 15"); g(f"s_cbranch_scc0 {ld}")
    g(f"s_sleep {OPT.get('t4_sleep2',1)}")
    poll(0); g("s_waitcnt vmcnt(0)")
    timeout(g, lp)
    g.label(ld)
    trace(g,sS,0,t0)
    g(f"s_lshl_b32 s{sA}, s{sLam}, 6"); g(f"s_add_u32 s{sA}, s{sA}, s{sS}"); g(f"s_mul_i32 s{sA}, s{sA}, {8*40960}")
    g(f"s_mul_i32 s3, s{sR}, 1280"); g(f"s_add_u32 s{sA}, s{sA}, s3"); g(f"s_add_u32 s{sA}, s{sA}, {PB}")
    for p in range(8):
        for i in range(3): g(f"buffer_load_dwordx2 v[{vP+12+6*p+2*i}:{vP+13+6*p+2*i}], v{vL8 if i<2 else vL8c}, {WS}, s{sA} offen offset:{512*i} sc1{OPT.get('nt','')}")
        g(f"s_add_u32 s{sA}, s{sA}, 40960")
    ly=g.uniq("yh"); lyd=g.uniq("yhd")
    g(f"s_and_b32 s3, s{sS}, 39"); g(f"s_cmp_lg_u32 s3, 32"); g(f"s_cbranch_scc1 {lyd}")
    g(f"s_bfe_u32 s{sA}, s{sS}, 0x20003"); g(f"s_mov_b32 s{sTO}, 0")
    g.label(ly)
    g(f"ds_read_b32 v{vN}, v{vPg} offset:8"); g("s_waitcnt lgkmcnt(0)")
    g(f"v_cmp_ge_u32 vcc, s{sA}, v{vN}"); g(f"s_cbranch_vccz {lyd}")
    g("s_sleep 8")
    timeout(g, ly)
    g.label(lyd)
    g(f"s_and_b32 s3, s{sS}, 7"); g("s_lshl_b32 s3, s3, 3"); g(f"s_bfe_u32 s{sA}, s{sS}, 0x20003"); g(f"s_lshl_b32 s{sA}, s{sA}, 1"); g(f"s_add_u32 s3, s3, s{sA}")
    g(f"v_xor_b32 v{vN}, s3, v{vYa}")
    for e in range(1,4): g(f"v_xor_b32 v{vN+e}, {64*e}, v{vN}")
    for i in range(8): g(f"ds_read_u16_d16_hi v{vY+i}, v{vN+i%4} offset:{(i//4)*16384}")
    g("s_mov_b32 exec_hi, 0")
    for i in range(4): g(f"ds_read_u16_d16_hi v{vY+8+i}, v{vN+i} offset:32768")
    g("s_mov_b32 exec_hi, -1")
    unpack6(g,vX,vXn)
    xload(32*1280)
    l0=g.uniq("l0")
    g(f"s_and_b32 s{sB}, s{sS}, 15"); g(f"s_lshl_b32 s3, s{sRs}, 4"); g(f"s_add_u32 s{sB}, s{sB}, s3"); g(f"s_mul_i32 s{sB}, s{sB}, 1536"); g(f"s_add_u32 s{sB}, s{sB}, 81920")
    g(f"v_add_u32 v{vT}, s{sB}, v{vL8}")
    g(f"s_cmp_eq_u32 s{sLam}, 0"); g(f"s_cbranch_scc1 {l0}")
    for i in range(3): g(f"ds_read_b64 v[{vA+2*i}:{vA+2*i+1}], v{vT} offset:{512*i}")
    g("s_waitcnt lgkmcnt(0)")
    unpack6(g,vX,vA)
    g(f"s_add_u32 s3, s{sS}, 1"); g(f"v_mov_b32 v{t0}, s3"); g(f"ds_write_b32 v{vPg}, v{t0}")
    g.label(l0)
    for p in range(8):
        g(f"s_waitcnt vmcnt({24-3*p})")
        if p==0: unpack6(g,vP,vP+12)
        else:
            for i in range(12): g(f"v_dot2c_f32_bf16 v{vP+i}, s{62+(i&1)}, v{vP+12+6*p+i//2}")
    g("s_waitcnt lgkmcnt(0)"); g("s_nop 1")
    trace(g,sS,1,t0)
    MIM=OPT.get("mim",1)
    if MIM: rnd_pairs(g,[vP+i for i in range(12)],t2)
    for i in range(0,12,2): g(f"v_pk_add_f32 v[{vX+i}:{vX+i+1}], v[{vX+i}:{vX+i+1}], v[{vP+i}:{vP+i+1}]")
    rnd_pairs(g,[vX+i for i in range(12)],t2)
    layernorm(g,vX,vN,t0,t1,t2,sInv,sEps,mim=MIM)
    for i in range(0,12,2): g(f"v_pk_mul_f32 v[{vN+i}:{vN+i+1}], v[{vN+i}:{vN+i+1}], v[{vY+i}:{vY+i+1}]")
    if MIM: rnd_pairs(g,[vN+i for i in range(12)],t2)
    for i in range(0,12,2): g(f"v_pk_add_f32 v[{vX+i}:{vX+i+1}], v[{vX+i}:{vX+i+1}], v[{vN+i}:{vN+i+1}]")
    pack6(g,vPk,vX)
    l1=g.uniq("l1"); le=g.uniq("le")
    g(f"s_cmp_lg_u32 s{sLam}, 0"); g(f"s_cbranch_scc1 {l1}")
    lg=g.uniq("rg"); lgd=g.uniq("rgd")
    g(f"s_cmp_lt_u32 s{sS}, 16"); g(f"s_cbranch_scc1 {lgd}")
    g(f"s_sub_u32 s{sA}, s{sS}, 15"); g(f"s_mov_b32 s{sTO}, 0")
    g.label(lg)
    g(f"ds_read_b32 v{t0}, v{vPg}"); g("s_waitcnt lgkmcnt(0)")
    g(f"v_cmp_gt_u32 vcc, s{sA}, v{t0}"); g(f"s_cbranch_vccz {lgd}")
    g("s_sleep 8")
    timeout(g, lg)
    g.label(lgd)
    for i in range(3): g(f"ds_write_b64 v{vT}, v[{vPk+2*i}:{vPk+2*i+1}] offset:{512*i}")
    unpack6(g,vX,vPk)
    g("s_nop 0")
    layernorm(g,vX,vN,t0,t1,t2,sInv,sEps,packed=vA,mim=MIM)
    g(f"s_add_u32 s3, s{sRow}, {XN+64*40960}")
    for i in range(3): g(f"buffer_store_dwordx2 v[{vA+2*i}:{vA+2*i+1}], v{vXa if i<2 else vXc}, {WS}, s3 offen offset:{512*i} sc1")
    trace(g,sS,2,t0)
    poll(1)
    g("s_waitcnt vmcnt(1) lgkmcnt(0)")
    trace(g,sS,3,t0)
    g(f"s_and_b32 s{sA}, s{sR}, 3"); g(f"s_mul_i32 s{sA}, s{sA}, {CXNS}")
    g(f"s_lshl_b32 s3, s{sS}, 2"); g(f"s_add_u32 s3, s3, s{sA}"); g(f"s_add_u32 s3, s3, {CXN}")
    signal(g, vT, vFl, 3, "-1")
    g(f"s_add_u32 s3, s3, {2*64*256}")
    signal(g, vT, vFl+1, 3, "lo32")
    g("s_waitcnt vmcnt(2)")
    g(f"s_branch {le}")
    g.label(l1)
    for i in range(3): g(f"buffer_store_dwordx2 v[{vPk+2*i}:{vPk+2*i+1}], v{vL8 if i<2 else vL8c}, {W2}, s{sRow} offen offset:{512*i}{OPT.get('nt','')}")
    poll(1)
    lc=g.uniq("yc")
    for j in range(4):
        ln=g.uniq("yn")
        g(f"s_cmp_lg_u32 s{sS}, {8*j+7}"); g(f"s_cbranch_scc1 {ln if j<3 else lc}")
        for i in range(80): g(f"ds_write_b16{'_d16_hi' if j&1 else ''} v{vYw}, a{2*i+(j>>1)} offset:{(i>>1)*1024+(i&1)*8+2*j}")
        g(f"v_mov_b32 v{t0}, {j+1}"); g(f"ds_write_b32 v{vPg}, v{t0} offset:8")
        if j<3: g(f"s_branch {lc}"); g.label(ln)
    g.label(lc)
    g("s_waitcnt vmcnt(0)")
    g.label(le)
    tflush(g,sS,184)
    g(f"s_add_u32 s{sS}, s{sS}, 1"); g(f"s_add_u32 s{sRow}, s{sRow}, {32*1280}")
    g(f"s_cmp_lt_u32 s{sS}, 64"); g(f"s_cbranch_scc1 L_{N}_loop")
    g(f"s_cmp_lg_u32 s{sW}, 3"); g("s_cbranch_scc1 L_bail")
    tl(g,TRACE[0],DBG3+16384,101,3)
    g("s_endpgm")
```

```python
from asmlib import *
from layout import *
import math, struct

WS="s[4:7]"; WT="s[8:11]"
sX,sTK,sW,sTO=48,49,50,51
sPAR=81
TIMEOUT=1<<17
def f32bits(x): return struct.unpack("<I", struct.pack("<f", x))[0]

def timeout(g, back):
    g(f"s_add_u32 s{sTO}, s{sTO}, 1")
    g(f"s_cmp_lt_u32 s{sTO}, {TIMEOUT}")
    g(f"s_cbranch_scc1 {back}")
    g("s_branch L_bail")

def dma_rows64(g, vOff, sOff, n, stride16, sLB, lds_off=0, srdname=WT):
    for i in range(n):
        g(f"s_add_u32 m0, s{sLB}, {lds_off+i*1024}")
        g("s_nop 0")
        g(f"buffer_load_dwordx4 v{vOff}, {srdname}, s{sOff} offen lds")
        g(f"s_add_u32 s{sOff}, s{sOff}, {stride16}")

def dma_voff(g, vD, vT, row_stride):
    g(f"v_lshrrev_b32 v{vD}, 2, v0")
    g(f"s_mov_b32 s3, {row_stride}")
    g(f"v_mul_lo_u32 v{vD}, v{vD}, s3")
    g(f"v_lshrrev_b32 v{vT}, 3, v0")
    g(f"v_and_b32 v{vT}, 2, v{vT}")
    g(f"v_xor_b32 v{vT}, v{vT}, v0")
    g(f"v_and_b32 v{vT}, 3, v{vT}")
    g(f"v_lshl_add_u32 v{vD}, v{vT}, 4, v{vD}")

def tr16_addr(g, vD, vT):
    g(f"v_lshrrev_b32 v{vD}, 2, v0")
    g(f"v_lshlrev_b32 v{vD}, 6, v{vD}")
    g(f"v_and_b32 v{vT}, 3, v0")
    g(f"v_lshl_add_u32 v{vD}, v{vT}, 3, v{vD}")
    g(f"v_and_b32 v{vT}, 16, v0")
    g(f"v_lshl_add_u32 v{vD}, v{vT}, 1, v{vD}")

def fl_voff(g, vD, vT, row_stride, RB):
    n=RB//16; sh={8:3,16:4}[n]
    g(f"v_lshrrev_b32 v{vD}, {sh}, v0"); g(f"s_mov_b32 s3, {row_stride}"); g(f"v_mul_lo_u32 v{vD}, v{vD}, s3")
    if RB==128:
        g(f"v_lshrrev_b32 v{vT}, 3, v0"); g(f"v_and_b32 v{vT}, 6, v{vT}")
    else:
        g(f"v_lshrrev_b32 v{vT}, 3, v0"); g(f"v_and_b32 v{vT}, 6, v{vT}")
    g(f"v_xor_b32 v{vT}, v{vT}, v0"); g(f"v_and_b32 v{vT}, {n-1}, v{vT}")
    g(f"v_lshl_add_u32 v{vD}, v{vT}, 4, v{vD}")
    if RB==256: g(f"v_xor_b32 v{vD+1}, 128, v{vD}" if row_stride%256==0 else f"v_xor_b32 v{vT}, 8, v{vT}\nv_lshrrev_b32 v{vD+1}, 4, v0\nv_mul_lo_u32 v{vD+1}, v{vD+1}, s3\nv_lshl_add_u32 v{vD+1}, v{vT}, 4, v{vD+1}")

def fl_dma(g, vOff, sOff, n, step, sL, lds_off, two=False):
    for i in range(n):
        g(f"s_add_u32 m0, s{sL}, {lds_off+i*1024}"); g("s_nop 0")
        g(f"buffer_load_dwordx4 v{vOff+(i&1 if two else 0)}, {WT}, s{sOff} offen lds")
        g(f"s_add_u32 s{sOff}, s{sOff}, {step}")

MF="v_mfma_f32_16x16x32_bf16"
def q4(k,a): return f"{k}[{a}:{a+3}]"


SM="v_smfmac_f32_16x16x64_bf16"; MH="v_mfma_f32_16x16x16_bf16"
def q8(k,a): return f"{k}[{a}:{a+7}]"
def q2(k,a): return f"{k}[{a}:{a+1}]"
ST=82

class Ctx:
    def __init__(s,g,opt,pts):
        s.g,s.opt,s.cold=g,opt,[]; s.diag=opt.get("diag"); s.pts=pts
    def stamp(s,n):
        if s.diag and n in s.pts:
            i=s.pts.index(n); s.g(f"s_memrealtime s[{ST+2*i}:{ST+2*i+1}]")
    def dly(s,k):
        n=s.opt.get(k,0)
        while n>0:
            m=min(n,4); s.g(f"s_nop {4*m-1}"); n-=m
    def retry(s,back,pre=()):
        g=s.g; l=g.uniq("rt")
        g(f"s_cbranch_vccnz {l}")
        def f():
            g.label(l)
            for x in pre: g(x)
            timeout(g, back)
        s.cold.append(f)
    def flush(s):
        while s.cold: s.cold.pop(0)()
    def dump(s,sT,v):
        if not s.diag: return
        g=s.g
        g("s_waitcnt lgkmcnt(0)")
        g(f"s_lshl_b32 s3, s101, 2"); g(f"s_add_u32 s3, s3, s{sW}"); g("s_lshl_b32 s3, s3, 6"); g(f"s_add_u32 s3, s3, s{sT}"); g("s_lshl_b32 s3, s3, 6"); g(f"s_add_u32 s3, s3, {DBG}")
        for i in range(8): g(f"v_mov_b32 v{v+i}, s{ST+2*i}")
        for i in range(3): g(f"v_mov_b32 v{v+8+i}, s{12+i}")
        g(f"v_mov_b32 v{v+11}, s{sTO}")
        g("s_mov_b64 exec, 1")
        for i in range(3): g(f"buffer_store_dwordx4 {q4('v',v+4*i)}, off, {WS}, s3 offset:{16*i}")
        g("s_mov_b64 exec, -1")

def w_voff(g, vD, vT, stride, qk=False):
    g(f"v_lshrrev_b32 v{vD}, 4, v0"); g(f"v_and_b32 v{vT}, 1, v{vD}"); g(f"v_lshlrev_b32 v{vT}, 1, v{vT}"); g(f"v_xor_b32 v{vT}, v{vT}, v0")
    g(f"s_lshr_b32 s3, s{sW}, 1" if qk else f"s_and_b32 s3, s{sW}, 1"); g("s_lshl_b32 s3, s3, 3"); g(f"v_xor_b32 v{vT}, s3, v{vT}"); g(f"v_and_b32 v{vT}, 15, v{vT}")
    g(f"s_mov_b32 s3, {stride}"); g(f"v_mul_lo_u32 v{vD}, v{vD}, s3"); g(f"v_lshl_add_u32 v{vD}, v{vT}, 4, v{vD}")
    g(f"v_xor_b32 v{vD+1}, 64, v{vD}")
def w_dma(g, vOff, sOff, sL, buf, stride, sh, adv):
    for m in range(8):
        g(f"s_add_u32 m0, s{sL}, {buf*32768+m*1024}"); g("s_nop 0")
        g(f"buffer_load_dwordx4 v{vOff+((m>>sh)&1)}, {WT}, s{sOff} offen lds")
        g(f"s_add_u32 s{sOff}, s{sOff}, {4*stride+(adv if m==7 else 0)}")
def w_raddr(g, vD, vT, wo, qk=False):
    g(f"v_bfe_u32 v{vT}, v0, 2, 1"); g(f"v_lshlrev_b32 v{vD}, 8, v{vT}"); g(f"v_lshl_add_u32 v{vD}, v{vT}, 5, v{vD}")
    g(f"v_bfe_u32 v{vT}, v0, 4, 1"); g(f"v_lshl_add_u32 v{vD}, v{vT}, {12 if wo else 11}, v{vD}"); g(f"v_lshl_add_u32 v{vD}, v{vT}, 6, v{vD}")
    g(f"v_bfe_u32 v{vT}, v0, 5, 1"); g(f"v_lshl_add_u32 v{vD}, v{vT}, {10 if wo else 12}, v{vD}")
    g(f"v_and_b32 v{vT}, 3, v0"); g(f"v_lshl_add_u32 v{vD}, v{vT}, 3, v{vD}")
    g(f"v_bfe_u32 v{vT}, v0, 3, 1"); g(f"v_mul_u32_u24 v{vT}, {16384+128 if qk else 32}, v{vT}"); g(f"v_xor_b32 v{vD}, v{vD}, v{vT}")

def proj(g, acc, RG, W, vAr, vIdx, fill, NR0, first=()):
    seq=[]; fill=list(fill)
    def rd(f): seq.append(f); g(f"ds_read_b128 {q4('v',RG[f%len(RG)])}, v{vAr} offset:{1024*(f>>1)+32*(f&1)}")
    for f in range(NR0): rd(f)
    for x in first: g(x)
    nxt=NR0
    for n in range(40):
        f=n>>1
        if n%2==0: g(f"s_waitcnt lgkmcnt({len(seq)-1-seq.index(f)})")
        g(f"{SM} {q4('v',acc+4*(n&1))}, {q4('v',RG[f%len(RG)])}, {W(n)}, v{vIdx}")
        if nxt<20 and nxt-f<6 and (nxt-f<5 or n%2): rd(nxt); nxt+=1
        elif fill and fill[0][0]<=n: seq.append(None); g(fill.pop(0)[1])
    assert not fill

def sel_regs(g, vS, vT, vU, tmode):
    g(f"v_and_b32 v{vT}, 7, v0")
    if tmode:
        g(f"v_lshrrev_b32 v{vU}, 1, v0"); g(f"v_xor_b32 v{vU}, v{vU}, v0"); g(f"v_and_b32 v{vU}, 8, v{vU}"); g(f"v_or_b32 v{vT}, v{vT}, v{vU}")
    for r in range(4):
        g(f"v_mov_b32 v{vS+r}, 0")
        g(f"v_cmp_eq_u32 vcc, {2*r}, v{vT}"); g(f"v_mov_b32 v{vU}, 0x3f80"); g("s_nop 1")
        g(f"v_cndmask_b32 v{vS+r}, v{vS+r}, v{vU}, vcc")
        g(f"v_cmp_eq_u32 vcc, {2*r+1}, v{vT}"); g(f"v_mov_b32 v{vU}, 0x3f800000"); g("s_nop 1")
        g(f"v_cndmask_b32 v{vS+r}, v{vS+r}, v{vU}, vcc")

def xm_setup(g, vXa,vXb,vLa,vLb,vIdx,vL16,vT,sA,sB):
    g(f"v_lshrrev_b32 v{vXa}, 5, v0"); g(f"v_lshlrev_b32 v{vXa}, 15, v{vXa}")
    g(f"v_bfe_u32 v{vT}, v0, 2, 2"); g(f"v_lshl_add_u32 v{vXa}, v{vT}, 8, v{vXa}")
    g(f"v_bfe_u32 v{vT}, v0, 4, 1"); g(f"v_lshl_add_u32 v{vXa}, v{vT}, 6, v{vXa}")
    g(f"v_and_b32 v{vT}, 3, v0"); g(f"v_lshl_add_u32 v{vXa}, v{vT}, 4, v{vXa}")
    g(f"s_lshr_b32 s{sA}, s{sW}, 1"); g(f"s_and_b32 s{sB}, s{sW}, 1")
    g(f"s_lshl_b32 s3, s{sA}, 14"); g(f"v_add_u32 v{vXa}, s3, v{vXa}")
    g(f"s_lshl_b32 s3, s{sB}, 7"); g("s_add_u32 s3, s3, 2048"); g(f"v_add_u32 v{vXb}, s3, v{vXa}")
    g(f"s_mul_i32 s3, s{sB}, 3072"); g(f"v_add_u32 v{vXa}, s3, v{vXa}")
    g(f"s_mul_i32 s{sA}, s{sA}, 5120"); g(f"s_add_u32 s3, s3, s{sA}"); g(f"v_add_u32 v{vLa}, s3, v{vL16}")
    g(f"s_lshl_b32 s3, s{sB}, 3"); g(f"s_add_u32 s3, s3, s{sA}"); g("s_add_u32 s3, s3, 2048"); g(f"v_add_u32 v{vLb}, s3, v{vL16}")
    g(f"v_and_b32 v{vT}, 2, v0"); g(f"v_cmp_eq_u32 vcc, 0, v{vT}"); g(f"v_mov_b32 v{vIdx}, 0xeeee"); g(f"v_mov_b32 v{vT}, 0x4444"); g("s_nop 0")
    g(f"v_cndmask_b32 v{vIdx}, v{vIdx}, v{vT}, vcc")
def xm_bases(g, sXM, opt):
    for s_ in range(4):
        g(f"s_xor_b32 s3, s{sPAR}, {(((XM>>21)+s_)^(PROBE>>21)^opt.get('far',0))&1}"); g("s_and_b32 s3, s3, 1"); g("s_lshl_b32 s3, s3, 13")
        g(f"s_add_u32 s{sXM+s_}, s3, {XM+(s_<<21)}")
        g(f"s_and_b32 s3, s{sX}, 2"); g("s_lshl_b32 s3, s3, 15"); g(f"s_add_u32 s{sXM+s_}, s{sXM+s_}, s3")
def xm_phase(c, sXs, vXa,vXb,vLa,vLb,vSelT,vTmp,R,after=()):
    g=c.g
    ld=[f"buffer_load_dwordx4 {q4('v',R+4*i)}, v{vXa if i<4 else vXb}, {WS}, s{sXs} offen offset:{[0,128,1024,1152,0][i]} sc1" for i in range(5)]
    def out(i):
        d=R+20+4*i
        return [f"v_cvt_pk_bf16_f32 v{d}, v{d}, v{d+1}", f"v_cvt_pk_bf16_f32 v{d+1}, v{d+2}, v{d+3}",
                f"ds_write_b64 v{vLa if i<4 else vLb}, {q2('v',d)} offset:{[0,8,1024,1032,0][i]}"]
    c.stamp("xld")
    for x in ld: g(x)
    for x in after: g(x)
    lp=g.uniq("xm"); g.label(lp)
    for i in range(5):
        g(f"s_waitcnt vmcnt({4-i+sum('buffer_' in x for x in after)})")
        if i==0: c.stamp("x1")
        g(f"{MF} {q4('v',R+20+4*i)}, {q4('v',vSelT)}, {q4('v',R+4*i)}, 0")
        if i==2: g(f"v_max3_u32 v{vTmp}, v{R}, v{R+4}, v{R+8}")
        if i==4: g(f"v_max3_u32 v{vTmp}, v{vTmp}, v{R+12}, v{R+16}"); g(f"v_cmp_eq_u32 vcc, -1, v{vTmp}")
        if i>=2:
            for x in out(i-2): g(x)
    c.retry(lp, ["s_nop 7"]+ld+(["s_waitcnt vmcnt(0)"] if after else []))
    for x in out(3): g(x)
    g("s_nop 0")
    for x in out(4): g(x)
    c.stamp("xm")
    g("s_waitcnt vmcnt(0) lgkmcnt(0)" if any(' lds' in x for x in after) else "s_waitcnt lgkmcnt(0)")
    g("s_barrier")

def startup_checks(g, opt, v, sA, sB):
    import pre, bulk
    if opt.get("alone"):
        g(f"s_mov_b32 s{sPAR}, {opt['alone']-1}"); g(f"s_mov_b32 s{bulk.sSlow}, {1 if opt.get('force_slow') else 0}")
        return
    pre.wait_bar(g,*pre.BA,v,par=True)
    bulk.group_local(g,v)

def chain(g, opt):
    import bulk
    c=Ctx(g,opt,opt.get("pts",["xld","xm","qd","sc","vok","ostg","wo","red"])); stamp,dly,retry,diag=c.stamp,c.dly,c.retry,c.diag
    N="ch"
    sH,sT,sKV,sRed,sXM,sEX,sEV,sPCw,sPCr,sA,sB,sU,sC1=52,53,54,55,56,60,64,68,74,76,77,78,79
    sKVc,sGo,mO,mX,sFl=16,17,28,30,32
    vL16,vXa,vXb,vLa,vLb,vQKw,vTr,vTrw,vOa,vPCw,vXw,vL16b,vGo,vTmp,vWl,vVS,vIdx,vZ2=1,2,3,4,5,6,7,8,9,10,11,12,13,14,15,16,17,18
    vSelR,vSelT,vOne,vSent,vPm=20,24,28,32,36
    R1,R2,Rw,QV,SW=40,88,128,192,224
    vAc=88; vS=88; vP=100; vVX=104; vO=112; vLs=120; vVM=124; t0,t1=126,127; vF=R1+32; vOut=116; vOf=R1+20; vAr=0
    L_KV,L_QK,L_O,L_W=10240,26624,30720,32768
    def qk(n): return q8('v',SW+8*n) if n<4 else q8('v',QV+8*(n-4)) if n<8 else q8('a',8*(n-8))
    WREG=[SW,SW+8,SW+16,SW+24,R1+40]+[Rw+8*i for i in range(8)]+[88,96,SW,SW+8,SW+16,SW+24,R1+40]
    WLDS=[4,5,6,7,8]+[None]*8+list(range(9,16))
    WTMP=[(32+8*(WLDS[n]-4)) if WLDS[n] is not None else WREG[n] for n in range(20)]
    def wrd(reg,m): return [f"ds_read_b128 {q4('v',reg+4*e)}, v{vWl} offset:{m*2048+e*1024}" for e in range(2)]
    g.label(f"L_{N}")
    if diag: g.raw("; PTS "+" ".join(c.pts))
    g(f"s_and_b32 s3, s{sX}, 1"); g("s_lshl_b32 s3, s3, 4"); g(f"s_add_u32 s{sH}, s3, s{sTK}")
    vD,vA,vB=2,4,6
    srd(g, 8, 20, 640*8192)
    g(f"s_cmp_lt_u32 s{sW}, 2"); g("s_cselect_b32 s8, s20, s22"); g("s_cselect_b32 s9, s21, s23"); g("s_and_b32 s9, s9, 0xffff")
    w_voff(g,vD,vTmp,8192,True)
    g(f"s_and_b32 s3, s{sW}, 1"); g(f"s_mul_i32 s{sA}, s3, {32*8192}"); g(f"s_lshl_b32 s3, s{sH}, 8"); g(f"s_add_u32 s{sA}, s{sA}, s3")
    g(f"s_lshl_b32 s{sU}, s{sW}, 13")
    for cch in range(5): w_dma(g,vD,sA,sU,cch,8192,1,32*8192)
    w_raddr(g,vA,vTmp,False,True)
    g(f"s_lshl_b32 s3, s{sW}, 6"); g(f"v_xor_b32 v{vA}, s3, v{vA}"); g(f"v_xor_b32 v{vA+1}, 32, v{vA}")
    for cch in range(10):
        g("s_waitcnt vmcnt(32)"); g("s_barrier")
        g(f"v_add_u32 v{vB}, {(cch%5)*32768}, v{vA}"); g(f"v_add_u32 v{vB+1}, {(cch%5)*32768}, v{vA+1}")
        for t in range(4):
            k,r=qk(4*cch+t)[0],int(qk(4*cch+t)[2:].split(":")[0])
            for rho in range(4): g(f"ds_read_b64_tr_b16 {q2(k,r+2*rho)}, v{vB+(t&1)} offset:{(t>>1)*8192+512*rho}")
        g("s_waitcnt lgkmcnt(0)"); g("s_barrier")
        if cch==5:
            srd(g, 8, 26, 4096*1280)
            w_voff(g,vD,vTmp,1280)
            g(f"s_lshl_b32 s3, s{sH}, 2"); g(f"s_add_u32 s3, s3, s{sW}"); g(f"s_mul_i32 s{sA}, s3, {32*1280}")
        if cch<5: w_dma(g,vD,sA,sU,cch,8192,1,32*8192)
        else: w_dma(g,vD,sA,sU,cch-5,1280,2,256-32*1280+(1<<32))
    tl(g,opt.get("trace"),DBG3+16384,101,1,vTmp)
    w_raddr(g,vA,vTmp,True)
    startup_checks(g,opt,8,sA,sB)
    g("s_waitcnt vmcnt(0)"); g("s_barrier")
    WPF=[(2*(q>>3)+(q&1),(q>>1)&3) if q<16 else (4,q-16) for q in range(20)]
    for P in range(5):
        g(f"s_mul_i32 s{sA}, s{sW}, 10"); g(f"s_and_b32 s3, s{sW}, 1")
        g(f"s_mul_i32 s3, s3, {2 if P<4 else -8}"); g(f"s_add_u32 s{sA}, s{sA}, s3"); g(f"s_add_u32 s{sA}, s{sA}, {2*P}")
        g(f"s_and_b32 s3, s{sA}, 7"); g("s_lshl_b32 s3, s3, 5"); g(f"v_xor_b32 v{vB}, s3, v{vA}")
        g(f"s_lshr_b32 s3, s{sA}, 3"); g("s_lshl_b32 s3, s3, 15"); g(f"v_add_u32 v{vB}, s3, v{vB}"); g(f"v_xor_b32 v{vB+1}, 128, v{vB}")
        for f in range(4):
            for rho in range(4): g(f"ds_read_b64_tr_b16 {q2('v',WTMP[WPF.index((P,f))]+2*rho)}, v{vB+(f&1)} offset:{(32*f+8*(rho>>1)+2*(rho&1))*256}")
    g(f"v_lshlrev_b32 v{vL16}, 4, v0")
    g(f"s_lshl_b32 s3, s{sW}, 15"); g(f"s_add_u32 s3, s3, {L_W}"); g(f"v_add_u32 v{vWl}, s3, v{vL16}")
    g("s_waitcnt lgkmcnt(0)"); g("s_barrier")
    for m in range(16):
        r=SW+8*m if m<4 else 32+8*(m-4)
        for e in range(2): g(f"ds_write_b128 v{vWl}, {q4('v',r+4*e)} offset:{m*2048+e*1024}")
    xm_bases(g,sXM,opt)
    xm_setup(g,vXa,vXb,vLa,vLb,vIdx,vL16,vTmp,sA,sB)
    g(f"s_lshl_b32 s{sU}, s{sX}, 4"); g(f"s_add_u32 s{sU}, s{sU}, s{sTK}")
    g(f"s_lshl_b32 s{sFl}, s{sU}, 8"); g(f"s_add_u32 s{sFl}, s{sFl}, {FLW}")
    g(f"s_mul_i32 s{sA}, s{sU}, {4*EXS}"); g(f"s_lshl_b32 s3, s{sW}, 10"); g(f"s_add_u32 s{sB}, s{sA}, s3")
    for s_ in range(4): g(f"s_add_u32 s{sEX+s_}, s{sB}, {EX+s_*EXS}")
    g(f"s_lshr_b32 s3, s{sW}, 1"); g("s_lshl_b32 s3, s3, 10"); g(f"s_add_u32 s{sA}, s{sA}, s3"); g(f"s_and_b32 s3, s{sW}, 1"); g("s_lshl_b32 s3, s3, 3"); g(f"s_add_u32 s{sA}, s{sA}, s3")
    for s_ in range(4): g(f"s_add_u32 s{sEV+s_}, s{sA}, {EX+s_*EXS+4096}")
    g(f"s_mul_i32 s{sA}, s{sX}, {2*PCX}"); g(f"s_lshl_b32 s3, s{sTK}, 8"); g(f"s_add_u32 s{sB}, s{sA}, s3")
    g(f"s_lshr_b32 s3, s{sW}, 1"); g(f"s_mul_i32 s3, s3, {5*16384}"); g(f"s_add_u32 s{sB}, s{sB}, s3")
    for s_ in range(2):
        g(f"s_and_b32 s3, s{sW}, 1"); g(f"s_mul_i32 s3, s3, {3*16384}"); g(f"s_add_u32 s3, s3, s{sB}")
        g(f"s_add_u32 s{sPCw+3*s_}, s3, {PC+s_*PCX}"); g(f"s_add_u32 s{sPCw+3*s_+1}, s3, {PC+s_*PCX+16384}")
        g(f"s_and_b32 s3, s{sW}, 1"); g("s_lshl_b32 s3, s3, 3"); g(f"s_add_u32 s3, s3, s{sB}"); g(f"s_add_u32 s{sPCw+3*s_+2}, s3, {PC+s_*PCX+2*16384}")
    g(f"s_lshl_b32 s{sU}, s{sTK}, 1"); g(f"s_and_b32 s3, s{sW}, 1"); g(f"s_add_u32 s{sU}, s{sU}, s3")
    g(f"s_lshr_b32 s{sRed}, s{sW}, 1")
    g(f"s_and_b32 s{sB}, s{sTK}, 1"); g(f"s_lshl_b32 s{sB}, s{sB}, 2"); g(f"s_add_u32 s{sB}, s{sB}, s{sW}")
    g(f"s_add_u32 s3, s{sFl}, 128"); g(f"s_cmp_eq_u32 s{sB}, 2"); g(f"s_cselect_b32 s{sGo}, s3, {OOB}")
    g(f"s_lshr_b32 s3, s{sTK}, 1"); g("s_add_u32 s3, s3, 32")
    g(f"s_cmp_eq_u32 s{sB}, 1"); g(f"s_cselect_b32 s{sU}, s3, s{sU}"); g(f"s_cselect_b32 s{sRed}, 1, s{sRed}")
    g(f"s_lshl_b32 s3, s{sU}, 12"); g(f"s_add_u32 s3, s3, s{sA}")
    for s_ in range(2): g(f"s_add_u32 s{sPCr+s_}, s3, {PC+s_*PCX}")
    g(f"v_add_u32 v{vL16b}, 4096, v{vL16}")
    g(f"v_lshrrev_b32 v{vTmp}, 4, v0"); g(f"v_and_b32 v{vPCw}, 15, v0")
    g(f"v_lshlrev_b32 v{vQKw}, 5, v{vPCw}"); g(f"v_lshl_add_u32 v{vQKw}, v{vTmp}, 3, v{vQKw}"); g(f"s_lshl_b32 s3, s{sW}, 10"); g(f"v_add_u32 v{vQKw}, s3, v{vQKw}")
    g(f"v_lshlrev_b32 v{vPCw}, 4, v{vPCw}"); g(f"v_lshl_add_u32 v{vPCw}, v{vTmp}, 12, v{vPCw}")
    g(f"v_lshlrev_b32 v{vTr}, 3, v0"); g(f"v_add_u32 v{vTrw}, s3, v{vTr}")
    g(f"s_lshl_b32 s3, s{sW}, 11"); g(f"v_add_u32 v{vVS}, s3, v{vL16}")
    g(f"s_lshr_b32 s3, s{sW}, 1"); g("s_lshl_b32 s3, s3, 10"); g(f"s_and_b32 s{sB}, s{sW}, 1"); g(f"s_lshl_b32 s{sB}, s{sB}, 5"); g(f"s_add_u32 s3, s3, s{sB}"); g(f"v_add_u32 v{vOa}, s3, v{vL16}")
    g(f"v_lshlrev_b32 v{vXw}, 6, v{vTmp}"); g(f"v_bfe_u32 v{vGo}, v0, 2, 1"); g(f"v_lshl_add_u32 v{vXw}, v{vGo}, 5, v{vXw}")
    g(f"v_and_b32 v{vZ2}, 1, v0"); g(f"v_lshl_add_u32 v{vXw}, v{vZ2}, 4, v{vXw}")
    g(f"s_lshl_b32 s3, s{sU}, 8"); g(f"s_cmp_ge_u32 s{sU}, 20"); g(f"s_cselect_b32 s{sB}, {16384-5120}, 0"); g(f"s_add_u32 s3, s3, s{sB}")
    g(f"s_and_b32 s{sB}, s{sX}, 1"); g(f"s_lshl_b32 s{sB}, s{sB}, 15"); g(f"s_add_u32 s3, s3, s{sB}")
    g(f"s_cmp_eq_u32 s{sRed}, 0"); g(f"s_cselect_b32 s3, {OOB}, s3"); g(f"v_add_u32 v{vXw}, s3, v{vXw}")
    srd(g, 8, 18, 8*1280)
    g(f"v_mul_u32_u24 v{vZ2}, 1280, v{vZ2}"); g(f"v_lshl_add_u32 v{vZ2}, v{vGo}, 6, v{vZ2}"); g(f"v_lshl_add_u32 v{vZ2}, v{vTmp}, 3, v{vZ2}")
    g(f"s_and_b32 s3, s{sU}, 3"); g("s_mul_i32 s3, s3, 2560"); g(f"s_lshr_b32 s{sA}, s{sU}, 2"); g(f"s_lshl_b32 s{sA}, s{sA}, 7"); g(f"s_add_u32 s3, s3, s{sA}"); g(f"s_add_u32 s3, s3, s{sB}")
    g(f"v_add_u32 v{vZ2}, s3, v{vZ2}")
    g(f"buffer_load_dwordx2 {q2('v',vSelR)}, v{vZ2}, {WT}, 0 offen"); g(f"buffer_load_dwordx2 {q2('v',vSelR+2)}, v{vZ2}, {WT}, 0 offen offset:32")
    g(f"buffer_load_dword v{vTmp}, off, {WS}, s{sFl} sc1")
    g(f"s_mov_b32 s{mO}, 0x33333333"); g(f"s_mov_b32 s{mO+1}, 0x33333333"); g(f"s_mov_b32 s{mX}, 0x00330033"); g(f"s_mov_b32 s{mX+1}, 0x00330033")
    g(f"s_mov_b32 s{sC1}, {hex(f32bits(128**-0.5*math.log2(math.e)))}")
    bulk.hblk(g,sKV,sH); g(f"s_lshr_b32 s3, s{sX}, 1"); g(f"s_mul_i32 s3, s3, {LST}"); g(f"s_add_u32 s{sKV}, s{sKV}, s3"); g(f"s_add_u32 s{sKV}, s{sKV}, {KQ}")
    g("s_waitcnt vmcnt(0) lgkmcnt(0)")
    g(f"s_mov_b64 exec, s[{mX}:{mX+1}]")
    g(f"buffer_store_dwordx4 {q4('v',vSelR)}, v{vXw}, {WS}, s{sXM} offen sc1")
    g("s_mov_b64 exec, -1")
    for i in range(4): g(f"v_mov_b32 v{vSent+i}, -1"); g(f"v_mov_b32 v{vOne+i}, 0x3f803f80"); g(f"v_mov_b32 v{vPm+i}, 0")
    for i in range(16): g(f"v_mov_b32 v{vAc+i}, 0")
    sel_regs(g,vSelT,vZ2,vGo,True)
    g("s_waitcnt vmcnt(0)")
    sel_regs(g,vSelR,vZ2,vGo,False)
    g(f"v_mov_b32 v{vZ2}, 0"); g(f"v_mov_b32 v{vZ2+1}, 0"); g(f"v_and_b32 v{vAr}, -33, v{vL16}"); g(f"v_mov_b32 v{vGo}, 1")
    tl(g,opt.get("trace"),DBG3+16384,101,2,R1)
    g(f"s_mov_b32 s{sT}, -1"); g(f"s_mov_b32 s{sTO}, 0")
    def kvfetch(gap, n1=16):
        lf=g.uniq("fl"); lfd=g.uniq("fld")
        g(f"s_add_u32 s{sA}, s{sT}, 1")
        g.label(lf)
        g(f"v_cmp_ge_u32 vcc, s{sA}, v{vTmp}")
        g(f"s_cbranch_vccz {lfd}")
        g(f"buffer_load_dword v{vTmp}, off, {WS}, s{sFl} sc1")
        g("s_waitcnt vmcnt(0)")
        timeout(g, lf)
        g.label(lfd)
        bulk.blk(g,sKVc,sA,sKV,0)
        rest=[]
        for i in range(16):
            e=g if i<n1 else rest.append
            if i==8: e(f"s_add_u32 s{sKVc}, s{sKVc}, {VO-KQ}")
            if i%4==0: e(f"s_mov_b32 m0, {L_KV+(i//4)*4096}"); e("s_nop 0")
            e(f"buffer_load_dwordx4 v{vL16 if (i//4)%2==0 else vL16b}, {WS}, s{sKVc} offen offset:{1024*(i%4)} sc1 lds")
            if gap: e(f"s_nop {gap-1}")
        return rest
    l=g.uniq("k0"); g(f"s_cmp_lg_u32 s{sW}, 0"); g(f"s_cbranch_scc1 {l}")
    kvfetch(0)
    g.label(l)
    KVS=opt.get("kvs",1)
    if KVS:
        g(f"s_and_b32 s3, s{sW}, 1"); g("s_lshl_b32 s3, s3, 12"); g(f"s_add_u32 s{sKV}, s{sKV}, s3")
        g(f"s_lshr_b32 s3, s{sW}, 1"); g(f"s_mul_i32 s3, s3, {VO-KQ}"); g(f"s_add_u32 s{sKV}, s{sKV}, s3")
        g(f"s_lshl_b32 s3, s{sW}, 12"); g(f"s_add_u32 m0, s3, {L_KV}")
    fll=f"buffer_load_dword v{vTmp}, off, {WS}, s{sFl} sc1"
    tl(g,opt.get("trace"),DBG3+16384,101,3,R1)
    g(f"s_mov_b32 s{sT}, 0")
    g(f"s_cmp_lg_u32 s{bulk.sSlow}, 0"); g(f"s_cbranch_scc1 L_{N}_loops")
    for LS,LN in (("","f"),(" sc1","s")):
        g.raw(".p2align 8")
        g.label(f"L_{N}_loop{LN}")
        for U in range(4):
            s2=U&1; ph=1-((U>>1)&1)
            if U: g.raw(".p2align 3")
            def head(U,after=()):
                g(f"s_mov_b32 s{sTO}, 0")
                if opt.get("ldiag") and U==0:
                    for tv,sr_ in ((8,84),(60,88)):
                        l=g.uniq("lt"); g(f"s_cmp_lg_u32 s{sT}, {tv}"); g(f"s_cbranch_scc1 {l}")
                        g(f"s_memrealtime s[{sr_}:{sr_+1}]"); g(f"s_memtime s[{sr_+2}:{sr_+3}]"); g("s_waitcnt lgkmcnt(0)"); g.label(l)
                xm_phase(c,sXM+U,vXa,vXb,vLa,vLb,vSelT,vTmp,R1,after)
            head(U)
            g.label(f"L_{N}_b1{LN}{U}")
            if diag: g(f"s_mov_b32 s12, s{sTO}")
            stamp("b1")
            fill=[(0,f"ds_read_b128 {q4('v',R1+4*i)}, v{vL16} offset:{L_KV+1024*i}") for i in range(8)]
            fill+=[(0,f"ds_read_b128 {q4('v',vVX+4*i)}, v{vVS} offset:{L_KV+8192+1024*i}") for i in range(2)]
            fill+=[(4,x) for n in range(4) for x in wrd(WREG[n],WLDS[n])]
            rs=[f"s_mov_b64 exec, s[{mX}:{mX+1}]", f"buffer_store_dwordx4 {q4('v',vSent)}, v{vXw}, {WS}, s{sXM+(U+3)%4} offen sc1", "s_mov_b64 exec, -1",
                f"buffer_store_dwordx4 {q4('v',vSent)}, v{vL16}, {WS}, s{sEX+(U+2)%4} offen{LS}"]
            RS=opt.get("rs",1)
            proj(g,vAc,[72,76,80,84,96,100,112,116],qk,vAr,vIdx,fill,opt.get("nr0",3),[] if RS else rs)
            stamp("qd")
            cv=lambda o,d: f"v_cvt_pk_bf16_f32 v{o}, v{d}, v{d+1}"
            g("s_nop 2"); g(cv(vLs,vAc)); g(cv(vLs+1,vAc+2))
            g(f"ds_write_b64 v{vQKw}, {q2('v',vLs)} offset:{L_QK}")
            g("s_nop 1"); g(cv(vLs+2,vAc+4)); g(cv(vLs+3,vAc+6))
            g(f"ds_write_b64 v{vQKw}, {q2('v',vLs+2)} offset:{L_QK+512}")
            vml=f"buffer_load_dwordx2 {q2('v',vVM)}, v{vL16}, {WS}, s{sEV+U} offen sc1"
            g("s_waitcnt lgkmcnt(0)"); g("s_barrier")
            for j in range(4):
                for e in range(2): g(f"ds_read_b64_tr_b16 {q2('v',vF+4*j+2*e)}, v{vTr} offset:{L_QK+1024*j+512*e}")
            for e in range(2): g(f"ds_read_b64_tr_b16 {q2('v',vO+2*e)}, v{vTrw} offset:{L_QK+512*e}")
            nf=0
            stamp("b2")
            VAT=opt.get("v_at",6)
            for j in range(4):
                g(f"s_waitcnt lgkmcnt({8-2*j+nf})")
                for i,(d,a) in enumerate(((vS+4,R1+4*j),(vS+8,R1+16+4*j),(vS,vF+4*j))):
                    g(f"{MF} {q4('v',d)}, {q4('v',a)}, {q4('v',vF+4*j)}, {'0' if j==0 else q4('v',d)}")
                    if 3*j+i==VAT: g(vml)
                if j==2:
                    g(f"s_waitcnt lgkmcnt({nf})")
                    g(f"buffer_store_dwordx4 {q4('v',vO)}, v{vL16}, {WS}, s{sEX+U} offen{LS}")
            assert VAT<12 or not KVS
            if U==3:
                g(f"s_cmp_eq_u32 s{sT}, 63"); g(f"s_cbranch_scc1 L_{N}_last")
            stamp("sc")
            def vat(k):
                if VAT==k: g(vml)
            g(f"v_mfma_f32_32x32x8_bf16 v[{R1}:{R1+15}], {q2('v',vZ2)}, {q2('v',vZ2)}, 0")
            g(f"v_max3_f32 v{t0}, v{vS+4}, v{vS+5}, v{vS+6}")
            vat(12)
            for x in wrd(WREG[4],WLDS[4]): g(x)
            g(f"v_max3_f32 v{t0}, v{t0}, v{vS+7}, v{vS+8}")
            g(f"v_max3_f32 v{t0}, v{t0}, v{vS+9}, v{vS+10}")
            g(f"v_max3_f32 v{t0}, v{t0}, v{vS+11}, v{vS+2}")
            g(f"v_max_f32 v{t0}, v{t0}, v{vS+3}")
            g(f"v_mov_b32 v{t1}, v{t0}"); g(f"v_mov_b64 {q2('v',R1+16)}, 0"); g(f"v_mov_b64 {q2('v',R1+18)}, 0")
            g(f"v_permlane16_swap_b32 v{t0}, v{t1}"); g(f"v_max_f32 v{t0}, v{t0}, v{t1}")
            g(f"v_mov_b32 v{t1}, v{t0}"); g("s_nop 1")
            g(f"v_permlane32_swap_b32 v{t0}, v{t1}"); g(f"v_max_f32 v{t0}, v{t0}, v{t1}")
            vat(13)
            if KVS: g(fll); g(f"s_add_u32 s{sA}, s{sT}, 1"); bulk.blk(g,sKVc,sA,sKV,0)
            g(f"v_mul_f32 v{t0}, s{sC1}, v{t0}")
            for i in range(4,12): g(f"v_fma_f32 v{vS+i}, v{vS+i}, s{sC1}, -v{t0}")
            vat(14)
            for i in range(4,12): g(f"v_exp_f32 v{vS+i}, v{vS+i}")
            g(f"v_fma_f32 v{vS+2}, v{vS+2}, s{sC1}, -v{t0}")
            for i in range(4): g(f"v_cvt_pk_bf16_f32 v{vP+i}, v{vS+4+2*i}, v{vS+5+2*i}")
            g(f"v_fma_f32 v{vS+3}, v{vS+3}, s{sC1}, -v{t0}")
            g(f"v_exp_f32 v{vS+2}, v{vS+2}")
            Ps=q4('v',vP)
            g(f"{MF} {q4('v',vLs)}, {q4('v',vOne)}, {Ps}, 0")
            g(f"v_exp_f32 v{vS+3}, v{vS+3}")
            g(f"{MF} {q4('v',vO)}, {q4('v',vVX)}, {Ps}, 0")
            g(f"v_cvt_pk_bf16_f32 v{vPm}, v{vS+2}, v{vS+3}"); g(f"v_cvt_pk_bf16_f32 v{vPm+3}, v{vS+2}, v{vS+3}")
            g(f"{MF} {q4('v',vO+4)}, {q4('v',vVX+4)}, {Ps}, 0")
            g(f"s_waitcnt vmcnt({1 if KVS else 0})")
            g(f"{MH} {q4('v',vLs)}, {q2('v',vOne)}, {q2('v',vPm)}, {q4('v',vLs)}")
            lp=g.uniq("pv"); g.label(lp)
            g(f"v_cmp_eq_u32 vcc, -1, v{vVM}")
            retry(lp,[vml,"s_waitcnt vmcnt(0)"])
            if diag: g(f"s_mov_b32 s13, s{sTO}")
            stamp("vok")
            g(f"{MH} {q4('v',vO)}, {q2('v',vVM)}, {q2('v',vPm)}, {q4('v',vO)}")
            g(f"{MH} {q4('v',vO+4)}, {q2('v',vVM)}, {q2('v',vPm+2)}, {q4('v',vO+4)}")
            g(f"v_rcp_f32 v{vLs}, v{vLs}")
            for x in wrd(WREG[13],WLDS[13])+wrd(WREG[14],WLDS[14]): g(x)
            g(f"s_mov_b64 exec, s[{mO}:{mO+1}]")
            for i in range(2):
                g(f"v_pk_mul_f32 {q2('v',vO+4*i)}, {q2('v',vO+4*i)}, {q2('v',vLs)} op_sel_hi:[1,0]")
                g(f"v_pk_mul_f32 {q2('v',vO+4*i+2)}, {q2('v',vO+4*i+2)}, {q2('v',vLs)} op_sel_hi:[1,0]")
                g(f"v_cvt_pk_bf16_f32 v{vO+2*i}, v{vO+4*i}, v{vO+4*i+1}")
                g(f"v_cvt_pk_bf16_f32 v{vO+2*i+1}, v{vO+4*i+2}, v{vO+4*i+3}")
            g(f"ds_write_b128 v{vOa}, {q4('v',vO)} offset:{L_O}")
            g("s_mov_b64 exec, -1")
            stamp("ow")
            KQ0=opt.get("kv_q0",-1); KSP=opt.get("kv_sp",2)
            def kvchk():
                g("s_waitcnt vmcnt(0)")
                lp=g.uniq("kf"); g.label(lp)
                g(f"v_cmp_ge_u32 vcc, s{sA}, v{vTmp}")
                retry(lp,["s_sleep 1",fll,"s_waitcnt vmcnt(0)"])
            kvl={KQ0+1+KSP*i: f"buffer_load_dwordx4 v{vL16}, {WS}, s{sKVc} offen offset:{1024*i} sc1 lds" for i in range(4)} if KVS else {}
            if KVS and KQ0<0: kvchk()
            g("s_waitcnt lgkmcnt(0)"); g("s_barrier")
            for f in range(4): g(f"ds_read_b128 {q4('v',vOf+4*f)}, v{vAr} offset:{L_O+1024*(f>>1)+32*(f&1)}")
            stamp("ostg")
            tag=(lambda r: f"v_or_b32 v{r}, 1, v{r}") if ph else (lambda r: f"v_and_b32 v{r}, -2, v{r}")
            def wout(P):
                for x in (cv(vOut+2*P,R1+4*P),cv(vOut+2*P+1,R1+4*P+2),tag(vOut+2*P)): g(x)
                if P in (1,3): g(f"buffer_store_dwordx4 {q4('v',vOut+2*P-2)}, v{vPCw}, {WS}, s{sPCw+3*s2+P//2} offen{LS}")
                if P==4: g(f"buffer_store_dwordx2 {q2('v',vOut+8)}, v{vPCw}, {WS}, s{sPCw+3*s2+2} offen{LS}")
            rl=[x for n in range(15,20) for x in wrd(WREG[n],WLDS[n])]
            for q,(P,f) in enumerate(WPF):
                if q<8 and q%2==0: g(f"s_waitcnt lgkmcnt({3-f+q})")
                if q>=15: g(f"s_waitcnt lgkmcnt({2*(19-q)})")
                g(f"{SM} {q4('v',R1+4*P)}, {q4('v',vOf+4*f)}, {q8('v',WREG[q])}, v{vIdx}")
                if q<10: g(rl[q])
                if KVS and q==KQ0: kvchk()
                if q in kvl: g(kvl[q])
                if q in (8,9): wout(q-8)
                if q in (16,17): wout(q-14)
            g("s_nop 7")
            wout(4)
            stamp("wo")
            for n in range(4):
                for x in wrd(SW+8*n,n): g(x)
            for i in range(0,8,2): g(f"v_mov_b64 {q2('v',vAc+i)}, 0")
            lnr=g.uniq("nr"); lj=g.uniq("rj")
            g(f"s_cmp_eq_u32 s{sRed}, 0"); g(f"s_cbranch_scc1 {lnr}")
            dly("dly_pc")
            stamp("pcld")
            lp=g.uniq("pp"); g.label(lp)
            d=R1+16
            for i in range(4): g(f"buffer_load_dwordx4 {q4('v',R1+4*i)}, v{vL16}, {WS}, s{sPCr+s2} offen offset:{1024*i} sc1")
            for i in range(4):
                g(f"s_waitcnt vmcnt({3-i})")
                g(f"{MF} {q4('v',d)}, {q4('v',R1+4*i)}, {q4('v',vSelR)}, {'0' if i==0 else q4('v',d)}")
                if i==0: g(f"{'v_and_b32' if ph else 'v_or_b32'} v{vTmp}, v{R1}, v{R1+2}")
                elif ph: g(f"v_bitop3_b32 v{vTmp}, v{vTmp}, v{R1+4*i}, v{R1+4*i+2} bitop3:0x80")
                else: g(f"v_or3_b32 v{vTmp}, v{vTmp}, v{R1+4*i}, v{R1+4*i+2}")
            g(f"v_and_b32 v{vTmp}, 1, v{vTmp}")
            g(f"v_cmp_ne_u32 vcc, {ph}, v{vTmp}")
            retry(lp)
            if diag: g(f"s_mov_b32 s14, s{sTO}")
            g("s_nop 2")
            g(f"v_cvt_pk_bf16_f32 v{d+4}, v{d}, v{d+1}"); g(f"v_cvt_pk_bf16_f32 v{d+5}, v{d+2}, v{d+3}")
            g("s_nop 0")
            g(f"v_mov_b32_dpp v{d+6}, v{d+4} quad_perm:[2,3,2,3] row_mask:0xf bank_mask:0xf")
            g(f"v_mov_b32_dpp v{d+7}, v{d+5} quad_perm:[2,3,2,3] row_mask:0xf bank_mask:0xf")
            g(f"s_mov_b64 exec, s[{mX}:{mX+1}]")
            g(f"buffer_store_dwordx4 {q4('v',d+4)}, v{vXw}, {WS}, s{sXM+(U+1)%4} offen sc1")
            g("s_mov_b64 exec, 1")
            g(f"buffer_store_dword v{vGo}, off, {WS}, s{sGo}{LS}")
            if RS: g(rs[0]); g(rs[1])
            g("s_mov_b64 exec, -1")
            stamp("red")
            g("s_barrier")
            stamp("bx")
            c.dump(sT,R1+24)
            dly("dly_xm")
            g.label(lj)
            def nonred(lnr=lnr,lj=lj,U=U,LS=LS,LN=LN):
                g.label(lnr)
                if diag: g(f"s_mov_b32 s14, s{sTO}"); stamp("pcld"); stamp("red")
                li=g.uniq("id")
                g(f"s_cmp_lg_u32 s{sW}, 0"); g(f"s_cbranch_scc1 {li}")
                if RS:
                    for i in range(4): g(f"buffer_store_dwordx4 {q4('v',vSent)}, v{vL16}, {WS}, s{sEX+(U+2)%4} offen offset:{1024*i}{LS}")
                if KVS: g(f"s_branch {li}")
                g(f"buffer_load_dword v{vTmp}, off, {WS}, s{sFl} sc1")
                g("s_waitcnt vmcnt(0)")
                g("s_barrier")
                stamp("bx")
                rest=kvfetch(opt.get("kv_gap",0),opt.get("kv_n1",16))
                c.dump(sT,R1+24)
                dly("dly_w0")
                if rest:
                    g(f"v_add_u32 v{vGo}, 1, v{vGo}"); g(f"s_add_u32 s{sT}, s{sT}, 1")
                    head((U+1)%4,rest); g(f"s_branch L_{N}_b1{LN}{(U+1)%4}")
                g(f"s_branch {lj}")
                g.label(li)
                g("s_barrier")
                stamp("bx")
                c.dump(sT,R1+24)
                dly("dly_xm")
                g(f"s_branch {lj}")
            c.cold.append(nonred)
            g(f"v_add_u32 v{vGo}, 1, v{vGo}")
            g(f"s_add_u32 s{sT}, s{sT}, 1")
        g(f"s_branch L_{N}_loop{LN}")
        c.flush()
    g.label(f"L_{N}_last")
    if opt.get("ldiag"):
        g("s_sub_u32 s84, s88, s84"); g("s_sub_u32 s86, s90, s86")
        g(f"v_mov_b32 v{R1}, s84"); g(f"v_mov_b32 v{R1+1}, s88")
        g(f"s_lshl_b32 s3, s101, 3"); g(f"s_add_u32 s3, s3, {DBG3+32768}")
        g("s_mov_b64 exec, 1")
        g(f"buffer_store_dwordx2 {q2('v',R1)}, off, {WS}, s3")
        g("s_mov_b64 exec, -1")
    g("s_endpgm")

def vrole(g, opt):
    import bulk
    c=Ctx(g,opt,opt.get("vpts",["go","xld","xm","b1","vst","sg","ost","kok"])); stamp,dly,retry,diag=c.stamp,c.dly,c.retry,c.diag
    N="vr"
    sH,sT,sIn,sXM,sEX,sA,sB,sU,sSc,sL2e,sFO,sMq,sMk,sKo,sQo,sEv=52,53,54,56,60,76,77,64,65,66,67,68,69,70,71,72
    sFl,sGo,sLd,sOa,sSg,sPg=32,17,16,33,34,35; vNw=36
    vL16,vXa,vXb,vLa,vLb,vL16b,vTmp,vIdx,vZ2,vT2,vSt,vSig,vWf,vQa,vKa,vMw,vMr,vEv,vVa=1,2,3,4,5,6,7,8,9,10,11,12,13,14,15,16,17,18,19
    m1,l1,tx,fa,vAr=20,21,22,28,23
    vSelT,vSent=24,32
    R1,vAc,vS,vB0,vP,vPm,vKM,vVM,vO=40,80,96,108,116,120,124,140,148
    VF=[R1+16+4*i for i in range(6)]+[180,184]
    L_VM,L_B=10240,18432
    wv=lambda n: q8('v',192+8*n) if n<8 else q8('a',8*(n-8))
    g.label(f"L_{N}")
    if diag: g.raw("; VPTS "+" ".join(c.pts))
    g(f"s_and_b32 s3, s{sX}, 1"); g("s_lshl_b32 s3, s3, 3"); g(f"s_add_u32 s{sH}, s3, s{sTK}"); g(f"s_sub_u32 s{sH}, s{sH}, 16"); g(f"s_lshl_b32 s{sH}, s{sH}, 1")
    g(f"s_lshr_b32 s3, s{sX}, 1"); g("s_lshl_b32 s3, s3, 5"); g(f"s_add_u32 s{sGo}, s3, s{sH}"); g(f"s_lshl_b32 s{sGo}, s{sGo}, 8"); g(f"s_add_u32 s{sGo}, s{sGo}, {FLW+128}")
    g(f"s_lshr_b32 s3, s{sW}, 1"); g(f"s_add_u32 s{sH}, s{sH}, s3")
    vD,vA,vB=2,20,24
    srd(g, 8, 24, 640*8192)
    w_voff(g,vD,vTmp,8192)
    g(f"s_and_b32 s3, s{sW}, 1"); g(f"s_mul_i32 s{sA}, s3, {32*8192}"); g(f"s_lshl_b32 s3, s{sH}, 8"); g(f"s_add_u32 s{sA}, s{sA}, s3")
    g(f"s_lshl_b32 s{sU}, s{sW}, 13")
    for cch in range(5): w_dma(g,vD,sA,sU,cch,8192,1,32*8192)
    w_raddr(g,vA,vTmp,False)
    g(f"s_and_b32 s3, s{sW}, 1"); g("s_lshl_b32 s3, s3, 7"); g(f"v_xor_b32 v{vA}, s3, v{vA}")
    g(f"s_lshr_b32 s3, s{sW}, 1"); g("s_lshl_b32 s3, s3, 14"); g(f"v_add_u32 v{vA}, s3, v{vA}")
    for t in range(1,4): g(f"v_xor_b32 v{vA+t}, {64*(t&1)+(8192+128)*(t>>1)}, v{vA}")
    for cch in range(10):
        g(f"s_waitcnt vmcnt({8*min(4,9-cch)})"); g("s_barrier")
        for t in range(4): g(f"v_add_u32 v{vB+t}, {(cch%5)*32768}, v{vA+t}")
        for t in range(4):
            k,r=wv(4*cch+t)[0],int(wv(4*cch+t)[2:].split(":")[0])
            for rho in range(4): g(f"ds_read_b64_tr_b16 {q2(k,r+2*rho)}, v{vB+t} offset:{512*rho}")
        g("s_waitcnt lgkmcnt(0)")
        if cch<5:
            g("s_barrier"); w_dma(g,vD,sA,sU,cch,8192,1,32*8192)
    tl(g,opt.get("trace"),DBG3+16384,101,1,vTmp)
    startup_checks(g,opt,8,sA,sB)
    g("s_barrier")
    g(f"v_lshlrev_b32 v{vL16}, 4, v0"); g(f"v_add_u32 v{vL16b}, 4096, v{vL16}")
    xm_bases(g,sXM,opt)
    xm_setup(g,vXa,vXb,vLa,vLb,vIdx,vL16,vTmp,sA,sB)
    g(f"s_lshr_b32 s3, s{sX}, 1"); g("s_lshl_b32 s3, s3, 5"); g(f"s_add_u32 s{sU}, s3, s{sH}")
    g(f"s_lshl_b32 s{sFl}, s{sU}, 8"); g(f"s_add_u32 s{sFl}, s{sFl}, {FLW}")
    g(f"s_mul_i32 s{sA}, s{sU}, {4*EXS}")
    for s_ in range(4): g(f"s_add_u32 s{sEX+s_}, s{sA}, {EX+s_*EXS}")
    g(f"s_add_u32 s3, s{sFl}, 8"); g(f"s_cmp_eq_u32 s{sW}, 0"); g(f"s_cselect_b32 s{sPg}, s3, {OOB}")
    g(f"s_and_b32 s{sB}, s{sW}, 1"); g(f"s_lshr_b32 s{sA}, s{sW}, 1")
    g(f"s_lshl_b32 s3, s{sB}, 10"); g(f"v_add_u32 v{vEv}, s3, v{vL16b}")
    g(f"s_lshl_b32 s3, s{sW}, 10"); g(f"v_add_u32 v{vMw}, s3, v{vL16}")
    g(f"s_lshl_b32 s3, s{sA}, 11"); g(f"v_add_u32 v{vMr}, s3, v{vL16}")
    g(f"s_mul_i32 s{sMk}, s{sA}, 24576"); g(f"s_add_u32 s{sMk}, s{sMk}, {L_B}"); g(f"v_add_u32 v{vKa}, s{sMk}, v{vL16}"); g(f"v_add_u32 v{vVa}, 16384, v{vKa}")
    g(f"s_lshl_b32 s{sQo}, s{sB}, 12"); g(f"s_add_u32 s{sMq}, s{sMk}, s{sQo}"); g(f"s_add_u32 s{sMq}, s{sMq}, 8192"); g(f"v_add_u32 v{vQa}, s{sMq}, v{vL16}")
    g(f"s_lshl_b32 s3, s{sB}, 14"); g(f"s_add_u32 s{sMk}, s{sMk}, s3")
    g(f"s_mul_i32 s{sKo}, s{sB}, {VO-KQ}")
    bulk.hblk(g,sIn,sH); g(f"s_lshr_b32 s3, s{sX}, 1"); g(f"s_mul_i32 s3, s3, {LST}"); g(f"s_add_u32 s{sIn}, s{sIn}, s3"); g(f"s_add_u32 s{sIn}, s{sIn}, {KQ}")
    bulk.near_setup(g,0,have=True)
    g(f"s_lshr_b32 s3, s{sX}, 1"); g(f"s_lshl_b32 s{sFO}, s3, 8"); g(f"s_add_u32 s{sFO}, s{sFO}, s{bulk.sN1}"); g(f"s_add_u32 s{sFO}, s{sFO}, {CO}")
    g(f"s_lshr_b32 s3, s{sH}, 2"); g(f"s_mul_i32 s3, s3, {5*512}"); g(f"v_lshl_add_u32 v{vSig}, v0, 9, s3"); bulk.spread_v(g,vSig,vTmp)
    g(f"v_lshrrev_b32 v{vTmp}, 4, v0"); g(f"v_lshlrev_b32 v{vSt}, 9, v{vTmp}"); g(f"v_and_b32 v{vT2}, 15, v0"); g(f"v_lshl_add_u32 v{vSt}, v{vT2}, 4, v{vSt}")
    g(f"s_lshl_b32 s3, s{sB}, 8"); g(f"v_add_u32 v{vSt}, s3, v{vSt}")
    g(f"s_lshl_b32 s3, s{sB}, 4"); g(f"v_add_u32 v{vT2}, s3, v{vT2}"); g(f"v_lshlrev_b32 v{vTmp}, 2, v{vTmp}"); g(f"v_mov_b32 v{vO}, 0xff61b1e6")
    for b in range(8):
        g(f"v_add_u32 v{vO+1}, {16*(b>>2)+(b&3)}, v{vTmp}")
        g(f"v_cmp_gt_u32 vcc, v{vO+1}, v{vT2}"); g("s_nop 1")
        g(f"v_cndmask_b32 v{vB0+b}, 0, v{vO}, vcc")
    for i in range(4): g(f"v_mov_b32 v{vSent+i}, -1"); g(f"v_mov_b32 v{vPm+i}, 0")
    for i in range(16): g(f"v_mov_b32 v{vAc+i}, 0")
    sel_regs(g,vSelT,vZ2,vT2,True)
    g(f"v_mov_b32 v{vZ2}, 0"); g(f"v_and_b32 v{vAr}, -33, v{vL16}")
    g(f"s_mov_b32 s{sSc}, {hex(f32bits(128**-0.5))}"); g(f"s_mov_b32 s{sL2e}, {hex(f32bits(math.log2(math.e)))}")
    NT=" nt" if opt.get("att_nt",1) else ""
    def fetch(par):
        bulk.blk(g,sLd,sT,sIn,0)
        g(f"s_xor_b32 s{sEv}, s{sLd}, 8192"); g(f"s_add_u32 s{sEv}, s{sEv}, s{sQo}"); g(f"s_add_u32 s{sLd}, s{sLd}, s{sKo}")
        L=[(f"s_add_u32 m0, s{sMq}, {par*49152}\ns_nop 0\n" if i==0 else "")+f"buffer_load_dwordx4 v{vL16}, {WS}, s{sEv} offen offset:{1024*i} sc1{NT} lds" for i in range(4)]
        for i in range(8):
            L.append((f"s_add_u32 m0, s{sMk}, {par*49152+1024*i}\ns_nop 0\n" if i%4==0 else "")+f"buffer_load_dwordx4 v{vL16 if i<4 else vL16b}, {WS}, s{sLd} offen offset:{1024*(i%4)} sc1 lds")
        return L
    g(f"s_mov_b32 s{sT}, 0"); g(f"s_mov_b32 s{sOa}, {OOB}"); g(f"s_mov_b32 s{sSg}, {OOB}"); g(f"s_sub_u32 s{sFO}, s{sFO}, 4")
    for i in range(16): g(f"v_mov_b32 v{vKM+i}, 0")
    tl(g,opt.get("trace"),DBG3+16384,101,3,R1)
    g(f"s_cmp_lg_u32 s{bulk.sSlow}, 0"); g(f"s_cbranch_scc1 L_{N}_ents"); g(f"s_branch L_{N}_entf")
    rnd=lambda R: bulk.rnd_pairs(g,R,vTmp)
    def reads(pa):
        return ([f"ds_read_b128 {q4('v',R1+4*i)}, v{vQa} offset:{pa*49152+1024*i}" for i in range(4)]+
                [f"ds_read_b128 {q4('v',vO+4*i)}, v{vKa} offset:{pa*49152+1024*i}" for i in range(8)]+
                [f"ds_read_b128 {q4('v',vVM+4*e)}, v{vMr} offset:{L_VM+pa*4096+1024*e}" for e in range(2)])
    def att(pa, dm, kld):
        n0=len(g.lines)
        vr_=[f"ds_read_b128 {q4('v',VF[i])}, v{vVa} offset:{pa*49152+1024*i}" for i in range(8)]
        for j in range(4):
            for d,a_,c0 in ((vS+4,vO+4*j,q4('v',vB0)),(vS+8,vO+16+4*j,q4('v',vB0+4)),(vS,vKM+4*j,'0')):
                g(f"{MF} {q4('v',d)}, {q4('v',a_)}, {q4('v',R1+4*j)}, {c0 if j==0 else q4('v',d)}")
                if vr_: g(vr_.pop(0))
        for i in range(8): g(f"v_mov_b32 v{vAc+i}, 0")
        SG=[vS+4+i for i in range(8)]+[vS+2,vS+3]
        rnd(SG)
        for r in SG[::2]: g(f"v_pk_mul_f32 {q2('v',r)}, {q2('v',r)}, s[{sSc-1}:{sSc}] op_sel:[0,1] op_sel_hi:[1,1]")
        rnd(SG)
        g(f"v_max_f32 v{m1}, v{SG[0]}, v{SG[1]}")
        for r in SG[2::2]: g(f"v_max3_f32 v{m1}, v{m1}, v{r}, v{r+1}")
        bulk.xsum4(g,m1,tx,"v_max_f32")
        g(f"v_mul_f32 v{tx}, s{sL2e}, v{m1}")
        for r in SG: g(f"v_fma_f32 v{r}, v{r}, s{sL2e}, -v{tx}")
        for r in SG: g(f"v_exp_f32 v{r}, v{r}")
        g(f"v_add_f32 v{fa}, v{SG[0]}, v{SG[1]}")
        for r in SG[2:]: g(f"v_add_f32 v{fa}, v{fa}, v{r}")
        bulk.xsum4(g,fa,tx,"v_add_f32")
        g(f"v_rcp_f32 v{fa}, v{fa}"); g("s_nop 0")
        for r in SG[::2]: g(f"v_pk_mul_f32 {q2('v',r)}, {q2('v',r)}, {q2('v',fa)} op_sel_hi:[1,0]")
        for i in range(4): g(f"v_cvt_pk_bf16_f32 v{vP+i}, v{SG[2*i]}, v{SG[2*i]+1}")
        g(f"v_cvt_pk_bf16_f32 v{vPm}, v{vS+2}, v{vS+3}"); g(f"v_cvt_pk_bf16_f32 v{vPm+3}, v{vS+2}, v{vS+3}")
        blk_=g.lines[n0:]; del g.lines[n0:]
        dm=list(dm)+list(kld); ev=opt.get("dm_ev",7)
        for i,x in enumerate(blk_):
            g.lines.append(x)
            if i%ev==0 and dm: g(dm.pop(0))
        for x in dm: g(x)
        stamp("sg")
        g("s_waitcnt lgkmcnt(0)")
        def outs(j):
            for k in range(4*j,4*j+4): g(f"v_cvt_pk_bf16_f32 v{R1+k}, v{vO+2*k}, v{vO+2*k+1}")
            g(f"buffer_store_dwordx4 {q4('v',R1+4*j)}, v{vSt}, {WS}, s{sOa} offen offset:{2048*(j&1)} sc1")
            if j==1: g(f"s_add_u32 s{sOa}, s{sOa}, 4096")
        for i in range(9):
            if i<8: g(f"{MF} {q4('v',vO+4*i)}, {q4('v',VF[i])}, {q4('v',vP)}, 0")
            if i>0: g(f"{MH} {q4('v',vO+4*i-4)}, {q2('v',vVM+2*((i-1)>>1))}, {q2('v',vPm+2*((i-1)&1))}, {q4('v',vO+4*i-4)}")
            if i in (4,6,8): outs((i-4)//2)
        g("s_nop 3")
        outs(3)
    for LS,LN in (("","f"),(" sc1","s")):
        g.raw(".p2align 6")
        g.label(f"L_{N}_loop{LN}")
        for U in range(4):
            par=U&1
            g(f"s_mov_b32 s{sTO}, 0")
            gl=f"buffer_load_dword v{vTmp}, off, {WS}, s{sGo} sc1"
            SGO=opt.get("sgo",1) and not LS
            if SGO:
                lp=g.uniq("go"); lr=g.uniq("gr"); g.label(lp)
                g(f"s_buffer_load_dword s{sA}, {WS}, s{sGo} glc"); g("s_waitcnt lgkmcnt(0)")
                g(f"s_cmp_gt_u32 s{sT}, s{sA}"); g(f"s_cbranch_scc1 {lr}")
                def gor(lp=lp,lr=lr):
                    g.label(lr); l2=g.uniq("g2")
                    g("s_getreg_b32 s3, hwreg(HW_REG_IB_STS, 0, 4)"); g(f"s_lshr_b32 s{sA}, s{sSg}, 28"); g(f"s_or_b32 s3, s3, s{sA}"); g(f"s_cbranch_scc1 {l2}")
                    g("s_waitcnt vmcnt(0)"); bulk.signal(g, vT2, vSig, sSg, "31"); g(f"s_mov_b32 s{sSg}, {OOB}")
                    g.label(l2); g(f"s_nop {opt.get('go_gap',3)}")
                    timeout(g, lp)
                c.cold.append(gor)
            else:
                g(gl); g("s_waitcnt vmcnt(0)")
                lp=g.uniq("go"); g.label(lp)
                g(f"v_cmp_gt_u32 vcc, s{sT}, v{vTmp}")
                retry(lp,["s_nop 7",gl,"s_waitcnt vmcnt(0)"])
            if U==0: g.label(f"L_{N}_ent{LN}")
            stamp("go")
            g(f"s_mov_b32 s{sTO}, 0")
            dly("dly_v")
            XS=opt.get("xsig",1) and not SGO
            xm_phase(c,sXM+U,vXa,vXb,vLa,vLb,vSelT,vTmp,R1,[f"v_mov_b32 v{vT2}, 1","s_mov_b64 exec, 31",f"buffer_atomic_add v{vT2}, v{vSig}, {WS}, s{sSg} offen","s_mov_b64 exec, -1"] if XS else ())
            if diag: g(f"s_mov_b32 s12, s{sTO}")
            stamp("b1")
            fl=f"buffer_load_dword v{vWf}, off, {WS}, s{sFl} sc1"
            ls=g.uniq("ns")
            sg=[f"s_cmp_ge_u32 s{sSg}, {OOB}",f"s_cbranch_scc1 {ls}",f"v_mov_b32 v{vT2}, 1","s_mov_b64 exec, 31",f"buffer_atomic_add v{vT2}, v{vSig}, {WS}, s{sSg} offen","s_mov_b64 exec, -1",ls+":"]
            proj(g,vAc,VF,wv,vAr,vIdx,[(0,x) for x in reads(1-par)],3,([] if XS else sg)+[fl])
            dm=fetch(par); ne=opt.get("dm_end",0); dme=dm[12-ne:]; dm=dm[:12-ne]
            for t in range(4):
                if t==2: g("s_nop 2")
                g(f"v_cvt_pk_bf16_f32 v{vNw+t}, v{vAc+2*t}, v{vAc+2*t+1}")
            g(f"buffer_store_dwordx4 {q4('v',vNw)}, v{vEv}, {WS}, s{sEX+U} offen{LS}")
            g(f"ds_write_b128 v{vMw}, {q4('v',vNw)} offset:{L_VM+par*4096}")
            g("s_waitcnt vmcnt(1) lgkmcnt(1)")
            stamp("vst")
            lp=g.uniq("wf"); g.label(lp)
            g(f"v_cmp_ge_u32 vcc, s{sT}, v{vWf}")
            retry(lp,["s_sleep 1",fl,"s_waitcnt vmcnt(0)"])
            if diag: g(f"s_mov_b32 s13, s{sTO}")
            kld=[f"buffer_load_dwordx4 {q4('v',vKM+4*i)}, v{vL16}, {WS}, s{sEX+U} offen offset:{1024*i} sc1" for i in range(4)]
            att(1-par, dm+[f"buffer_store_dwordx4 {q4('v',vSent)}, v{vEv}, {WS}, s{sEX+(U+3)%4} offen{LS}"], kld)
            g(f"s_cmp_ge_u32 s{sOa}, {OOB}"); g(f"s_cselect_b32 s{sSg}, {OOB}, s{sFO}"); g(f"s_add_u32 s{sFO}, s{sFO}, 4")
            bulk.blk(g,sOa,sT,sIn,1); g(f"s_add_u32 s{sOa}, s{sOa}, {VO-KQ}")
            g(f"s_add_u32 s{sT}, s{sT}, 1"); g(f"v_mov_b32 v{vT2}, s{sT}")
            g("s_mov_b64 exec, 1")
            g(f"buffer_store_dword v{vT2}, off, {WS}, s{sPg}{LS}")
            g("s_mov_b64 exec, -1")
            stamp("ost")
            for x in dme: g(x)
            g(f"s_waitcnt vmcnt({5+ne})")
            lp=g.uniq("pk"); g.label(lp)
            g(f"v_max3_u32 v{vTmp}, v{vKM}, v{vKM+4}, v{vKM+8}"); g(f"v_max_u32 v{vTmp}, v{vTmp}, v{vKM+12}")
            g(f"v_cmp_eq_u32 vcc, -1, v{vTmp}")
            retry(lp,[f"s_nop {opt.get('k_gap',7)}"]+kld+["s_waitcnt vmcnt(0)"])
            stamp("kok")
            if diag:
                g(f"s_mov_b32 s14, s{sTO}"); g(f"s_sub_u32 s{sA}, s{sT}, 1"); c.dump(sA,vS)
            if U==3:
                g(f"s_cmp_eq_u32 s{sT}, 64"); g(f"s_cbranch_scc1 L_{N}_last")
        g(f"s_branch L_{N}_loop{LN}")
        c.flush()
    g.label(f"L_{N}_last")
    if opt.get("dm_end",0): g("s_waitcnt vmcnt(0)")
    g("s_barrier")
    for x in reads(1)[4:]: g(x)
    g("s_waitcnt vmcnt(0)")
    for x in reads(1)[:4]: g(x)
    bulk.signal(g, vT2, vSig, sSg, "31")
    g("s_waitcnt lgkmcnt(0)")
    c.diag=False
    att(1,[],[])
    g("s_waitcnt vmcnt(0)")
    bulk.signal(g, vT2, vSig, sFO, "31")
    g("s_endpgm")
```
